```python
import torch

def _softmax(x, axis=-1):
    return torch.softmax(x, dim=axis)
def _gelu(x):
    return torch.nn.functional.gelu(x, approximate="tanh")
def _silu(x):
    return torch.nn.functional.silu(x)
def _sigmoid(x):
    return torch.sigmoid(x)
def _layernorm(x, axis=-1, eps=1e-5):
    m = x.mean(dim=axis, keepdim=True)
    v = x.var(dim=axis, keepdim=True, unbiased=False)
    return (x - m) / torch.sqrt(v + eps)
def _scatter_add(tgt, idx, src, axis=0):
    return tgt.clone().index_add_(axis, idx, src)
def _segment_sum(src, seg, n):
    out = torch.zeros((n,) + src.shape[1:], dtype=src.dtype)
    return out.index_add_(0, seg, src)
def _pad(x, pw):
    flat = tuple(v for pair in reversed(pw) for v in pair)
    return torch.nn.functional.pad(x, flat)

kernel_name = 'sequential_preLN__sliding_block__glu_gated_bilinear__prompt'

def setup_inputs():

    _w = (lambda a: (lambda t: t.to(torch.bfloat16) if t.is_floating_point() else t)(torch.as_tensor(a)))
    def _A_setup():
        B, S, D = 1, 2048, 576
        return {
            "x": _w((lambda *s: torch.randn(*s, dtype=torch.bfloat16) * 0.05)(B, S, D)),
            "wqkv": _w((lambda *s: torch.randn(*s, dtype=torch.bfloat16) * 0.05)(D, 3 * D)),
            "wo": _w((lambda *s: torch.randn(*s, dtype=torch.bfloat16) * 0.05)(D, D)),
        }
    _A_in = _A_setup()

    def _B_setup():
        B, S, D, F = 1, 2048, 576, 4608
        return {
            "x": _w((lambda *s: torch.randn(*s, dtype=torch.bfloat16) * 0.05)(B, S, D)),
            "w_gate": _w((lambda *s: torch.randn(*s, dtype=torch.bfloat16) * 0.8)(D, F) * (D ** -0.5)),
            "w_up": _w((lambda *s: torch.randn(*s, dtype=torch.bfloat16) * 0.8)(D, F) * (D ** -0.5)),
            "w_down": _w((lambda *s: torch.randn(*s, dtype=torch.bfloat16) * 0.8)(F, D) * (F ** -0.5)),
        }
    _B_in = _B_setup()

    return {
        "A_x": _A_in["x"],
        "A_wqkv": _A_in["wqkv"],
        "A_wo": _A_in["wo"],
        "B_x": _B_in["x"],
        "B_w_gate": _B_in["w_gate"],
        "B_w_up": _B_in["w_up"],
        "B_w_down": _B_in["w_down"],
    }

def reference(A_x, A_wqkv, A_wo, B_x, B_w_gate, B_w_up, B_w_down):
    def _A_ref(x, wqkv, wo):
        B, S, D = x.shape
        H = 32; Dh = D // H; W = 256
        qkv = (lambda x, *d: x.permute(*d))((x @ wqkv).reshape(B, S, 3, H, Dh), 2, 0, 3, 1, 4)
        q, k, v = qkv[0], qkv[1], qkv[2]
        scores = torch.einsum("bhqd,bhkd->bhqk", q, k) * (Dh ** -0.5)
        idx = torch.arange(S)
        mask = (idx[:, None] - idx[None, :] >= 0) & (idx[:, None] - idx[None, :] < W)
        scores = torch.where(mask[None, None], scores, -1e9)
        p = _softmax(scores, axis=-1)
        o = torch.einsum("bhqk,bhkd->bhqd", p, v)
        return (lambda x, *d: x.permute(*d))(o, 0, 2, 1, 3).reshape(B, S, D) @ wo

    def _B_ref(x, w_gate, w_up, w_down):
        g = torch.einsum("bsd,df->bsf", x, w_gate)
        u = torch.einsum("bsd,df->bsf", x, w_up)
        h = g * u
        return torch.einsum("bsf,fd->bsd", h, w_down)

    x = A_x
    h = x + _A_ref(_layernorm(x, axis=-1), A_wqkv, A_wo)
    h2 = h + _B_ref(_layernorm(h, axis=-1), B_w_gate, B_w_up, B_w_down)
    return h2
```

```python
import re

REG_RE = re.compile(r"\b([vas])(\d+)\b|\b([vas])\[(\d+):(\d+)\]")

def regs_of(op):
    out = set()
    op = op.strip()
    if op in ("vcc",):
        return {("s", 106), ("s", 107)}
    if op == "vcc_lo": return {("s", 106)}
    if op == "vcc_hi": return {("s", 107)}
    if op == "exec": return {("x", 0)}
    if op == "m0": return {("m", 0)}
    for m in REG_RE.finditer(op):
        if m.group(1):
            out.add((m.group(1), int(m.group(2))))
        else:
            for i in range(int(m.group(4)), int(m.group(5)) + 1):
                out.add((m.group(3), i))
    return out

TRANS = ("v_exp_f32", "v_log_f32", "v_rcp_f32", "v_rsq_f32", "v_sqrt_f32", "v_sin_f32", "v_cos_f32", "v_rcp_iflag_f32")

class Ins:
    __slots__ = ("text", "op", "kind", "wr", "rd", "srcc", "passes", "states", "storedata", "dpp", "lane_sel", "sconst")
    def __init__(self, text):
        self.text = text
        t = text.split(";")[0].strip()
        parts = t.split(None, 1)
        self.op = parts[0]
        ops = [o.strip() for o in parts[1].split(",")] if len(parts) > 1 else []
        mods = ""
        if ops:
            last = ops[-1].split()
            if last:
                ops[-1] = last[0]; mods = " ".join(last[1:])
        op = self.op
        self.wr = set(); self.rd = set(); self.srcc = set(); self.passes = 0; self.states = 1
        self.storedata = set(); self.dpp = ("dpp" in op) or ("row_" in mods) or ("quad_perm" in mods); self.sconst = set()
        if op == "s_nop":
            self.kind = "nop"; self.states = int(ops[0], 0) + 1
        elif op.startswith("v_mfma"):
            self.kind = "mfma"
            self.wr = regs_of(ops[0]); self.rd = regs_of(ops[1]) | regs_of(ops[2]); self.srcc = regs_of(ops[3])
            self.passes = 8 if "32x32" in op else 4
        elif op.startswith("v_"):
            self.kind = "valu"
            if op.startswith("v_cmp"):
                self.wr = regs_of(ops[0]);
                for o in ops[1:]: self.rd |= regs_of(o)
                if op.startswith("v_cmpx"): self.wr |= {("x", 0)}
            elif (op.startswith("v_permlane") and "swap" in op) or op.startswith("v_swap"):
                self.wr = regs_of(ops[0]) | regs_of(ops[1]); self.rd = set(self.wr)
            elif op.startswith(("v_add_co", "v_sub_co", "v_addc_co", "v_subb_co", "v_subrev_co", "v_div_scale", "v_mad_u64")):
                self.wr = regs_of(ops[0]) | regs_of(ops[1])
                for o in ops[2:]: self.rd |= regs_of(o)
            else:
                self.wr = regs_of(ops[0])
                for o in ops[1:]: self.rd |= regs_of(o)
                if op.startswith(("v_fmac", "v_dot2c", "v_writelane", "v_pk_fmac")) or self.dpp or "sdwa" in op: self.rd |= self.wr
                if op.startswith("v_cndmask") and len(ops) == 3: self.rd |= regs_of("vcc")
            self.sconst = {r for r in self.rd if r[0] == "s"}
        elif op.startswith("ds_"):
            self.kind = "ds"
            if op.startswith(("ds_read", "ds_bpermute", "ds_permute", "ds_swizzle")) or "_rtn" in op:
                self.wr = regs_of(ops[0])
                for o in ops[1:]: self.rd |= regs_of(o)
            else:
                for o in ops: self.rd |= regs_of(o)
        elif op.startswith(("buffer_", "global_", "flat_")):
            self.kind = "vmem"
            lds = (" lds" in (" " + mods)) or ("_lds_" in op)
            if op in ("buffer_wbl2", "buffer_inv"):
                pass
            elif lds:
                for o in ops: self.rd |= regs_of(o)
                self.rd |= {("m", 0)}
                self.kind = "dma"
            elif "load" in op:
                self.wr = regs_of(ops[0])
                for o in ops[1:]: self.rd |= regs_of(o)
            elif "atomic" in op:
                for o in ops: self.rd |= regs_of(o)
                if "sc0" in mods: self.wr = regs_of(ops[0])
            else:
                for o in ops: self.rd |= regs_of(o)
                if op.endswith(("x3", "x4")):
                    self.storedata = regs_of(ops[0]) if op.startswith("buffer") else regs_of(ops[1])
        elif op.startswith("s_"):
            self.kind = "salu"
            if op.startswith(("s_cmp", "s_cbranch", "s_branch", "s_waitcnt", "s_barrier", "s_endpgm", "s_sleep", "s_setprio", "s_bitcmp")):
                for o in ops: self.rd |= regs_of(o)
            else:
                if ops: self.wr = regs_of(ops[0])
                for o in ops[1:]: self.rd |= regs_of(o)
                if "saveexec" in op: self.wr |= {("x", 0)}
        else:
            self.kind = "other"

def need_states(p, c):
    n = 0
    vw = {r for r in p.wr if r[0] in "va"}
    if p.kind == "valu":
        isdot = p.op.startswith("v_dot")
        if c.kind == "mfma" and vw & (c.rd | c.srcc): n = max(n, 3 if isdot else 2)
        if isdot and c.kind in ("valu", "vmem", "ds", "dma"):
            if c.op == p.op:
                t = c.text.split(";")[0]
                ops = [o.strip() for o in t.split(None, 1)[1].split(",")]
                ab = regs_of(ops[1]) | regs_of(ops[2].split()[0])
                if vw & ab: n = max(n, 3)
            elif vw & (c.rd | c.wr): n = max(n, 3)
        sw = {r for r in p.wr if r[0] == "s"}
        if sw:
            if c.kind in ("vmem", "dma") and sw & c.rd: n = max(n, 5)
            if c.kind == "valu" and sw & c.rd:
                n = max(n, 4 if c.op.startswith(("v_readlane", "v_writelane", "v_div_fmas")) else 2)
            if c.kind == "salu" and sw & c.rd: n = max(n, 1)
        if c.kind == "valu":
            if c.op.startswith(("v_readlane", "v_readfirstlane")) and vw & c.rd: n = max(n, 1)
            if c.op.startswith("v_permlane") and vw & c.rd: n = max(n, 2)
            if c.dpp and vw & c.rd: n = max(n, 2)
            if p.op.startswith(TRANS) and not c.op.startswith(TRANS) and vw & c.rd: n = max(n, 1)
            if ("sdwa" in p.op or "op_sel" in p.text) and vw & (c.rd | c.wr): n = max(n, 1)
        if p.op.startswith(TRANS) and c.kind in ("vmem", "ds", "mfma") and vw & c.rd: n = max(n, 1)
        if ("x", 0) in p.wr:
            if c.kind == "mfma": n = max(n, 4)
            if c.kind == "valu" and (c.dpp): n = max(n, 5)
            if c.kind == "valu" and c.op.startswith(("v_readlane", "v_readfirstlane", "v_writelane", "v_permlane")): n = max(n, 4)
    if p.kind == "mfma":
        big = 12 if p.passes == 8 else 8
        if c.kind == "mfma":
            if p.wr & c.rd: n = max(n, big)
            if p.wr & c.srcc:
                if not (p.wr == c.srcc and p.passes == c.passes): n = max(n, big - 2)
            elif p.wr & c.wr and not (p.wr == c.wr): n = max(n, big)
        elif c.kind in ("valu", "vmem", "ds", "dma"):
            if p.wr & (c.rd | c.wr): n = max(n, big)
            if c.kind == "valu" and p.srcc & c.wr: n = max(n, 7 if p.passes == 8 else 3)
    if p.kind == "salu" and ("m", 0) in p.wr and c.kind == "dma": n = max(n, 1)
    if p.storedata and (p.storedata & c.wr): n = max(n, 2 if c.kind == "valu" else 1)
    return n

class Kern:
    def __init__(self, name):
        self.name = name
        self.items = []
        self.nlabel = 0
        self.loops = []
    def __call__(self, s):
        for ln in s.split("\n"):
            ln = ln.strip()
            if not ln: continue
            if ln.endswith(":") or ln.startswith(".") or ln.startswith(";"):
                self.items.append(ln)
            else:
                self.items.append(Ins(ln))
    def label(self, base="L"):
        self.nlabel += 1
        return f"{self.name}_{base}{self.nlabel}"
    def put(self, lab):
        self.items.append(lab + ":")
    def fix_hazards(self):
        out = []; hist = []
        pos = 0; added = 0
        for it in self.items:
            if isinstance(it, str):
                out.append(it); continue
            need = 0
            for (p, ppos) in reversed(hist[-24:]):
                have = pos - ppos
                if have >= 20: break
                n = need_states(p, it)
                if n > have: need = max(need, n - have)
            while need > 0:
                m = min(need, 16)
                nop = Ins(f"s_nop {m-1}")
                out.append(nop); pos += m; need -= m; added += m
                hist.append((nop, pos))
            out.append(it); pos += it.states
            hist.append((it, pos))
        self.items = out
        self.added_nops = added
    def check_backedges(self):
        labels = {it[:-1]: i for i, it in enumerate(self.items) if isinstance(it, str) and it.endswith(":")}
        probs = []
        for i, it in enumerate(self.items):
            if isinstance(it, Ins) and it.op.startswith(("s_cbranch", "s_branch")):
                tgt = it.text.split()[1]
                if tgt in labels:
                    j = labels[tgt]
                    pre = [x for x in self.items[max(0, i - 30): i + 1] if isinstance(x, Ins)]
                    post = [x for x in self.items[j: j + 40] if isinstance(x, Ins)]
                    seq = pre + post
                    pos = 0; hist = []
                    for n, x in enumerate(seq):
                        if n >= len(pre):
                            for (p, ppos, pn) in hist:
                                if pn < len(pre):
                                    nd = need_states(p, x)
                                    if nd > pos - ppos:
                                        probs.append((tgt, p.text, x.text, nd, pos - ppos))
                        pos += x.states
                        hist.append((x, pos, n))
        return probs
    def maxreg(self, kind):
        m = -1
        for it in self.items:
            if isinstance(it, Ins):
                for r in it.wr | it.rd | it.srcc:
                    if r[0] == kind and not (kind == "s" and r[1] >= 106): m = max(m, r[1])
        return m + 1
    def body(self):
        return "\n".join(it if isinstance(it, str) else "    " + it.text for it in self.items)

def srd(k, d, base, nbytes, off=None):
    if off is None:
        k(f"s_mov_b32 s{d}, s{base}")
        k(f"s_mov_b32 s{d+1}, s{base+1}")
    else:
        k(f"s_add_u32 s{d}, s{base}, {off:#x}")
        k(f"s_addc_u32 s{d+1}, s{base+1}, 0")
    k(f"s_mov_b32 s{d+2}, {nbytes:#x}")
    k(f"s_mov_b32 s{d+3}, 0x00020000")

def emit_file(kernels, launches, header=""):
    out = []
    if header:
        out.append(header.rstrip("\n"))
    for (name, grid, block, lds) in launches:
        out.append(f"; @launch kernel={name} grid=({grid},1,1) block=({block},1,1) lds={lds}")
    out.append('.amdgcn_target "amdgcn-amd-amdhsa--gfx950"')
    out.append(".text")
    ks = []
    for e in kernels:
        if isinstance(e, Kern):
            k = e; k.fix_hazards()
            pb = k.check_backedges()
            if pb:
                for x in pb: print("BACKEDGE HAZARD", k.name, x)
                raise SystemExit(1)
            ks.append((k, max(k.maxreg("v"), 1), k.maxreg("a"), max(k.maxreg("s"), 8)))
        else:
            e[0].fix_hazards(); ks.append(e)
    for (k, nv, na, ns) in ks:
        out.append(f".globl {k.name}")
        out.append(".p2align 8")
        out.append(f".type {k.name},@function")
        out.append(f"{k.name}:")
        out.append(k.body())
    out.append('.section .rodata,"a"')
    for (k, nv, na, ns) in ks:
        acc = max((nv + 3) // 4 * 4, 4)
        nfv = acc + na if na else nv
        out.append(".p2align 6")
        out.append(f".amdhsa_kernel {k.name}")
        out.append(f"  .amdhsa_next_free_vgpr {nfv}")
        out.append(f"  .amdhsa_next_free_sgpr {ns}")
        out.append(f"  .amdhsa_accum_offset {acc}")
        out.append("  .amdhsa_group_segment_fixed_size 0")
        out.append("  .amdhsa_kernarg_size 80")
        out.append("  .amdhsa_user_sgpr_count 2")
        out.append("  .amdhsa_user_sgpr_kernarg_segment_ptr 1")
        out.append("  .amdhsa_system_sgpr_workgroup_id_x 1")
        out.append("  .amdhsa_float_denorm_mode_32 3")
        out.append(".end_amdhsa_kernel")
        print(f"{k.name}: vgpr={nv} agpr={na} sgpr={ns} nops_added={getattr(k,'added_nops',0)} ninstr={sum(1 for i in k.items if isinstance(i, Ins))}")
    return "\n".join(out) + "\n"
```

```python
from asmlib import *
import struct
def f2u(x): return struct.unpack("<I", struct.pack("<f", x))[0]
def fx(x): return hex(f2u(x))
D = 576; F = 4608; S = 2048
WS_QK = 0x000000; QK_BYTES = 64 * 73728
WS_V = 0x500000; V_BYTES = 64 * 36864
WS_O = 0x800000; O_BYTES = 64 * 36864
WS_H = 0xB00000; H_BYTES = 64 * 36864
WS_TRACE = 0x8000000
WS_PART = 0x1000000; PART_BYTES = 16 * 64 * 36864

class Stamper:
    def __init__(self, k, on, base=72, nwg=4, trace=None):
        self.trace = trace; self.k = k; self.on = on; self.n = 0; self.base = base; self.nwg = nwg
    def start(self):
        if self.on:
            b = self.base
            self.k(f"s_load_dwordx2 s[{b-12}:{b-11}], s[0:1], 64")
            self.k(f"s_memrealtime s[{b-10}:{b-9}]")
            self.st()
    def st(self):
        if self.on:
            b = self.base
            self.k(f"s_memtime s[{b+2*self.n}:{b+1+2*self.n}]"); self.n += 1
    def finish(self, end, swave, vlane, vt0, vt1, wave=0):
        if not self.on: return
        k = self.k; b = self.base
        self.st()
        k("s_waitcnt vmcnt(0)")
        self.st()
        k(f"s_memrealtime s[{b-8}:{b-7}]"); k("s_waitcnt lgkmcnt(0)"); k(f"s_sub_u32 s{b-8}, s{b-8}, s{b-10}")
        k(f"s_cmp_lg_u32 s{swave}, {wave}"); k(f"s_cbranch_scc1 {end}")
        if self.trace is not None:
            srd(k, b-4, 10, 0x10000, off=WS_TRACE + self.trace*0x10000)
            k("s_mov_b64 exec, 1")
            k(f"s_lshl_b32 s{b-7}, s2, 4"); k(f"v_mov_b32 v{vt1}, s{b-7}")
            k(f"v_mov_b32 v{vt0}, s{b-10}"); k(f"buffer_store_dword v{vt0}, v{vt1}, s[{b-4}:{b-1}], 0 offen")
            k(f"v_mov_b32 v{vt0}, s{b-8}"); k(f"buffer_store_dword v{vt0}, v{vt1}, s[{b-4}:{b-1}], 0 offen offset:4")
            k(f"s_getreg_b32 s{b-7}, hwreg(HW_REG_HW_ID)"); k(f"v_mov_b32 v{vt0}, s{b-7}"); k(f"buffer_store_dword v{vt0}, v{vt1}, s[{b-4}:{b-1}], 0 offen offset:8")
            k(f"s_getreg_b32 s{b-7}, hwreg(HW_REG_XCC_ID)"); k(f"v_mov_b32 v{vt0}, s{b-7}"); k(f"buffer_store_dword v{vt0}, v{vt1}, s[{b-4}:{b-1}], 0 offen offset:12")
        k(f"s_cmp_ge_u32 s2, {self.nwg}"); k(f"s_cbranch_scc1 {end}")
        srd(k, b-4, b-12, 256)
        k("s_mov_b64 exec, 1")
        k(f"s_lshl_b32 s{b-7}, s2, 6"); k(f"v_mov_b32 v{vt1}, s{b-7}")
        k(f"v_mov_b32 v{vt0}, s{b-8}")
        k(f"buffer_store_dword v{vt0}, v{vt1}, s[{b-4}:{b-1}], 0 offen")
        for i in range(1, self.n):
            k(f"s_sub_u32 s{b-8}, s{b+2*i}, s{b}"); k(f"v_mov_b32 v{vt0}, s{b-8}")
            k(f"buffer_store_dword v{vt0}, v{vt1}, s[{b-4}:{b-1}], 0 offen offset:{4*i}")

class VQ:
    def __init__(self, k): self.k = k; self.q = []
    def __call__(self, tag, text): self.k(text); self.q.append(tag)
    def n(self, tag):
        idx = max(i for i, t in enumerate(self.q) if t == tag)
        return min(63, len(self.q) - 1 - idx)
    def wait(self, tag, extra=""):
        self.k(f"s_waitcnt vmcnt({self.n(tag)}){extra}")
    def emit(self, it):
        if isinstance(it, tuple): self(it[1], it[2])
        elif isinstance(it, list):
            for x in it: self.emit(x)
        else: self.k(it)
WS_ST = 0xE00000; ST_BYTES = 64 * 9 * 256
```

```python
from common import *
import math
def gen_k1(name="qkv_kernel", stamp=False, DEPTH=6):
    k = Kern(name); end = f"{name}_end"
    sp = Stamper(k, stamp, trace=0)
    NWG = 224
    k(f"s_cmp_ge_u32 s2, {NWG}"); k(f"s_cbranch_scc1 {end}")
    k("s_load_dwordx4 s[4:7], s[0:1], 0")
    k("s_load_dwordx2 s[10:11], s[0:1], 72")
    sp.start()
    k("v_lshrrev_b32 v1, 6, v0"); k("v_and_b32 v2, 63, v0")
    k("v_readfirstlane_b32 s36, v1")
    k("s_and_b32 s37, s2, 7"); k("s_lshl_b32 s37, s37, 2"); k("s_bfe_u32 s42, s2, 0x20003"); k("s_or_b32 s37, s37, s42")
    k("s_lshr_b32 s38, s2, 5")
    k("s_and_b32 s39, s36, 1")
    k("s_lshr_b32 s40, s36, 1")
    k("s_lshl_b32 s41, s38, 9"); k("s_lshl_b32 s42, s36, 7"); k("s_add_u32 s41, s41, s42")
    k("s_lshl_b32 s43, s36, 13")
    k("s_lshl_b32 s44, s37, 6"); k("s_lshl_b32 s42, s36, 4"); k("s_add_u32 s44, s44, s42"); k("s_mul_i32 s44, s44, 1152")
    k("s_mul_i32 s45, s36, 18432")
    vDW, vDX0, vDX1, vA, vXR, vSTQ, vSTV = 3, 4, 5, 6, 8, 12, 13
    vRd = [14, 15]
    vT = 16
    k("v_and_b32 v16, 3, v2"); k("v_lshlrev_b32 v16, 4, v16")
    k("v_bfe_u32 v17, v2, 2, 3")
    k("v_lshrrev_b32 v18, 5, v2")
    k("v_lshl_add_u32 v16, v18, 6, v16")
    k(f"v_mul_u32_u24 v{vDW}, 3456, v17"); k(f"v_add_u32 v{vDW}, v{vDW}, v16")
    k("v_lshrrev_b32 v16, 3, v2"); k("v_and_b32 v17, 7, v2"); k("v_lshrrev_b32 v19, 1, v16"); k("v_xor_b32 v17, v17, v19")
    k("v_mul_u32_u24 v16, 1152, v16")
    k(f"v_lshl_add_u32 v{vDX0}, v17, 4, v16")
    k("v_xor_b32 v17, 4, v17")
    k(f"v_lshl_add_u32 v{vDX1}, v17, 4, v16")
    k("v_bfe_u32 v16, v2, 2, 2"); k("v_lshlrev_b32 v16, 6, v16")
    k("v_bfe_u32 v17, v2, 4, 1"); k("v_lshl_add_u32 v16, v17, 5, v16")
    k("v_and_b32 v17, 3, v2"); k("v_lshl_add_u32 v16, v17, 3, v16")
    k("v_lshl_add_u32 v16, v18, 10, v16")
    k("s_lshl_b32 s42, s40, 14")
    k(f"v_add_u32 v{vA}, s42, v16")
    k("v_and_b32 v16, 31, v2"); k("v_lshrrev_b32 v17, 3, v16"); k("v_mul_u32_u24 v17, 9216, v17")
    k("v_and_b32 v19, 7, v16"); k("v_lshl_add_u32 v17, v19, 7, v17")
    k("s_mul_i32 s42, s39, 36864"); k("v_add_u32 v17, s42, v17")
    k("v_bfe_u32 v19, v16, 1, 3"); k("v_xor_b32 v19, v19, v18")
    for q in range(4):
        k(f"v_xor_b32 v20, {2*q}, v19"); k(f"v_lshl_add_u32 v{vXR+q}, v20, 4, v17")
    k(f"v_lshlrev_b32 v{vSTQ}, 3, v16"); k(f"v_lshl_add_u32 v{vSTQ}, v18, 8, v{vSTQ}")
    k(f"v_mul_u32_u24 v{vSTV}, 9216, v18"); k(f"v_lshl_add_u32 v{vSTV}, v16, 4, v{vSTV}")
    k("s_waitcnt lgkmcnt(0)")
    srd(k, 16, 4, S*D*2); srd(k, 20, 6, D*3*D*2)
    srd(k, 24, 10, QK_BYTES, off=WS_QK); srd(k, 28, 10, V_BYTES, off=WS_V)
    vq = VQ(k)
    SLOT = [73728, 73728+32768, 0, 32768]
    SPARE = 73728 + 65536
    def dma_w(c):
        out = []
        for rg in range(8):
            out.append([f"s_add_u32 m0, s43, {SLOT[c%4] + rg*1024}", f"s_add_u32 s46, s41, {(64*c + 8*rg)*3456}",
                        ("vm", f"w{c}", f"buffer_load_dwordx4 v{vDW}, s[20:23], s46 offen lds")])
        return out
    for par in range(2):
        for sg in range(9):
            k(f"s_add_u32 m0, s45, {(par*9 + sg)*1024}"); k(f"s_add_u32 s46, s44, {par*8*1152 + sg*128}")
            vq("x", f"buffer_load_dwordx4 v{vDX0 if par == 0 else vDX1}, s[16:19], s46 offen lds")
    for c in range(2): vq.emit(dma_w(c))
    XR = 64; ACC = 208
    accs = [32, 48, 208, 224]
    k("s_mov_b32 s54, 0x3f803f80"); k("s_mov_b32 s55, 0x00003f80"); k("s_mov_b32 s56, 0x3f800000")
    for i in range(8): k(f"v_mov_b32 v{vT+i}, 0")
    vq.wait("x"); k("s_barrier")
    sp.st()
    for s in range(36):
        k(f"ds_read_b128 v[{XR+4*s}:{XR+4*s+3}], v{vXR + (s&3)} offset:{(s>>2)*1024}")
        if s >= 8:
            k("s_waitcnt lgkmcnt(8)")
            for i in range(4): k(f"v_dot2c_f32_bf16 v{vT+i}, s54, v{XR+4*(s-8)+i}")
    for s in range(28, 36):
        k(f"s_waitcnt lgkmcnt({35-s})")
        for i in range(4): k(f"v_dot2c_f32_bf16 v{vT+i}, s54, v{XR+4*s+i}")
    vq.wait("w0")
    k("s_barrier")
    for c in (2, 3): vq.emit(dma_w(c))
    k(f"v_add_f32 v{vT}, v{vT}, v{vT+1}"); k(f"v_add_f32 v{vT+2}, v{vT+2}, v{vT+3}"); k(f"v_add_f32 v{vT}, v{vT}, v{vT+2}")
    k(f"v_mov_b32 v{vT+1}, v{vT}")
    k(f"v_permlane32_swap_b32 v{vT}, v{vT+1}")
    k(f"v_add_f32 v{vT}, v{vT}, v{vT+1}")
    k(f"v_mul_f32 v{vT}, {fx(-1.0/576)}, v{vT}")
    sp.st()
    def center(s):
        out = []
        for i in range(4):
            r = XR + 4*s + i; a = vT + 8 + 2*i
            out += [f"v_dot2_f32_bf16 v{a}, v{r}, s55, v{vT}", f"v_dot2_f32_bf16 v{a+1}, v{r}, s56, v{vT}"]
        for i in range(4):
            r = XR + 4*s + i; a = vT + 8 + 2*i
            out += [f"v_cvt_pk_bf16_f32 v{r}, v{a}, v{a+1}"]
        for i in range(4):
            r = XR + 4*s + i
            out += [f"v_dot2c_f32_bf16 v{vT+4+i}, v{r}, v{r}"]
        return out
    k("s_lshl_b32 s47, s38, 1"); k("s_add_u32 s47, s47, s40")
    lv = k.label("v")
    k("s_cmp_ge_u32 s47, 9"); k(f"s_cbranch_scc1 {lv}")
    vq0 = list(vq.q)
    for isv in (0, 1):
        if isv: k.put(lv)
        vq.q = list(vq0)
        NB = 8
        mf = []
        for s in range(36):
            c = s // 4; sl = s % 4
            for i in range(4):
                o = (i >> 1)*8192 + sl*2048 + (i & 1)*512
                mf.append(dict(c=c, o=[o, o+256], s=s, acc=accs[i]))
        N = len(mf)
        fill = [[] for _ in range(N+1)]
        def spread(items, g0, g1):
            n = len(items); w = g1 - g0
            for i, it in enumerate(items): fill[g0 + (i*w)//n].append(it)
        for it in center(0): k(it)
        for s in range(35): spread(center(s+1), 4*s, 4*s+4)
        BA = 4
        bar_at = {16*c - BA - 1: c for c in range(1, 9)}
        for c in range(1, 6):
            spread(dma_w(c+3), 16*c - BA, 16*c - BA + 12)
        lq = []; st_ = dict(rp=0, readable=1)
        k(f"v_add_u32 v{vRd[0]}, {SLOT[0]}, v{vA}")
        def issue_reads(g, maxn):
            n = 0
            while st_["rp"] < N and st_["rp"] <= g + DEPTH and mf[st_["rp"]]["c"] < st_["readable"] and n < maxn:
                rp = st_["rp"]; m = mf[rp]; fb = 4*(rp % NB)
                for e in range(2):
                    k(f"ds_read_b64_tr_b16 a[{fb+2*e}:{fb+2*e+1}], v{vRd[m['c']%2]} offset:{m['o'][e]}"); lq.append(rp)
                st_["rp"] += 1; n += 1
        issue_reads(-1, DEPTH)
        for g in range(N):
            m = mf[g]
            if g in lq:
                idx = max(i for i, t in enumerate(lq) if t == g)
                k(f"s_waitcnt lgkmcnt({len(lq)-1-idx})"); del lq[:idx+1]
            fb = 4*(g % NB); acc = m["acc"]; xs = XR + 4*m["s"]
            C = "0" if m["s"] == 0 else f"v[{acc}:{acc+15}]"
            A_, B_ = f"a[{fb}:{fb+3}]", f"v[{xs}:{xs+3}]"
            if isv: A_, B_ = B_, A_
            k(f"v_mfma_f32_32x32x16_bf16 v[{acc}:{acc+15}], {A_}, {B_}, {C}")
            if g in bar_at:
                c = bar_at[g]
                vq.wait(f"w{c}", " lgkmcnt(0)"); lq.clear()
                k("s_barrier")
                k(f"v_add_u32 v{vRd[c%2]}, {SLOT[c%4]}, v{vA}")
                st_["readable"] = c + 1
            issue_reads(g, 2)
            for it in fill[g]: vq.emit(it)
        sp.st()
        V = vT + 4
        k(f"v_add_f32 v{V}, v{V}, v{V+1}"); k(f"v_add_f32 v{V+2}, v{V+2}, v{V+3}"); k(f"v_add_f32 v{V}, v{V}, v{V+2}")
        k(f"v_mov_b32 v{V+1}, v{V}")
        k(f"v_permlane32_swap_b32 v{V}, v{V+1}")
        k(f"v_add_f32 v{V}, v{V}, v{V+1}")
        k(f"v_mov_b32 v{V+1}, {fx(1e-5)}")
        k(f"v_fmac_f32 v{V+1}, {fx(1.0/576)}, v{V}")
        k(f"v_rsq_f32 v{V}, v{V+1}")
        k("s_lshl_b32 s48, s37, 1"); k("s_add_u32 s48, s48, s39")
        if not isv:
            k("s_mul_i32 s49, s48, 73728"); k("s_lshl_b32 s50, s47, 13"); k("s_add_u32 s49, s49, s50")
            qs = (18 ** -0.5) * math.log2(math.e)
            k(f"v_mul_f32 v{V+1}, {fx(qs)}, v{V}")
            for i in range(4):
                k("s_lshl_b32 s50, s47, 2"); k(f"s_add_u32 s50, s50, {i}"); k("s_cmp_lt_u32 s50, 18")
                k("s_cselect_b64 vcc, -1, 0")
                k(f"v_cndmask_b32 v{V+2}, v{V}, v{V+1}, vcc")
                a = accs[i]
                for r in range(16): k(f"v_mul_f32 v{a+r}, v{V+2}, v{a+r}")
                for j in range(8): k(f"v_cvt_pk_bf16_f32 v{XR+8*i+j}, v{a+2*j}, v{a+2*j+1}")
                for q in range(4):
                    k(f"buffer_store_dwordx2 v[{XR+8*i+2*q}:{XR+8*i+2*q+1}], v{vSTQ}, s[24:27], s49 offen offset:{2*q*256}")
                if i < 3: k("s_add_u32 s49, s49, 2048")
        else:
            k("v_and_b32 v26, 31, v2"); k("v_lshlrev_b32 v26, 2, v26"); k("s_lshl_b32 s50, s36, 7"); k(f"s_add_u32 s50, s50, {SPARE}")
            k("v_add_u32 v26, s50, v26")
            k(f"ds_write_b32 v26, v{V}")
            k("v_lshrrev_b32 v27, 5, v2"); k("v_lshlrev_b32 v27, 4, v27"); k("v_add_u32 v27, s50, v27")
            k("s_waitcnt lgkmcnt(0)")
            RS = XR + 64
            for q in range(4): k(f"ds_read_b128 v[{RS+4*q}:{RS+4*q+3}], v27 offset:{32*q}")
            k("s_mul_i32 s49, s48, 36864"); k("s_sub_u32 s50, s47, 9"); k("s_lshl_b32 s50, s50, 11"); k("s_add_u32 s49, s49, s50")
            k("s_add_u32 s51, s49, 18432")
            k("s_waitcnt lgkmcnt(0)")
            for i in range(4):
                if i == 2:
                    k("s_cmp_eq_u32 s47, 13"); k(f"s_cbranch_scc1 {name}_vdone")
                a = accs[i]
                for r in range(16): k(f"v_mul_f32 v{a+r}, v{RS+r}, v{a+r}")
                for j in range(8): k(f"v_cvt_pk_bf16_f32 v{XR+8*i+j}, v{a+2*j}, v{a+2*j+1}")
                k(f"buffer_store_dwordx4 v[{XR+8*i}:{XR+8*i+3}], v{vSTV}, s[28:31], s49 offen offset:{i*512}")
                k(f"buffer_store_dwordx4 v[{XR+8*i+4}:{XR+8*i+7}], v{vSTV}, s[28:31], s51 offen offset:{i*512}")
            k.put(f"{name}_vdone")
        n_save = sp.n
        sp.finish(end, 36, 2, 30, 31)
        if isv == 0:
            k("s_endpgm")
            sp.n = n_save - 1
    k.put(end); k("s_endpgm")
    return k, (name, NWG, 256, 73728 + 65536 + 1024)
```

```python
from common import *
def gen_k2(name="attn_kernel", stamp=False):
    k = Kern(name); end = f"{name}_end"
    sp = Stamper(k, stamp, base=84, trace=1)
    NWG = 512
    KB = 12288; VB = KB + 13*256 + 768
    assert VB == 16384
    LDS = VB + 24*1024
    k(f"s_cmp_ge_u32 s2, {NWG}"); k(f"s_cbranch_scc1 {end}")
    k("s_load_dwordx2 s[10:11], s[0:1], 72")
    sp.start()
    k("v_lshrrev_b32 v1, 6, v0"); k("v_and_b32 v2, 63, v0")
    k("v_readfirstlane_b32 s36, v1")
    k("s_and_b32 s37, s2, 7"); k("s_lshl_b32 s37, s37, 1"); k("s_bfe_u32 s4, s2, 0x10003"); k("s_or_b32 s37, s37, s4")
    k("s_lshr_b32 s38, s2, 4")
    k("s_lshl_b32 s39, s37, 2"); k("s_sub_u32 s5, s39, 8"); k("s_add_u32 s39, s39, s36")
    k("s_mul_i32 s4, s36, 3"); k("s_add_u32 s5, s5, s4")
    k("s_mul_i32 s6, s38, 9"); k("s_lshr_b32 s6, s6, 1"); k("s_lshl_b32 s6, s6, 8")
    k("s_mul_i32 s7, s39, 73728"); k("s_add_u32 s7, s7, s6")
    k(f"s_add_u32 s6, s6, {144*256}")
    vL16, vKB, vVD, vKr, vKr2, vVr, vQm = 3, 4, 5, 6, 7, 8, 9
    Q = 10
    MP = 16
    T = 24
    FR = 32
    O = 64
    SB = 80
    k(f"v_lshlrev_b32 v{vL16}, 4, v2")
    k("v_lshrrev_b32 v24, 4, v2"); k("v_add_u32 v24, s5, v24"); k("v_max_i32 v24, 0, v24"); k("v_mul_u32_u24 v24, 73728, v24")
    k("v_and_b32 v25, 15, v2"); k(f"v_lshl_add_u32 v{vKB}, v25, 4, v24")
    k("v_lshrrev_b32 v26, 5, v2"); k("v_and_b32 v27, 31, v2")
    k("s_mul_i32 s4, s38, 288")
    k("v_mul_u32_u24 v24, 9216, v26"); k("v_lshl_add_u32 v24, v27, 4, v24"); k(f"v_add_u32 v{vVD}, s4, v24")
    k("v_lshlrev_b32 v24, 3, v27"); k("v_lshl_add_u32 v25, v26, 8, v24")
    k("s_waitcnt lgkmcnt(0)")
    srd(k, 16, 10, QK_BYTES, off=WS_QK); srd(k, 20, 10, V_BYTES, off=WS_V); srd(k, 24, 10, O_BYTES, off=WS_O)
    k("s_mul_i32 s8, s36, 3072");
    for i in range(3):
        k(f"s_add_i32 s{28+i}, s5, {i}"); k(f"s_max_i32 s{28+i}, s{28+i}, 0")
        k(f"s_mul_i32 s9, s{28+i}, 73728"); k("s_add_u32 s9, s9, s6")
        k(f"s_add_u32 m0, s8, {i*1024}")
        k(f"buffer_load_dwordx4 v{vL16}, s[16:19], s9 offen lds")
    k("s_mul_i32 s9, s36, 768"); k(f"s_add_u32 m0, s9, {KB - 1024}")
    k(f"buffer_load_dwordx4 v{vKB}, s[16:19], s6 offen offset:1024 lds")
    for i in range(3):
        k(f"buffer_load_dwordx2 v[{Q+2*i}:{Q+2*i+1}], v25, s[16:19], s7 offen offset:{512*i}")
    k("s_mov_b32 s32, 0x3ffff"); k("s_mov_b32 s33, 0x3ffff"); k("s_mov_b64 exec, s[32:33]")
    k("s_mul_i32 s8, s36, 6144"); k(f"s_add_u32 s8, s8, {VB}")
    for i in range(3):
        k(f"s_mul_i32 s9, s{28+i}, 36864")
        for u in range(2):
            k(f"s_add_u32 m0, s8, {(2*i+u)*1024}")
            if u: k("s_add_u32 s9, s9, 18432")
            k(f"buffer_load_dwordx4 v{vVD}, s[20:23], s9 offen lds")
    k("s_not_b64 exec, exec")
    for i in range(4): k(f"v_mov_b32 v{FR+i}, 0x3f803f80")
    k(f"v_add_u32 v{vVr}, s8, v{vL16}")
    for i in range(6): k(f"ds_write_b128 v{vVr}, v[{FR}:{FR+3}] offset:{i*1024}")
    k("s_mov_b64 exec, -1")
    k("s_lshl_b32 s4, s36, 10"); k(f"v_add_u32 v{vKr}, s4, v25")
    k("s_lshl_b32 s4, s36, 8"); k(f"s_add_u32 s4, s4, {KB}"); k(f"v_add_u32 v{vKr2}, s4, v24")
    k("s_lshl_b32 s4, s36, 11"); k(f"s_add_u32 s4, s4, {VB}"); k(f"v_add_u32 v{vVr}, s4, v{vL16}")
    k(f"v_lshlrev_b32 v26, 2, v26"); k(f"v_sub_u32 v{vQm}, v27, v26")
    MS = 40
    for r in range(16):
        k(f"v_cmp_le_i32 s[{MS+2*r}:{MS+2*r+1}], {8*(r>>2)+(r&3)}, v{vQm}")
    k("v_mov_b32 v24, 0xffff")
    for j in range(8):
        k(f"v_cndmask_b32 v{MP+j}, 0, v24, s[{MS+4*j}:{MS+4*j+1}]")
        k(f"v_cndmask_b32 v{MP+j}, v{MP+j}, -1, s[{MS+4*j+2}:{MS+4*j+3}]")
    k("s_bitcmp1_b32 s38, 0")
    k("s_cselect_b32 s32, 0, -1"); k("s_mov_b32 s33, -1")
    k("s_cselect_b32 s34, -1, 0"); k("s_mov_b32 s35, 0")
    k("s_mov_b32 s12, -1"); k("s_mov_b32 s13, 0")
    k("s_sub_i32 s14, 8, s39")
    k("s_waitcnt vmcnt(6)")
    k(f"v_cndmask_b32 v{Q}, 0, v{Q}, s[32:33]")
    k(f"v_cndmask_b32 v{Q+4}, 0, v{Q+4}, s[12:13]")
    k(f"v_cndmask_b32 v{Q+5}, 0, v{Q+5}, s[34:35]")
    k("s_barrier")
    sp.st()
    order = [8, 0, 1, 2, 3, 4, 5, 6, 7]
    def S(t): return SB + 16*t
    def kread(i):
        t = order[i]; f = FR + 8*(i % 4)
        k(f"ds_read_b64 v[{f}:{f+1}], v{vKr} offset:{t*1024}")
        k(f"ds_read_b64 v[{f+2}:{f+3}], v{vKr} offset:{t*1024+512}")
        k(f"ds_read_b64 v[{f+4}:{f+5}], v{vKr2} offset:{t*256}")
    for i in range(3): kread(i)
    ool = []
    work = []
    for r in range(16): work.append((2, f"v_cndmask_b32 v{S(8)+r}, v{S(0)+r}, v{S(8)+r}, s[{MS+2*r}:{MS+2*r+1}]"))
    MX = [T, T+1, T+2, T+3]
    first = [True]*4
    for i, t in enumerate(order):
        if t == 0: continue
        for j in range(8):
            c = j % 4; a = S(t) + 2*j
            if first[c]: work.append((max(i, 1)+1, f"v_max_f32 v{MX[c]}, v{a}, v{a+1}")); first[c] = False
            else: work.append((max(i, 1)+1, f"v_max3_f32 v{MX[c]}, v{a}, v{a+1}, v{MX[c]}"))
    wp = 0
    for i, t in enumerate(order):
        f = FR + 8*(i % 4)
        nlater = min(2, 8 - i) * 3
        k(f"s_waitcnt lgkmcnt({nlater})")
        if t < 8:
            ln = k.label("neg"); lb = k.label("back")
            k(f"s_cmp_gt_i32 s14, {t}"); k(f"s_cbranch_scc1 {ln}")
            ool.append((ln, lb, t))
        k(f"v_mfma_f32_32x32x16_bf16 v[{S(t)}:{S(t)+15}], v[{f}:{f+3}], v[{Q}:{Q+3}], 0")
        k(f"v_mfma_f32_32x32x8_bf16 v[{S(t)}:{S(t)+15}], v[{f+4}:{f+5}], v[{Q+4}:{Q+5}], v[{S(t)}:{S(t)+15}]")
        if t < 8: k.put(lb)
        if i + 3 < 9: kread(i + 3)
        n = 0
        while wp < len(work) and work[wp][0] <= i and n < 12:
            k(work[wp][1]); wp += 1; n += 1
    k("s_waitcnt vmcnt(0)")
    k("s_barrier")
    pv = [(1, S(1)), (2, S(2)), (3, S(3)), (4, S(4)), (5, S(5)), (6, S(6)), (7, S(7)), (8, S(8)), (0, S(0))]
    def vread(i):
        t = pv[i][0]; f = FR + 8*(i % 4)
        for u in range(2): k(f"ds_read_b128 v[{f+4*u}:{f+4*u+3}], v{vVr} offset:{(2*t+u)*1024}")
    for i in range(3): vread(i)
    while wp < len(work): k(work[wp][1]); wp += 1
    k(f"v_max_f32 v{T}, v{T}, v{T+1}"); k(f"v_max3_f32 v{T}, v{T+2}, v{T+3}, v{T}")
    k(f"v_mov_b32 v{T+1}, v{T}")
    k(f"v_permlane32_swap_b32 v{T}, v{T+1}")
    k(f"v_max_f32 v{T}, v{T}, v{T+1}")
    sp.st()
    def soft(t, half):
        out = []; b = S(t) + 8*half
        for r in range(8): out.append(f"v_sub_f32 v{b+r}, v{b+r}, v{T}")
        for r in range(8): out.append(f"v_exp_f32 v{b+r}, v{b+r}")
        for j in range(4):
            d = S(t) + 4*half + j
            out.append(f"v_cvt_pk_bf16_f32 v{d}, v{b+2*j}, v{b+2*j+1}")
        if t == 8:
            for j in range(4):
                d = S(t) + 4*half + j; e = S(0) + 4*half + j
                out.append(f"v_bfi_b32 v{e}, v{MP+4*half+j}, 0, v{d}")
                out.append(f"v_and_b32 v{d}, v{MP+4*half+j}, v{d}")
        return out
    steps = [(i, u) for i in range(9) for u in range(2)]
    for x in soft(1, 0): k(x)
    for n, (i, u) in enumerate(steps):
        t, P = pv[i]; f = FR + 8*(i % 4)
        if u == 0:
            k(f"s_waitcnt lgkmcnt({min(2, 8-i)*2})")
        nxt = steps[n+1] if n + 1 < len(steps) else None
        if nxt is not None and pv[nxt[0]][0] != 0:
            w = soft(pv[nxt[0]][0], nxt[1])
        else: w = []
        for x in w[:2]: k(x)
        C = "0" if n == 0 else f"v[{O}:{O+15}]"
        k(f"v_mfma_f32_32x32x16_bf16 v[{O}:{O+15}], v[{f+4*u}:{f+4*u+3}], v[{P+4*u}:{P+4*u+3}], {C}")
        if u == 1 and i + 3 < 9: vread(i + 3)
        for x in w[2:]: k(x)
    k("s_mul_i32 s4, s39, 36864"); k("s_lshl_b32 s5, s38, 10"); k("s_add_u32 s5, s5, s4")
    k("s_lshr_b32 s6, s38, 2"); k("s_lshl_b32 s6, s6, 9"); k("s_and_b32 s7, s38, 3"); k("s_lshl_b32 s7, s7, 2")
    k("s_add_u32 s6, s6, s7"); k("s_add_u32 s6, s6, s4"); k("s_add_u32 s6, s6, 32768")
    k(f"v_rcp_f32 v{T}, v{O+10}")
    for r in range(10): k(f"v_mul_f32 v{O+r}, v{O+r}, v{T}")
    for j in range(5): k(f"v_cvt_pk_bf16_f32 v{FR+j}, v{O+2*j}, v{O+2*j+1}")
    k(f"buffer_store_dwordx4 v[{FR}:{FR+3}], v{vL16}, s[24:27], s5 offen")
    k("s_mov_b64 exec, s[12:13]")
    k(f"buffer_store_dword v{FR+4}, v{vL16}, s[24:27], s6 offen")
    k("s_mov_b64 exec, -1")
    sp.finish(end, 36, 2, 30, 31)
    k.put(end); k("s_endpgm")
    for (ln, lb, t) in ool:
        k.put(ln)
        for r in range(16): k(f"v_mov_b32 v{S(t)+r}, {fx(-1e30)}")
        k(f"s_branch {lb}")
    return k, (name, NWG, 256, LDS)
```

```python
from common import *
def gen_k3(name="proj_kernel", stamp=False, DEPTH=6, smod=""):
    k = Kern(name); end = f"{name}_end"
    sp = Stamper(k, stamp, trace=2)
    NWG = 144
    XB = 73728; LDS = XB + 16384
    k(f"s_cmp_ge_u32 s2, {NWG}"); k(f"s_cbranch_scc1 {end}")
    k("s_load_dwordx2 s[4:5], s[0:1], 0")
    k("s_load_dwordx2 s[6:7], s[0:1], 16")
    k("s_load_dwordx2 s[10:11], s[0:1], 72")
    sp.start()
    k("v_lshrrev_b32 v1, 6, v0"); k("v_and_b32 v2, 63, v0")
    k("v_readfirstlane_b32 s36, v1")
    k("s_and_b32 s37, s2, 7"); k("s_lshl_b32 s37, s37, 1"); k("s_bfe_u32 s8, s2, 0x10003"); k("s_or_b32 s37, s37, s8")
    k("s_lshr_b32 s38, s2, 4")
    k("s_lshl_b32 s39, s37, 2"); k("s_add_u32 s39, s39, s36")
    k("s_mul_i32 s40, s39, 36864")
    k("s_lshl_b32 s41, s38, 7")
    vL16, vW1, vW2, vDX0, vDX1, vA, vXR = 3, 4, 5, 6, 7, 8, 9
    T = 16
    ACC = [32, 48]; XV = 64
    k(f"v_lshlrev_b32 v{vL16}, 4, v2")
    k("v_and_b32 v16, 3, v2"); k("v_lshlrev_b32 v16, 4, v16"); k("v_lshrrev_b32 v18, 5, v2"); k("v_lshl_add_u32 v16, v18, 6, v16")
    k("v_bfe_u32 v17, v2, 2, 3")
    k(f"v_mul_u32_u24 v{vW1}, 1152, v17"); k(f"v_add_u32 v{vW1}, v{vW1}, v16")
    k("v_lshrrev_b32 v19, 2, v17"); k("v_mul_u32_u24 v19, 72, v19"); k("v_bfe_u32 v20, v17, 1, 1"); k("v_mul_u32_u24 v20, 18, v20")
    k("v_and_b32 v21, 1, v17"); k("v_add3_u32 v19, v19, v20, v21"); k("v_add_u32 v19, 16, v19")
    k(f"v_mul_u32_u24 v{vW2}, 1152, v19"); k(f"v_add_u32 v{vW2}, v{vW2}, v16")
    k("v_lshrrev_b32 v16, 3, v2"); k("v_and_b32 v17, 7, v2"); k("v_lshrrev_b32 v19, 1, v16"); k("v_xor_b32 v17, v17, v19")
    k("v_mul_u32_u24 v16, 1152, v16")
    k(f"v_lshl_add_u32 v{vDX0}, v17, 4, v16"); k("v_xor_b32 v17, 4, v17"); k(f"v_lshl_add_u32 v{vDX1}, v17, 4, v16")
    k("v_bfe_u32 v16, v2, 2, 2"); k("v_lshlrev_b32 v16, 6, v16")
    k("v_bfe_u32 v17, v2, 4, 1"); k("v_lshl_add_u32 v16, v17, 5, v16")
    k("v_and_b32 v17, 3, v2"); k("v_lshl_add_u32 v16, v17, 3, v16")
    k(f"v_lshl_add_u32 v{vA}, v18, 8, v16")
    k("v_and_b32 v16, 31, v2"); k("v_lshlrev_b32 v17, 7, v16"); k("v_lshl_add_u32 v17, v18, 3, v17")
    k("s_lshl_b32 s8, s36, 12"); k(f"s_add_u32 s8, s8, {XB}"); k("v_add_u32 v17, s8, v17")
    k("v_bfe_u32 v19, v16, 1, 3"); k(f"v_lshl_add_u32 v{vXR}, v19, 4, v17")
    k("s_waitcnt lgkmcnt(0)")
    srd(k, 16, 4, S*D*2); srd(k, 20, 6, D*D*2)
    srd(k, 24, 10, O_BYTES, off=WS_O); srd(k, 28, 10, H_BYTES, off=WS_H); srd(k, 32, 10, ST_BYTES, off=WS_ST)
    vq = VQ(k)
    k("s_lshr_b32 s8, s36, 1"); k("s_mul_i32 s8, s8, 18"); k("s_and_b32 s9, s36, 1"); k("s_lshl_b32 s42, s9, 3"); k("s_add_u32 s8, s8, s42")
    k("s_mul_i32 s42, s8, 1152"); k("s_add_u32 s42, s42, s41")
    k("s_lshr_b32 s8, s36, 1"); k("s_mul_i32 s8, s8, 144"); k("s_mul_i32 s9, s9, 36"); k("s_add_u32 s8, s8, s9")
    k("s_mul_i32 s43, s8, 1152"); k("s_add_u32 s43, s43, s41")
    k("s_lshl_b32 s44, s36, 10")
    GR = [(0, 6), (6, 12), (12, 18)]
    def wdma(i):
        k(f"s_add_u32 m0, s44, {i*4096}")
        if i < 16:
            k(f"s_add_u32 s45, s42, {36*i*1152}")
            vq(f"w{i//6}", f"buffer_load_dwordx4 v{vW1}, s[20:23], s45 offen lds")
        else:
            k(f"s_add_u32 s45, s43, {288*(i-16)*1152}")
            vq(f"w{i//6}", f"buffer_load_dwordx4 v{vW2}, s[20:23], s45 offen lds")
    def oload(s):
        if s % 4 == 0: k(f"s_add_u32 s46, s40, {s*1024}")
        vq(f"o{s}", f"buffer_load_dwordx4 a[{32+4*s}:{32+4*s+3}], v{vL16}, s[24:27], s46 offen offset:{(s%4)*1024}")
    for g in range(3):
        for i in range(6*g, 6*g+6): wdma(i)
        for s in range(12*g, 12*g+12): oload(s)
    k("s_lshl_b32 s8, s36, 12"); k(f"s_add_u32 s8, s8, {XB}"); k("s_add_u32 s9, s40, s41")
    for rg in range(4):
        k(f"s_add_u32 m0, s8, {rg*1024}"); k(f"s_add_u32 s45, s9, {rg*8*1152}")
        vq("x", f"buffer_load_dwordx4 v{vDX0 if rg % 2 == 0 else vDX1}, s[16:19], s45 offen lds")
    mf = [(s, dt) for s in range(36) for dt in range(2)]
    N = len(mf); NB = 8
    lq = []; st_ = dict(rp=0, readable=0)
    def issue_reads(g, maxn):
        n = 0
        while st_["rp"] < N and st_["rp"] <= g + DEPTH and mf[st_["rp"]][0] < st_["readable"] and n < maxn:
            rp = st_["rp"]; s, dt = mf[rp]; fb = 4*(rp % NB)
            for e in range(2):
                off = (2*s+e)*1024 + dt*512
                va = vA if off < 65536 else 10
                k(f"ds_read_b64_tr_b16 a[{fb+2*e}:{fb+2*e+1}], v{va} offset:{off % 65536}"); lq.append(rp)
            st_["rp"] += 1; n += 1
    k(f"v_add_u32 v10, 0x10000, v{vA}")
    def bar(g):
        vq.wait(f"w{g}"); k("s_barrier"); st_["readable"] = 12*(g+1)
    bar(0); sp.st()
    issue_reads(-1, DEPTH)
    for g in range(N):
        s, dt = mf[g]
        w = ""
        if g in lq:
            idx = max(i for i, t in enumerate(lq) if t == g)
            w = f"lgkmcnt({len(lq)-1-idx})"; del lq[:idx+1]
        if dt == 0: w = f"vmcnt({vq.n(f'o{s}')}) " + w
        if w: k("s_waitcnt " + w)
        fb = 4*(g % NB); a = ACC[dt]
        C = "0" if s == 0 else f"v[{a}:{a+15}]"
        k(f"v_mfma_f32_32x32x16_bf16 v[{a}:{a+15}], a[{fb}:{fb+3}], a[{32+4*s}:{32+4*s+3}], {C}")
        if g == 24 - 5: bar(1)
        if g == 48 - 5: bar(2)
        issue_reads(g, 2)
        if g == N - 3:
            vq.wait("x")
            for c in range(8):
                k(f"v_xor_b32 v{T+c}, {c*16}, v{vXR}")
            for c in range(8):
                k(f"ds_read_b64 v[{XV+2*c}:{XV+2*c+1}], v{T+c}"); lq.append(-1)
    sp.st()
    k("s_waitcnt lgkmcnt(0)")
    k("s_lshl_b32 s8, s38, 12"); k("s_add_u32 s8, s8, s40")
    k(f"v_mov_b32 v{T}, 0"); k(f"v_mov_b32 v{T+1}, 0"); k(f"v_mov_b32 v{T+2}, 0"); k(f"v_mov_b32 v{T+3}, 0")
    for dt in range(2):
        a = ACC[dt]
        for q in range(4):
            c = 4*dt + q
            for i in range(2):
                x = XV + 2*c + i; r = a + 4*q + 2*i
                k(f"v_lshlrev_b32 v{T+4}, 16, v{x}"); k(f"v_and_b32 v{T+5}, 0xffff0000, v{x}")
                k(f"v_add_f32 v{r}, v{r}, v{T+4}"); k(f"v_add_f32 v{r+1}, v{r+1}, v{T+5}")
                k(f"v_cvt_pk_bf16_f32 v{x}, v{r}, v{r+1}")
                k(f"v_add_f32 v{T}, v{T}, v{r}"); k(f"v_add_f32 v{T+2}, v{T+2}, v{r+1}")
                k(f"v_fmac_f32 v{T+1}, v{r}, v{r}"); k(f"v_fmac_f32 v{T+3}, v{r+1}, v{r+1}")
            if q % 2 == 1:
                u = q // 2; x0 = XV + 8*dt + 4*u
                k(f"buffer_store_dwordx4 v[{x0}:{x0+3}], v{vL16}, s[28:31], s8 offen offset:{(2*dt+u)*1024} {smod}")
    k(f"v_add_f32 v{T}, v{T}, v{T+2}"); k(f"v_add_f32 v{T+1}, v{T+1}, v{T+3}")
    k(f"v_mov_b32 v{T+2}, v{T}"); k(f"v_mov_b32 v{T+3}, v{T+1}")
    k(f"v_permlane32_swap_b32 v{T}, v{T+2}"); k(f"v_permlane32_swap_b32 v{T+1}, v{T+3}")
    k(f"v_add_f32 v{T}, v{T}, v{T+2}"); k(f"v_add_f32 v{T+1}, v{T+1}, v{T+3}")
    k("s_mul_i32 s8, s39, 2304"); k("s_lshl_b32 s9, s38, 8"); k("s_add_u32 s8, s8, s9")
    k(f"v_lshlrev_b32 v{T+4}, 3, v2")
    k("s_mov_b32 exec_hi, 0")
    k(f"buffer_store_dwordx2 v[{T}:{T+1}], v{T+4}, s[32:35], s8 offen {smod}")
    k("s_mov_b64 exec, -1")
    sp.finish(end, 36, 2, 30, 31)
    k.put(end); k("s_endpgm")
    return k, (name, NWG, 256, LDS)
```

```python
from common import *
CH = 36864

def gen_k4(name="ffn_kernel", DEPTH=7, BAR_AHEAD=4, stamp=False, smod="", dup=False):
    k = Kern(name); end = f"{name}_end"
    sp = Stamper(k, stamp, trace=3)
    k(f"s_cmp_ge_u32 s2, 256"); k(f"s_cbranch_scc1 {end}")
    k("s_load_dwordx4 s[4:7], s[0:1], 32")
    k("s_load_dwordx2 s[8:9], s[0:1], 48")
    k("s_load_dwordx2 s[10:11], s[0:1], 72")
    sp.start()
    k("v_lshrrev_b32 v1, 6, v0"); k("v_and_b32 v2, 63, v0")
    k("v_readfirstlane_b32 s36, v1")
    k("s_and_b32 s37, s2, 7"); k("s_lshl_b32 s37, s37, 1"); k("s_bfe_u32 s42, s2, 0x10003"); k("s_or_b32 s37, s37, s42")
    k("s_lshr_b32 s38, s2, 4")
    k("s_mul_i32 s39, s37, 288"); k("s_lshl_b32 s43, s42, 5"); k("s_add_u32 s44, s39, s43")
    k("s_xor_b32 s43, s42, 1"); k("s_lshl_b32 s43, s43, 8"); k("s_add_u32 s45, s39, s43")
    k("s_mul_i32 s46, s36, 73728"); k("s_lshl_b32 s43, s44, 1"); k("s_add_u32 s46, s46, s43")
    k("s_mul_i32 s47, s36, 147456"); k("s_lshl_b32 s43, s45, 1"); k("s_add_u32 s47, s47, s43")
    k("s_lshl_b32 s43, s36, 3"); k("s_add_u32 s48, s44, s43"); k("s_mul_i32 s48, s48, 1152")
    k("s_add_u32 s49, s45, s43"); k("s_mul_i32 s49, s49, 1152")
    k("s_lshl_b32 s41, s36, 10")
    vDP, vDL, vDD, vA2, vST, vRS, vMB = 3, 4, 5, 6, 7, 8, 9
    vRd = [10, 11]
    T = 16
    k("v_and_b32 v14, 3, v2"); k("v_lshlrev_b32 v14, 4, v14")
    k("v_bfe_u32 v15, v2, 2, 3")
    k("v_lshrrev_b32 v1, 5, v2"); k("v_lshlrev_b32 v1, 6, v1")
    k("v_add_u32 v1, v1, v14")
    k(f"v_mul_u32_u24 v{vDP}, 9216, v15"); k(f"v_add_u32 v{vDP}, v{vDP}, v1")
    k(f"v_mul_u32_u24 v{vDD}, 1152, v15"); k(f"v_add_u32 v{vDD}, v{vDD}, v1")
    k("v_lshrrev_b32 v15, 2, v2"); k(f"v_mul_u32_u24 v{vDL}, 9216, v15"); k(f"v_add_u32 v{vDL}, v{vDL}, v14")
    k("v_bfe_u32 v14, v2, 2, 2"); k("v_lshlrev_b32 v14, 6, v14")
    k("v_bfe_u32 v15, v2, 4, 1"); k("v_lshlrev_b32 v15, 5, v15"); k("v_add_u32 v14, v14, v15")
    k("v_and_b32 v15, 3, v2"); k("v_lshlrev_b32 v15, 3, v15"); k("v_add_u32 v14, v14, v15")
    k("v_lshrrev_b32 v15, 5, v2")
    k(f"v_lshl_add_u32 v{vA2}, v15, 8, v14")
    k(f"v_lshlrev_b32 v{vST}, 4, v2")
    k("v_and_b32 v14, 31, v2"); k("v_lshlrev_b32 v14, 3, v14")
    k("s_lshl_b32 s50, s38, 2"); k("s_add_u32 s50, s50, s36")
    k("s_mul_i32 s51, s50, 36864")
    k("s_mul_i32 s52, s37, 2359296"); k("s_add_u32 s52, s52, s51")
    k("s_mul_i32 s54, s50, 2304")
    k("s_waitcnt lgkmcnt(0)")
    srd(k, 16, 4, D*F*2); srd(k, 20, 6, D*F*2); srd(k, 24, 8, D*F*2)
    srd(k, 28, 10, H_BYTES, off=WS_H); srd(k, 32, 10, PART_BYTES*2, off=WS_PART); srd(k, 12, 10, ST_BYTES, off=WS_ST)
    NB = 8
    G0, G1, U0, U1 = 32, 48, 64, 80
    X = 96; STG = 240; HB = 32
    vq = VQ(k)
    chunks = [("L", "g"), ("L", "u")]
    for p in range(4):
        chunks += [("P", "g", p, 0), ("P", "g", p, 1), ("P", "u", p, 0), ("P", "u", p, 1)]
    chunks += [("D", dp) for dp in range(9)]
    NC = len(chunks)
    def dma_instrs(c):
        ch = chunks[c]; slot = c % 4; out = []
        for j in range(9):
            if ch[0] == "L":
                so = f"s_add_u32 s53, s47, {64*j*9216}"; srdn = 16 if ch[1] == "g" else 20; vo = vDL
            elif ch[0] == "P":
                so = f"s_add_u32 s53, s46, {(288*ch[3] + 32*j)*9216 + 128*ch[2]}"; srdn = 16 if ch[1] == "g" else 20; vo = vDP
            else:
                so = f"s_add_u32 s53, s48, {32*j*1152 + 128*ch[1]}" if j < 8 else f"s_add_u32 s53, s49, {128*ch[1]}"; srdn = 24; vo = vDD
            out.append([f"s_add_u32 m0, s41, {slot*CH + j*4096}", so, ("vm", f"dma{c}", f"buffer_load_dwordx4 v{vo}, s[{srdn}:{srdn+3}], s53 offen lds")])
        return out
    for i in range(9):
        vq("st", f"buffer_load_dwordx2 v[{G0+2*i}:{G0+2*i+1}], v14, s[12:15], s54 offen offset:{256*i}")
    vq.emit(dma_instrs(0))
    for s in range(36):
        if s % 4 == 0: k(f"s_add_u32 s55, s51, {s*1024}")
        vq(f"h{s}", f"buffer_load_dwordx4 v[{X+4*s}:{X+4*s+3}], v{vST}, s[28:31], s55 offen offset:{(s%4)*1024}")
    vq.wait("st")
    for i in range(1, 9):
        k(f"v_add_f32 v{G0}, v{G0}, v{G0+2*i}"); k(f"v_add_f32 v{G0+1}, v{G0+1}, v{G0+2*i+1}")
    k(f"v_mul_f32 v{G0}, {fx(1.0/576)}, v{G0}")
    k(f"v_mul_f32 v{G0+2}, v{G0}, v{G0}")
    k(f"v_fma_f32 v{G0+1}, v{G0+1}, s56, -v{G0+2}".replace("s56", "s56"))
    k.items.insert(len(k.items)-1, Ins(f"s_mov_b32 s56, {fx(1.0/576)}"))
    k(f"v_max_f32 v{G0+1}, 0, v{G0+1}")
    k(f"v_add_f32 v{G0+1}, {fx(1e-5)}, v{G0+1}")
    k(f"v_rsq_f32 v{vRS}, v{G0+1}")
    k(f"v_mul_f32 v{vMB}, v{G0}, v{vRS}")
    vq.emit(dma_instrs(1))
    sp.st()
    def norm(s):
        out = [("wait", f"h{s}")]
        for i in range(4):
            r = X + 4*s + i; a = T + 2*i + 8*(s & 1)
            out += [f"v_lshlrev_b32 v{a}, 16, v{r}", f"v_and_b32 v{a+1}, 0xffff0000, v{r}"]
        for i in range(4):
            a = T + 2*i + 8*(s & 1)
            out += [f"v_fma_f32 v{a}, v{a}, v{vRS}, -v{vMB}", f"v_fma_f32 v{a+1}, v{a+1}, v{vRS}, -v{vMB}"]
        for i in range(4):
            r = X + 4*s + i; a = T + 2*i + 8*(s & 1)
            out += [f"v_cvt_pk_bf16_f32 v{r}, v{a}, v{a+1}"]
        return out
    def emit(it):
        if isinstance(it, tuple) and it[0] == "wait": vq.wait(it[1])
        elif isinstance(it, list):
            for x in it: emit(x)
        else: vq.emit(it)
    mf = []
    for c, ch in enumerate(chunks):
        if ch[0] == "L":
            acc = G1 if ch[1] == "g" else U1
            for s in range(36):
                mf.append(dict(c=c, o=[s*1024, s*1024+512], B=f"v[{X+4*s}:{X+4*s+3}]", acc=acc, first=(s == 0)))
        elif ch[0] == "P":
            for ft in range(2):
                acc = (G0 if ch[1] == "g" else U0) + 16*ft
                for s in range(18):
                    sg = 18*ch[3] + s
                    mf.append(dict(c=c, o=[s*2048+ft*512, s*2048+1024+ft*512], B=f"v[{X+4*sg}:{X+4*sg+3}]", acc=acc, first=(sg == 0)))
        else:
            for dt in range(2):
                acc = G0 if dt == 0 else U0
                n = 0
                for t in [8, 0, 1, 2, 3, 4, 5, 6, 7]:
                    for u in range(2):
                        blk = 4*t + 2*u
                        mf.append(dict(c=c, o=[blk*1024+dt*512, (blk+1)*1024+dt*512], B=f"a[{HB+8*t+4*u}:{HB+8*t+4*u+3}]", acc=acc, first=(n == 0)))
                        n += 1
    N = len(mf)
    fill = [[] for _ in range(N + 1)]
    def spread(items, g0, g1):
        n = len(items); w = g1 - g0
        for i, it in enumerate(items): fill[g0 + (i * w) // n].append(it)
    def hcalc(g, u, t):
        out = []
        for i in range(8):
            out.append(f"v_mul_f32 v{u+2*i}, v{u+2*i}, v{g+2*i}")
            out.append(f"v_mul_f32 v{u+2*i+1}, v{u+2*i+1}, v{g+2*i+1}")
            out.append(f"v_cvt_pk_bf16_f32 v{T+(i&7)}, v{u+2*i}, v{u+2*i+1}")
            out.append(f"v_accvgpr_write_b32 a{HB+8*t+i}, v{T+(i&7)}")
        return out
    def ostore(acc, dtile, sb):
        out = []
        for u in range(2):
            for i in range(4):
                out.append(f"v_cvt_pk_bf16_f32 v{sb+4*u+i}, v{acc+8*u+2*i}, v{acc+8*u+2*i+1}")
            off = (dtile*2 + u)*1024
            out.append([f"s_add_u32 s57, s52, {off}", ("vm", "ost", f"buffer_store_dwordx4 v[{sb+4*u}:{sb+4*u+3}], v{vST}, s[32:35], s57 offen {smod}".strip())])
            if dup: out.append([f"s_add_u32 s57, s52, {off+PART_BYTES}", ("vm", "ost", f"buffer_store_dwordx4 v[{sb+4*u}:{sb+4*u+3}], v{vST}, s[32:35], s57 offen {smod}".strip())])
        return out
    W0 = 4
    for s in range(1, 36): fill[s-1] += norm(s)
    spread(hcalc(G1, U1, 8), 72 + W0, 72 + 17)
    for p in range(4):
        b = 36*(2 + 4*p)
        spread(hcalc(G0, U0, 2*p), b + 108 + 18 + W0, b + 144)
        spread(hcalc(G1, U1, 2*p+1), b + 144 + W0, b + 144 + (13 if p == 3 else 17))
    for dp in range(9):
        b = 36*(18 + dp)
        spread(ostore(G0, 2*dp, STG), b + 18 + W0, b + 34)
        if dp < 8: spread(ostore(U0, 2*dp+1, STG+8), b + 36 + W0, b + 36 + 16)
    bar_at = {}
    for c in range(1, NC): bar_at[36*c - BAR_AHEAD - 1] = c
    spread(dma_instrs(2), 12, 21); spread(dma_instrs(3), 21, 30)
    for c in range(1, NC - 3):
        g0 = 36*c - BAR_AHEAD
        spread(dma_instrs(c + 3), g0, g0 + 27)
    lq = []; st_ = dict(rp=0, readable=0)
    def barrier(c):
        vq.wait(f"dma{c}", " lgkmcnt(0)")
        lq.clear()
        k("s_barrier")
        k(f"v_add_u32 v{vRd[c%2]}, {(c%4)*CH}, v{vA2}")
        st_["readable"] = c + 1
        if c in (1, 2, 10, 18, 23): sp.st()
    def issue_reads(g, maxn):
        n = 0
        while st_["rp"] < N and st_["rp"] <= g + DEPTH and mf[st_["rp"]]["c"] < st_["readable"] and n < maxn:
            rp = st_["rp"]; m = mf[rp]; fb = 4*(rp % NB)
            for e in range(2):
                k(f"ds_read_b64_tr_b16 a[{fb+2*e}:{fb+2*e+1}], v{vRd[m['c']%2]} offset:{m['o'][e]}")
                lq.append(rp)
            st_["rp"] += 1; n += 1
    barrier(0)
    issue_reads(-1, DEPTH)
    emit(norm(0))
    for g in range(N):
        m = mf[g]
        if g in lq:
            idx = max(i for i, t in enumerate(lq) if t == g)
            k(f"s_waitcnt lgkmcnt({len(lq) - 1 - idx})")
            del lq[:idx+1]
        fb = 4*(g % NB); acc = m["acc"]
        C = "0" if m["first"] else f"v[{acc}:{acc+15}]"
        k(f"v_mfma_f32_32x32x16_bf16 v[{acc}:{acc+15}], a[{fb}:{fb+3}], {m['B']}, {C}")
        if g in bar_at: barrier(bar_at[g])
        issue_reads(g, 2)
        for it in fill[g]: emit(it)
    emit(ostore(U0, 17, STG+8))
    sp.finish(end, 36, 2, 14, 15)
    k.put(end)
    k("s_endpgm")
    return k, (name, 256, 256, 4*CH)

def gen_k5(name="red_kernel", stamp=False):
    k = Kern(name); end = f"{name}_end"
    sp_ = Stamper(k, stamp, trace=4)
    k(f"s_cmp_ge_u32 s2, 576"); k(f"s_cbranch_scc1 {end}")
    k("s_load_dwordx2 s[4:5], s[0:1], 56")
    k("s_load_dwordx2 s[10:11], s[0:1], 72")
    sp_.start()
    k("v_lshrrev_b32 v1, 6, v0"); k("v_and_b32 v2, 63, v0")
    k("v_readfirstlane_b32 s36, v1")
    k("s_lshl_b32 s37, s2, 2"); k("s_add_u32 s37, s37, s36")
    k("s_and_b32 s38, s37, 1"); k("s_lshr_b32 s39, s37, 1")
    k(f"s_mul_hi_u32 s40, s39, {(2**32 + 17)//18}")
    k("s_mul_i32 s41, s40, 18"); k("s_sub_u32 s41, s39, s41")
    k("s_mul_i32 s42, s40, 36864"); k("s_lshl_b32 s41, s41, 6"); k("s_add_u32 s42, s42, s41"); k("s_lshl_b32 s38, s38, 5"); k("s_add_u32 s42, s42, s38")
    k("v_and_b32 v3, 31, v2"); k("v_mul_u32_u24 v3, 1152, v3"); k("v_lshrrev_b32 v4, 5, v2"); k("v_lshl_add_u32 v3, v4, 4, v3")
    k("v_lshlrev_b32 v4, 4, v2")
    k("s_lshl_b32 s43, s37, 10")
    k("s_waitcnt lgkmcnt(0)")
    srd(k, 16, 4, S*D*2)
    srd(k, 28, 10, H_BYTES, off=WS_H)
    srd(k, 32, 10, PART_BYTES, off=WS_PART)
    P = 16
    k("buffer_load_dwordx4 v[80:83], v4, s[28:31], s43 offen")
    for sp in range(16):
        k(f"buffer_load_dwordx4 v[{P+4*sp}:{P+4*sp+3}], v4, s[32:35], s43 offen")
        if sp < 15: k(f"s_add_u32 s43, s43, 2359296")
    k("s_mov_b32 s55, 0x00003f80"); k("s_mov_b32 s56, 0x3f800000")
    A = 8
    k("s_waitcnt vmcnt(16)")
    for i in range(4):
        k(f"v_lshlrev_b32 v{A+2*i}, 16, v{80+i}"); k(f"v_and_b32 v{A+2*i+1}, 0xffff0000, v{80+i}")
    for sp in range(16):
        k(f"s_waitcnt vmcnt({15-sp})")
        for i in range(4):
            r = P + 4*sp + i
            k(f"v_dot2c_f32_bf16 v{A+2*i}, s55, v{r}"); k(f"v_dot2c_f32_bf16 v{A+2*i+1}, s56, v{r}")
    for i in range(4):
        k(f"v_cvt_pk_bf16_f32 v{84+i}, v{A+2*i}, v{A+2*i+1}")
    for i in range(2):
        k(f"v_permlane32_swap_b32 v{84+i}, v{86+i}")
    k("buffer_store_dwordx4 v[84:87], v3, s[16:19], s42 offen")
    sp_.finish(end, 36, 2, 5, 6)
    k.put(end); k("s_endpgm")
    return k, (name, 576, 256, 0)
```

```python
import sys
from k1 import *
from k2 import *
from k3 import *
from k4 import *
NAME = "sequential_preLN__sliding_block__glu_gated_bilinear__prompt"
ref = open(f"cdna_kernels/{NAME}.s.ref").read().split("\n")
hdr = "\n".join(l for l in ref if l.startswith(";") and "@launch" not in l)
def build(fn, stamp, **kw):
    ks = [gen_k1(stamp=stamp), gen_k2(stamp=stamp), gen_k3(stamp=stamp), gen_k4(stamp=stamp), gen_k5(stamp=stamp)]
    open(fn, "w").write(emit_file([k for k, l in ks], [l for k, l in ks], header=hdr))
if __name__ == "__main__":
    build("all_t.s", True)
    build("all.s", False)
```

```python
import sys
from mkall import *
def bv(fn, smod4="", smod3="", stamp=False, **kw):
    ks = [gen_k1(stamp=stamp), gen_k2(stamp=stamp), gen_k3(stamp=stamp, smod=smod3), gen_k4(stamp=stamp, smod=smod4, **kw), gen_k5(stamp=stamp)]
    open(fn, "w").write(emit_file([k for k, l in ks], [l for k, l in ks], header=hdr))
bv("v_plain.s")
bv("v_sc1.s", smod4="sc1")
bv("v_dup.s", smod4="sc1", dup=True)
```

```python
from asmlib import *
import struct
def f2u(x): return struct.unpack("<I", struct.pack("<f", x))[0]
def fx(x): return hex(f2u(x))
D = 576; F = 4608; S = 2048
WS_QK = 0x000000; QK_BYTES = 64 * 73728
WS_V = 0x500000; V_BYTES = 64 * 36864
WS_O = 0x800000; O_BYTES = 64 * 36864
WS_H = 0xB00000; H_BYTES = 64 * 36864
WS_TRACE = 0x8000000
WS_PART = 0x1000000; PART_BYTES = 16 * 64 * 36864

class Stamper:
    def __init__(self, k, on, base=72, nwg=4, trace=None):
        self.trace = trace; self.k = k; self.on = on; self.n = 0; self.base = base; self.nwg = nwg
    def start(self):
        if self.on:
            b = self.base
            self.k(f"s_load_dwordx2 s[{b-12}:{b-11}], s[0:1], 64")
            self.k(f"s_memrealtime s[{b-10}:{b-9}]")
            self.st()
    def st(self):
        if self.on:
            b = self.base
            self.k(f"s_memtime s[{b+2*self.n}:{b+1+2*self.n}]"); self.n += 1
    def finish(self, end, swave, vlane, vt0, vt1, wave=0):
        if not self.on: return
        k = self.k; b = self.base
        self.st()
        k("s_waitcnt vmcnt(0)")
        self.st()
        k(f"s_memrealtime s[{b-8}:{b-7}]"); k("s_waitcnt lgkmcnt(0)"); k(f"s_sub_u32 s{b-8}, s{b-8}, s{b-10}")
        k(f"s_cmp_lg_u32 s{swave}, {wave}"); k(f"s_cbranch_scc1 {end}")
        if self.trace is not None:
            srd(k, b-4, 10, 0x10000, off=WS_TRACE + self.trace*0x10000)
            k("s_mov_b64 exec, 1")
            k(f"s_lshl_b32 s{b-7}, s2, 4"); k(f"v_mov_b32 v{vt1}, s{b-7}")
            k(f"v_mov_b32 v{vt0}, s{b-10}"); k(f"buffer_store_dword v{vt0}, v{vt1}, s[{b-4}:{b-1}], 0 offen")
            k(f"v_mov_b32 v{vt0}, s{b-8}"); k(f"buffer_store_dword v{vt0}, v{vt1}, s[{b-4}:{b-1}], 0 offen offset:4")
            k(f"s_getreg_b32 s{b-7}, hwreg(HW_REG_HW_ID)"); k(f"v_mov_b32 v{vt0}, s{b-7}"); k(f"buffer_store_dword v{vt0}, v{vt1}, s[{b-4}:{b-1}], 0 offen offset:8")
            k(f"s_getreg_b32 s{b-7}, hwreg(HW_REG_XCC_ID)"); k(f"v_mov_b32 v{vt0}, s{b-7}"); k(f"buffer_store_dword v{vt0}, v{vt1}, s[{b-4}:{b-1}], 0 offen offset:12")
        k(f"s_cmp_ge_u32 s2, {self.nwg}"); k(f"s_cbranch_scc1 {end}")
        srd(k, b-4, b-12, 256)
        k("s_mov_b64 exec, 1")
        k(f"s_lshl_b32 s{b-7}, s2, 6"); k(f"v_mov_b32 v{vt1}, s{b-7}")
        k(f"v_mov_b32 v{vt0}, s{b-8}")
        k(f"buffer_store_dword v{vt0}, v{vt1}, s[{b-4}:{b-1}], 0 offen")
        for i in range(1, self.n):
            k(f"s_sub_u32 s{b-8}, s{b+2*i}, s{b}"); k(f"v_mov_b32 v{vt0}, s{b-8}")
            k(f"buffer_store_dword v{vt0}, v{vt1}, s[{b-4}:{b-1}], 0 offen offset:{4*i}")

class VQ:
    def __init__(self, k): self.k = k; self.q = []
    def __call__(self, tag, text): self.k(text); self.q.append(tag)
    def n(self, tag):
        idx = max(i for i, t in enumerate(self.q) if t == tag)
        return min(63, len(self.q) - 1 - idx)
    def wait(self, tag, extra=""):
        self.k(f"s_waitcnt vmcnt({self.n(tag)}){extra}")
    def emit(self, it):
        if isinstance(it, tuple): self(it[1], it[2])
        elif isinstance(it, list):
            for x in it: self.emit(x)
        else: self.k(it)
WS_ST = 0xE00000; ST_BYTES = 64 * 9 * 256
WS_FLAG = 0xF00000
WS_HX = 0x1000000
WS_PT = 0x2400000
WS_BYTES = 268435456

WS_TL = 0x9000000
class TL:
    def __init__(self, k, on, lo, pp, kidx):
        self.k = k; self.on = on; self.lo = lo; self.pp = pp; self.n = 0; self.pend = False; self.kidx = kidx; self.names = []
    def start(self):
        if self.on:
            self.k(f"s_memrealtime s[{self.pp}:{self.pp+1}]"); self.pend = True; self.names.append("rt0")
    def flush(self):
        if self.on and self.pend:
            self.k(f"s_mov_b32 s{self.lo+self.n}, s{self.pp}"); self.n += 1; self.pend = False
    def mark(self, name, drained=False):
        if not self.on: return
        if self.pend and not drained: self.k("s_waitcnt lgkmcnt(0)")
        self.flush()
        self.k(f"s_memtime s[{self.pp}:{self.pp+1}]"); self.pend = True; self.names.append(name)
    def finish(self, swave, sws, vt0, vt1, t0):
        if not self.on: return
        k = self.k
        self.mark("end")
        k("s_waitcnt vmcnt(0)")
        self.mark("drain")
        k("s_waitcnt lgkmcnt(0)"); self.flush()
        k(f"s_memrealtime s[{self.pp}:{self.pp+1}]"); self.pend = True; self.names.append("rt1")
        k("s_waitcnt lgkmcnt(0)"); self.flush()
        srd(k, t0, sws, 0x40000, off=WS_TL + self.kidx*0x40000)
        k("s_mov_b64 exec, 1")
        k(f"s_lshl_b32 s{t0+4}, s2, 2"); k(f"s_add_u32 s{t0+4}, s{t0+4}, s{swave}"); k(f"s_lshl_b32 s{t0+4}, s{t0+4}, 8")
        for i in range(self.n):
            k(f"v_mov_b32 v{vt0}, s{self.lo+i}")
            k(f"buffer_store_dword v{vt0}, off, s[{t0}:{t0+3}], s{t0+4} offset:{4*i}")
        k(f"s_getreg_b32 s{self.pp}, hwreg(HW_REG_XCC_ID)"); k(f"v_mov_b32 v{vt0}, s{self.pp}")
        k(f"buffer_store_dword v{vt0}, off, s[{t0}:{t0+3}], s{t0+4} offset:252")
        import json
        json.dump(self.names, open(f"tl_names_{self.kidx}.json", "w"))

WS_CS = 0xF10000; CS_BYTES = 4608*8
def colsum_code(k, wg0, end, lds_off=0):
    k("s_load_dwordx4 s[4:7], s[0:1], 32")
    k("s_load_dwordx2 s[10:11], s[0:1], 72")
    k("v_lshrrev_b32 v1, 6, v0"); k("v_and_b32 v2, 63, v0")
    k("v_readfirstlane_b32 s36, v1")
    k(f"s_sub_u32 s37, s2, {wg0}")
    k("v_lshrrev_b32 v3, 3, v2"); k("v_mul_u32_u24 v3, 9216, v3"); k("v_and_b32 v4, 7, v2"); k("v_lshl_add_u32 v3, v4, 4, v3")
    k("s_and_b32 s8, s36, 1"); k(f"s_mul_i32 s8, s8, {288*9216}"); k("s_lshl_b32 s9, s37, 7"); k("s_add_u32 s8, s8, s9")
    k("s_waitcnt lgkmcnt(0)")
    k("s_cmp_ge_u32 s36, 2"); k("s_cselect_b32 s4, s6, s4"); k("s_cselect_b32 s5, s7, s5")
    srd(k, 16, 4, D*F*2); srd(k, 20, 10, CS_BYTES, off=WS_CS)
    for j in range(36):
        k(f"buffer_load_dwordx4 v[{16+4*j}:{19+4*j}], v3, s[16:19], s8 offen")
        if j < 35: k(f"s_add_u32 s8, s8, {8*9216}")
    k("s_mov_b32 s4, 0x00003f80"); k("s_mov_b32 s5, 0x3f800000")
    for i in range(8): k(f"v_mov_b32 v{8+i}, 0")
    for j in range(36):
        k(f"s_waitcnt vmcnt({35-j})")
        for i in range(4):
            k(f"v_dot2c_f32_bf16 v{8+2*i}, s4, v{16+4*j+i}"); k(f"v_dot2c_f32_bf16 v{9+2*i}, s5, v{16+4*j+i}")
    k("v_lshlrev_b32 v3, 5, v0")
    k(f"ds_write_b128 v3, v[8:11] offset:{lds_off}"); k(f"ds_write_b128 v3, v[12:15] offset:{lds_off+16}")
    k("s_waitcnt lgkmcnt(0)"); k("s_barrier")
    k("s_cmp_ge_u32 s36, 2"); k(f"s_cbranch_scc1 {end}")
    k("v_and_b32 v3, 1, v0"); k("v_lshlrev_b32 v3, 12, v3"); k("v_lshrrev_b32 v4, 1, v0"); k("v_lshl_add_u32 v3, v4, 2, v3")
    for n in range(16): k(f"ds_read_b32 v{16+n}, v3 offset:{lds_off + n*256}")
    k("s_waitcnt lgkmcnt(0)")
    for st in (8, 4, 2, 1):
        for n in range(st): k(f"v_add_f32 v{16+n}, v{16+n}, v{16+n+st}")
    k("v_cvt_pk_bf16_f32 v17, v16, v16"); k("v_lshlrev_b32 v17, 16, v17"); k("v_sub_f32 v18, v16, v17")
    k("v_cvt_pk_bf16_f32 v17, v17, v18")
    k("v_lshlrev_b32 v3, 2, v0"); k("s_lshl_b32 s8, s37, 9")
    k("buffer_store_dword v17, v3, s[20:23], s8 offen")
    k("s_endpgm")
def touch_code(k, wg0, nwg, regs):
    k(f"s_sub_u32 s3, s2, {wg0}"); k("s_lshl_b32 s3, s3, 15"); k("v_lshlrev_b32 v1, 7, v0")
    for n, (ka, nb) in enumerate(regs): k(f"s_load_dwordx2 s[{40+2*n}:{41+2*n}], s[0:1], {ka}")
    k("s_waitcnt lgkmcnt(0)")
    for n, (ka, nb) in enumerate(regs): srd(k, 4+4*n, 40+2*n, nb)
    mx = max(nb for ka, nb in regs)
    for j in range((mx + nwg*32768 - 1)//(nwg*32768)):
        for n, (ka, nb) in enumerate(regs):
            if j*nwg*32768 < nb: k(f"buffer_load_dword v2, v1, s[{4+4*n}:{7+4*n}], s3 offen")
        k(f"s_add_u32 s3, s3, {nwg*32768}")
    k("s_endpgm")

WS_WL = 0x3000000
WS_WD2 = 0x3200000
```

```python
from common import *
import copy
CH = 36864
CSB = 4*CH

def gen_ffn2(name="ffn_kernel", DEPTH=8, BAR_AHEAD=4, NB=10, stamp=False, SB=0, DSP=27, lgk0=True, nodma=False, nox=False, nohs=False, P=None, marks=None, nobar=False, hst='sc1', hld='sc1', wb=None):
    P = dict(dict(pub6=.85, poll6=.4, chk6=.9, pub7=.75, poll7=.25, chk7=.7), **(P or {}))
    k = Kern(name); end = f"{name}_end"
    tl = TL(k, stamp, 72, 100, 3)
    k(f"s_cmp_ge_u32 s2, 256"); k(f"s_cbranch_scc1 {end}")
    k("s_load_dwordx4 s[4:7], s[0:1], 32")
    k("s_load_dwordx4 s[28:31], s[0:1], 48")
    k("s_load_dwordx2 s[10:11], s[0:1], 72")
    tl.start()
    k("v_lshrrev_b32 v1, 6, v0"); k("v_and_b32 v2, 63, v0")
    k("v_readfirstlane_b32 s36, v1")
    k("s_and_b32 s37, s2, 3")
    k("s_bfe_u32 s38, s2, 0x20003")
    k("s_bfe_u32 s3, s2, 0x10002"); k("s_lshl_b32 s3, s3, 3"); k("s_lshr_b32 s8, s2, 5"); k("s_add_u32 s3, s3, s8")
    k("s_lshl_b32 s39, s3, 2"); k("s_add_u32 s39, s39, s36")
    k("s_lshl_b32 s40, s37, 2"); k("s_add_u32 s40, s40, s38")
    k("s_lshl_b32 s41, s36, 10")
    vDP, vDL, vDD, vA2, vST, vR2, vCS, vDL2, vFL, vPL, vCL = 3, 4, 5, 6, 7, 8, 9, 12, 13, 14, 1
    vRd = [10, 11]
    T = 16; MB = 28
    k("s_mul_i32 s57, s40, 288"); k("s_and_b32 s56, s40, 1")
    k("s_lshl_b32 s58, s56, 5"); k("s_add_u32 s58, s58, s57")
    k("s_mul_i32 s60, s36, 73728"); k("s_lshl_b32 s57, s58, 1"); k("s_add_u32 s60, s60, s57")
    k("s_mul_i32 s66, s39, 36864")
    k("v_and_b32 v16, 3, v2"); k("v_lshlrev_b32 v16, 4, v16")
    k("v_bfe_u32 v15, v2, 2, 3")
    k("v_lshrrev_b32 v17, 5, v2"); k("v_lshlrev_b32 v17, 6, v17")
    k("v_add_u32 v17, v17, v16")
    k(f"v_mul_u32_u24 v{vDP}, 9216, v15"); k(f"v_add_u32 v{vDP}, v{vDP}, v17")
    k(f"v_lshlrev_b32 v{vST}, 4, v2")
    k("s_cmp_lt_u32 s36, 2"); k(f"s_cselect_b32 s3, {144*9216}, 0")
    k("s_waitcnt lgkmcnt(0)")
    tl.mark("t0", True)
    srd(k, 16, 4, D*F*2); srd(k, 20, 6, D*F*2); srd(k, 12, 10, WS_BYTES); srd(k, 24, 28, D*F*2); srd(k, 32, 30, S*D*2)
    k("s_cselect_b32 s28, s4, s6"); k("s_cselect_b32 s29, s5, s7"); k(f"s_mov_b32 s30, {D*F*2:#x}"); k("s_mov_b32 s31, 0x00020000")
    k("s_add_u32 s5, s60, s3"); k(f"s_sub_u32 s5, s5, {16*9216}")
    G0, G1, U0, U1 = 32, 48, 64, 80
    HO = 96; STG = 240; XA = 4*NB
    assert XA + 144 + 72 <= 256
    def hreg(x, t):
        if x == 0: return ("v", HO + 8*t)
        if t < 6:
            idx = (x-1)*6 + t
            return ("v", 168 + 8*idx) if idx < 9 else ("a", XA + 144 + 8*(idx-9))
        return ("a", XA + ((x-1)*3 + t - 6)*8)
    def hop(x, t, u):
        c, r = hreg(x, t); return f"{c}[{r+4*u}:{r+4*u+3}]"
    vq = VQ(k)
    chunks = [("Q", p, q) for p in range(4) for q in range(4)] + [("L", "g"), ("L", "u")]
    A_t = [[(0, t) for t in range(9)],
           [(1, 0), (1, 1), (1, 2), (1, 3), (2, 0), (2, 1), (2, 2), (2, 3), (3, 0)],
           [(3, 1), (3, 2), (3, 3), (1, 4), (1, 5), (2, 4), (2, 5), (3, 4), (3, 5)],
           [(1, 6), (1, 7), (2, 6), (2, 7), (3, 6), (3, 7), (1, 8), (2, 8), (3, 8)]]
    pr = lambda x, ps: [("p", x, p) for p in ps]
    UN = dict(Ce=pr(0, range(4)) + pr(1, (0, 1)) + pr(2, (0, 1)) + pr(3, (0,)),
              R=pr(0, range(4)) + pr(1, range(4)) + [("l", 0)],
              Cl=pr(3, (1,)) + [("p", x, p) for p in (2, 3) for x in (1, 2, 3)] + [("l", 0), ("l", 1)],
              O0=pr(0, range(4)) + pr(1, range(4)) + [("l", 0)], O1=pr(2, range(4)) + pr(3, range(4)) + [("l", 1)])
    chunks += [("A", 0), ("A", 1), ("A", 2), ("N", "Ce"), ("N", "R"), ("A", 3), ("N", "Cl"), ("N", "O0"), ("N", "O1")]
    NC = len(chunks)
    def dma_instrs(c):
        ch = chunks[c]; slot = c % 4; out = []
        for j in range(9):
            pre = []
            if ch[0] == "L":
                so = f"s_add_u32 s9, s61, {64*j*9216}"; srdn = 16 if ch[1] == "g" else 20; vo = vDL
            elif ch[0] == "Q":
                p, q = ch[1], ch[2]; vo = vDP
                if j < 4: so = f"s_add_u32 s9, s60, {(144*q + 32*j)*9216 + 128*p}"; srdn = 16
                elif j == 4: so = f"s_add_u32 s9, s5, {144*q*9216 + 128*p}"; srdn = 28
                else: so = f"s_add_u32 s9, s60, {(144*q + 8*(4*j-18))*9216 + 128*p}"; srdn = 20
            elif ch[0] == "A":
                x, t = A_t[ch[1]][j]
                so = f"s_add_u32 s9, s{42+x}, {32*t*1152}" if t < 8 else f"s_mov_b32 s9, s{46+x}"; srdn = 24; vo = vDD
            else:
                un = UN[ch[1]][j]
                so = f"s_add_u32 s9, s{50+un[1]}, {64*un[2]*1152}" if un[0] == "p" else f"s_mov_b32 s9, s{54+un[1]}"; srdn = 24; vo = vDL
                if j == 0 and ch[1] != "O1":
                    if ch[1] == "R": pre = ["s_and_b32 s8, s38, 1", "s_add_u32 s8, s8, 16"]
                    elif ch[1][0] == "C": pre = ["s_xor_b32 s8, s37, 1", "s_lshl_b32 s9, s38, 2", "s_add_u32 s8, s8, s9"]
                    else: pre = ["s_lshl_b32 s9, s38, 2", "s_add_u32 s8, s37, s9"]
                    pre += ["s_lshl_b32 s8, s8, 6", f"v_add_u32 v{vDL}, s8, v{vDL2}"]
            if nodma and c >= 4 and j > 0: continue
            out.append(pre + [f"s_add_u32 m0, s41, {slot*CH + j*4096}", so, ("vm", f"dma{c}", f"buffer_load_dwordx4 v{vo}, s[{srdn}:{srdn+3}], s9 offen lds")])
        return out
    def hload(s):
        return [f"s_add_u32 s9, s66, {WS_H + (s//4)*4096:#x}",
                ("vm", f"h{s}", f"buffer_load_dwordx4 a[{XA+4*s}:{XA+4*s+3}], v{vST}, s[12:15], s9 offen offset:{(s%4)*1024}")]
    d0 = dma_instrs(0)
    vq.emit(d0)
    for s in range(9): vq.emit(hload(s))
    vq.emit(dma_instrs(1))
    k("s_lshr_b32 s8, s37, 1"); k("s_xor_b32 s8, s8, 1"); k("s_lshl_b32 s9, s38, 1"); k("s_add_u32 s8, s8, s9"); k("s_lshl_b32 s8, s8, 7")
    k("s_mul_i32 s9, s36, 9216"); k("s_add_u32 s8, s8, s9")
    k("s_lshl_b32 s9, s9, 1")
    for x in range(4):
        k(f"s_xor_b32 s56, s40, {x}"); k("s_mul_i32 s57, s56, 288"); k("s_and_b32 s56, s56, 1")
        k("s_lshl_b32 s58, s56, 5"); k("s_add_u32 s58, s58, s57")
        k("s_xor_b32 s56, s56, 1"); k("s_lshl_b32 s56, s56, 8"); k("s_add_u32 s56, s56, s57")
        if x == 0:
            k("s_mul_i32 s61, s36, 147456"); k("s_lshl_b32 s57, s56, 1"); k("s_add_u32 s61, s61, s57")
        k("s_mul_i32 s58, s58, 1152"); k("s_mul_i32 s56, s56, 1152")
        k(f"s_add_u32 s{42+x}, s58, s8"); k(f"s_add_u32 s{46+x}, s56, s8"); k(f"s_add_u32 s{50+x}, s58, s9")
        if x % 2 == 0: k(f"s_mov_b32 s{54+x//2}, s56")
        else:
            k("s_cmp_ge_u32 s36, 2"); k(f"s_cselect_b32 s{54+x//2}, s56, s{54+x//2}")
    k("s_and_b32 s9, s36, 1"); k("s_mul_i32 s9, s9, 18432"); k("s_add_u32 s54, s54, s9"); k("s_add_u32 s55, s55, s9")
    k("s_lshl_b32 s8, s39, 4")
    for x in range(4):
        k(f"s_xor_b32 s9, s40, {x}"); k("s_add_u32 s9, s9, s8"); k("s_mul_i32 s9, s9, 18432"); k(f"s_add_u32 s{62+x}, s9, {WS_HX:#x}")
    k("s_lshl_b32 s67, s39, 7"); k(f"s_add_u32 s67, s67, {WS_FLAG:#x}")
    k(f"s_mul_i32 s68, s39, {80*2048}"); k(f"s_add_u32 s68, s68, {WS_PT:#x}")
    k(f"v_mul_u32_u24 v{vDD}, 1152, v15"); k(f"v_add_u32 v{vDD}, v{vDD}, v17")
    k("v_lshrrev_b32 v15, 2, v2"); k(f"v_mul_u32_u24 v{vDL}, 9216, v15"); k(f"v_add_u32 v{vDL}, v{vDL}, v16")
    k(f"v_mul_u32_u24 v{vDL2}, 1152, v15"); k(f"v_add_u32 v{vDL2}, v{vDL2}, v16")
    k("v_bfe_u32 v16, v2, 2, 2"); k("v_lshlrev_b32 v16, 6, v16")
    k("v_bfe_u32 v15, v2, 4, 1"); k("v_lshl_add_u32 v16, v15, 5, v16")
    k("v_and_b32 v15, 3, v2"); k("v_lshl_add_u32 v16, v15, 3, v16")
    k("v_lshrrev_b32 v15, 5, v2")
    k(f"v_lshl_add_u32 v{vA2}, v15, 8, v16")
    k(f"v_and_b32 v{vFL}, 15, v2"); k(f"v_lshlrev_b32 v{vFL}, 2, v{vFL}")
    k("v_and_b32 v17, 31, v2"); k("v_lshlrev_b32 v17, 3, v17")
    k("s_and_b32 s8, s40, 1"); k("s_lshl_b32 s9, s8, 8"); k(f"s_add_u32 s9, s9, {CSB}"); k(f"v_add_u32 v{vCS}, s9, v17")
    k("s_xor_b32 s8, s8, 1"); k("s_lshl_b32 s9, s8, 11"); k(f"s_add_u32 s9, s9, {CSB}"); k(f"v_add_u32 v{vCL}, s9, v17")
    k("s_lshl_b32 s8, s37, 2"); k("s_lshl_b32 s56, 15, s8"); k("s_lshl_b32 s9, 1, s40"); k("s_andn2_b32 s56, s56, s9"); k("s_mov_b32 s57, 0")
    k("s_xor_b32 s8, s40, 8"); k("s_lshl_b32 s58, 1, s8"); k("s_xor_b32 s8, s40, 12"); k("s_lshl_b32 s8, 1, s8"); k("s_or_b32 s58, s58, s8")
    k("s_and_b32 s8, s38, 1"); k("s_lshl_b32 s8, 0x5555, s8"); k("s_andn2_b32 s8, s8, s9")
    k("s_cmp_eq_u32 s36, s37"); k("s_cselect_b32 s58, s8, s58"); k("s_mov_b32 s59, 0")
    k("s_xor_b32 s8, s40, 4"); k("s_lshl_b32 s70, 1, s8"); k("s_mov_b32 s71, 0")
    k("s_lshl_b32 s69, s40, 2"); k("s_add_u32 s69, s69, s67")
    k("s_mul_i32 s39, s39, 2304"); k(f"s_add_u32 s39, s39, {WS_ST:#x}")
    SR = [STG + 2*i for i in range(8)] + [T + 8]
    stats_ld = [("vm", "st", f"buffer_load_dwordx2 v[{SR[i]}:{SR[i]+1}], v17, s[12:15], s39 offen offset:{256*i}") for i in range(9)]
    cs_ld = [[f"s_add_u32 m0, s41, {CSB}", "s_mul_i32 s9, s40, 2304", "s_add_u32 s9, s9, s41", f"s_add_u32 s9, s9, {WS_CS:#x}",
              ("vm", "cs", f"buffer_load_dwordx4 v{vST}, s[12:15], s9 offen lds")]]
    a0, a1 = SR[0], SR[0]+1
    stats_calc = [("wait", "st")]
    for i in range(1, 9): stats_calc += [f"v_add_f32 v{a0}, v{a0}, v{SR[i]}", f"v_add_f32 v{a1}, v{a1}, v{SR[i]+1}"]
    stats_calc += [f"v_mul_f32 v{a0}, {fx(-1.0/576)}, v{a0}", f"v_mul_f32 v{a1}, {fx(1.0/576)}, v{a1}",
                   f"v_fma_f32 v{a1}, -v{a0}, v{a0}, v{a1}", f"v_max_f32 v{a1}, 0, v{a1}", f"v_add_f32 v{a1}, {fx(1e-5)}, v{a1}",
                   f"v_rcp_f32 v{vR2}, v{a1}",
                   f"v_cvt_pk_bf16_f32 v{MB}, v{a0}, v{a0}", f"v_lshlrev_b32 v{a1}, 16, v{MB}", f"v_sub_f32 v{a0}, v{a0}, v{a1}",
                   f"v_cvt_pk_bf16_f32 v{MB+3}, v{a0}, v{a0}", f"v_cmp_lt_u32 vcc, 31, v2", f"v_cndmask_b32 v{MB}, v{MB}, v{MB+3}, vcc",
                   f"v_mov_b32 v{MB+1}, 0", f"v_mov_b32 v{MB+2}, 0", f"v_mov_b32 v{MB+3}, v{MB}"]
    ool = []
    def emit(it):
        if isinstance(it, tuple) and it[0] == "wait": vq.wait(it[1])
        elif isinstance(it, tuple) and it[0] == "call": it[1]()
        elif isinstance(it, list):
            for x in it: emit(x)
        else: vq.emit(it)
    def publish(stage, tag):
        def f():
            vq.wait(tag)
            k(f"v_mov_b32 v15, {SB+stage}")
            k("s_mov_b64 exec, 1")
            vq("fl", f"buffer_store_dword v15, off, s[12:15], s69 sc1")
            k("s_mov_b64 exec, -1")
        return ("call", f)
    def poll_issue(n):
        return ("vm", f"poll{n}", f"buffer_load_dword v{vPL}, v{vFL}, s[12:15], s67 offen sc1")
    def poll_check(stage, mask):
        def f():
            vq.wait(f"poll{stage}")
            ls = k.label("spin"); lb = k.label("go")
            k(f"v_cmp_gt_u32 vcc, {SB+stage}, v{vPL}")
            k(f"s_and_b64 vcc, vcc, s[{mask}:{mask+1}]")
            k(f"s_cbranch_scc1 {ls}")
            k.put(lb)
            ool.append((ls, lb, stage, mask))
        return ("call", f)
    def xload(x, t):
        if nox: return [["s_nop 0"]]
        return [[f"s_add_u32 s9, s{62+x}, {t*2048}", ("vm", f"x{x}_{t}", f"buffer_load_dwordx4 {hop(x,t,u)}, v{vST}, s[12:15], s9 offen offset:{u*1024} {hld}")] for u in range(2)]
    mf = []
    XB = lambda s: f"a[{XA+4*s}:{XA+4*s+3}]"
    for c, ch in enumerate(chunks):
        if ch[0] == "L":
            isu = ch[1] == "u"; acc = U0 if isu else G0
            mf.append(dict(c=c, cs=(vCL, 0), B=f"v[{MB+2*isu}:{MB+2*isu+1}]", acc=acc, first=True))
            for s in range(36):
                mf.append(dict(c=c, o=[s*1024, s*1024+512], B=XB(s), acc=acc, first=False))
        elif ch[0] == "Q":
            p, q = ch[1], ch[2]
            if p == 0 and q < 3: seq = [(ft, isu, sl) for sl in range(9) for ft in range(2) for isu in range(2)]
            else: seq = [(ft, isu, sl) for ft in range(2) for sl in range(-1 if q == 3 else 0, 9) for isu in range(2)]
            for ft, isu, sl in seq:
                acc = (U0 if isu else G0) + 16*ft
                if sl < 0:
                    mf.append(dict(c=c, cs=(vCS, (2*p+ft)*256), B=f"v[{MB+2*isu}:{MB+2*isu+1}]", acc=acc, first=False)); continue
                sg = 9*q + sl; n0 = 18*isu + 2*sl
                mf.append(dict(c=c, o=[n0*1024+ft*512, (n0+1)*1024+ft*512], B=XB(sg), acc=acc, first=(sg == 0), need=f"h{sg}"))
        elif ch[0] == "A":
            for j, (x, t) in enumerate(A_t[ch[1]]):
                for u in range(2):
                    for dt in range(2):
                        blk = 4*j + 2*u
                        mf.append(dict(c=c, o=[blk*1024+dt*512, (blk+1)*1024+dt*512], B=hop(x, t, u), acc=(G1, U1)[dt],
                                       first=(ch[1] == 0 and j == 0 and u == 0), need=f"x{x}_{t}" if x else None))
        else:
            acc = dict(R=G0, C=U0, O=G1)[ch[1][0]]
            tls = []
            for j, un in enumerate(UN[ch[1]]):
                if un[0] == "p": tls += [(un[1], 2*un[2], 2*j), (un[1], 2*un[2]+1, 2*j+1)]
                else: tls += [(2*un[1], 8, 2*j), (2*un[1]+1, 8, 2*j+1)]
            if ch[1] in ("R", "O0"): tls = [e for e in tls if e[0] == 0] + [e for e in tls if e[0] != 0]
            for n, (x, t, pos) in enumerate(tls):
                for u in range(2):
                    mf.append(dict(c=c, o=[(2*pos+u)*1024, (2*pos+u)*1024+512], B=hop(x, t, u), acc=acc,
                                   first=(ch[1] in ("R", "Ce", "O0") and n == 0 and u == 0), need=f"x{x}_{t}" if x else None))
    N = len(mf); assert N == 990
    cstart = {}
    for g, e in enumerate(mf): cstart.setdefault(e["c"], g); e["fb"] = 4*(g % NB)
    cstart[NC] = N
    fill = [[] for _ in range(N + 1)]
    def spread(items, g0, g1, fl=None):
        fl = fill if fl is None else fl
        n = len(items); w = g1 - g0
        for i, it in enumerate(items): fl[g0 + (i * w) // n].append(it)
    def at(c, frac=0.0): return cstart[c] + int(frac*(cstart[c+1] - cstart[c])) if frac else cstart[c]
    def hcalc(g, u, t):
        out = []; h = HO + 8*t
        for i in range(8):
            out.append(f"v_mul_f32 v{u+2*i}, v{u+2*i}, v{g+2*i}")
            out.append(f"v_mul_f32 v{u+2*i+1}, v{u+2*i+1}, v{g+2*i+1}")
            out.append(f"v_cvt_pk_bf16_f32 v{h+i}, v{u+2*i}, v{u+2*i+1}")
            if i % 4 == 3 and (not nohs or i == 7):
                out.append([f"s_add_u32 s9, s62, {t*2048}", ("vm", f"hs{t}", f"buffer_store_dwordx4 v[{h+i-3}:{h+i}], v{vST}, s[12:15], s9 offen offset:{(i//4)*1024} {hst}" if not nohs else f"buffer_store_dword v{h}, off, s[12:15], s9 sc1")])
        return out
    def pstore(acc, slotcalc, sb, tag):
        out = [slotcalc]
        for u in range(2):
            for i in range(4):
                out.append(f"v_cvt_pk_bf16_f32 v{sb+4*u+i}, v{acc+8*u+2*i}, v{acc+8*u+2*i+1}")
            out.append(("vm", tag, f"buffer_store_dwordx4 v[{sb+4*u}:{sb+4*u+3}], v{vST}, s[12:15], s6 offen offset:{u*1024} sc1"))
        return out
    W0 = 4; B_ = BAR_AHEAD
    spread([hload(s) for s in range(9, 18)] + dma_instrs(2), 0, at(1) - B_ - 2)
    spread([hload(s) for s in range(18, 27)] + stats_ld + cs_ld + dma_instrs(3), at(1) - B_, at(2) - B_ - 2)
    spread([hload(s) for s in range(27, 36)] + dma_instrs(4), at(2) - B_, at(3) - B_ - 2)
    spread(stats_calc, at(2, .4), at(3) - 2)
    spread(dma_instrs(5) + dma_instrs(6), at(3) - B_, at(4) - B_ - 2)
    for c in range(4, NC - 3):
        g0 = cstart[c] - B_
        spread(dma_instrs(c + 3), g0, g0 + DSP)
    for p in range(4):
        spread(hcalc(G0, U0, 2*p), at(4*p+3) + 20 + W0, at(4*p+4))
        spread(hcalc(G1, U1, 2*p+1), at(4*p+4) + W0, at(4*p+4) + 17)
    spread(hcalc(G0, U0, 8), at(18) + W0, at(18) + 18)
    for p in range(3):
        fill[at(4*p+6)-B_].append(publish(p+1, f"hs{2*p+1}"))
        fill[at(4*p+7)-B_].append(poll_issue(p+1)); fill[at(4*p+8)-B_].append(poll_check(p+1, 56))
        spread(sum([xload(x, t) for x in (1, 2, 3) for t in (2*p, 2*p+1)], []), at(4*p+8), at(4*p+11, .5 if p == 2 else .9))
    fill[at(18)-B_].append(publish(4, "hs7")); fill[at(19, .6)].append(publish(5, "hs8"))
    fill[at(19)-B_].append(poll_issue(4)); fill[at(20)-B_].append(poll_check(4, 56))
    spread(sum([xload(x, t) for x in (1, 2, 3) for t in (6, 7)], []), at(20), at(21, .4))
    fill[at(20, .6)].append(poll_issue(5)); fill[at(21, .5)].append(poll_check(5, 56))
    spread(sum([xload(x, 8) for x in (1, 2, 3)], []), at(21, .5)+1, at(21, .9))
    slotA = ["s_lshr_b32 s8, s37, 1", "s_xor_b32 s8, s8, 1", "s_lshl_b32 s8, s8, 3", "s_lshl_b32 s9, s38, 4", "s_add_u32 s8, s8, s9",
             "s_add_u32 s8, s8, s37", "s_lshl_b32 s8, s8, 11", "s_add_u32 s6, s8, s68"]
    slotB = ["s_add_u32 s6, s6, 8192"]
    slotR = ["s_and_b32 s8, s38, 1", "s_lshl_b32 s8, s8, 3", "s_lshl_b32 s9, s37, 1", "s_add_u32 s8, s8, s9", "s_lshr_b32 s9, s38, 1",
             "s_add_u32 s8, s8, s9", "s_add_u32 s8, s8, 64", "s_lshl_b32 s8, s8, 11", "s_add_u32 s6, s8, s68"]
    slotC = ["s_xor_b32 s8, s37, 1", "s_lshl_b32 s8, s8, 2", "s_lshl_b32 s9, s38, 4", "s_add_u32 s8, s8, s9", "s_add_u32 s8, s8, s37",
             "s_lshl_b32 s8, s8, 11", "s_add_u32 s6, s8, s68"]
    spread(pstore(G0, slotR, STG, "p6"), at(23) + W0, at(23) + W0 + 8)
    spread(pstore(G1, slotA, T, "p6"), at(24) + 3, at(24) + 7)
    spread(pstore(U1, slotB, T+8, "p6"), at(24) + 7, at(24) + 11)
    fill[at(24, P["pub6"])].append(publish(6, "p6"))
    spread(pstore(U0, slotC, STG+8, "p7"), at(25) + 3, at(25) + 7)
    fill[at(25, P["pub7"])].append(publish(7, "p7"))
    fill[at(25, P["poll6"])].append(poll_issue(6)); fill[at(25, P["chk6"])].append(poll_check(6, 58))
    FZ = HO
    def final_loads6():
        k("s_lshl_b32 s8, s38, 2"); k("s_add_u32 s8, s8, s37"); k("s_lshl_b32 s9, s8, 11"); k("s_add_u32 s9, s9, s66"); k(f"s_add_u32 s9, s9, {WS_H:#x}")
        k("s_lshl_b32 s3, s8, 13"); k("s_add_u32 s3, s3, s68")
        for u in range(2): vq("f6", f"buffer_load_dwordx4 v[{FZ+24+4*u}:{FZ+27+4*u}], v{vST}, s[12:15], s9 offen offset:{u*1024}")
        for n, x in enumerate((2, 3)):
            k(f"s_xor_b32 s9, s37, {x}"); k("s_lshl_b32 s9, s9, 11"); k("s_add_u32 s9, s9, s3")
            for u in range(2): vq("f6", f"buffer_load_dwordx4 v[{FZ+8*n+4*u}:{FZ+8*n+4*u+3}], v{vST}, s[12:15], s9 offen offset:{u*1024} sc1")
    def r_loads():
        k("s_and_b32 s6, s38, 1"); k("s_lshr_b32 s7, s38, 1")
        k("s_lshl_b32 s8, s6, 14"); k("s_lshl_b32 s9, s7, 10"); k("s_add_u32 s8, s8, s9"); k("s_add_u32 s8, s8, s68"); k(f"s_add_u32 s8, s8, {64*2048}")
        for n in range(8):
            vq(f"r{n}", f"buffer_load_dwordx4 v[{FZ+32+4*n}:{FZ+35+4*n}], v{vST}, s[12:15], s8 offen offset:{(n%2)*2048} sc1")
            if n % 2 == 1 and n < 7: k("s_add_u32 s8, s8, 4096")
        k("s_lshl_b32 s8, s6, 11"); k("s_add_u32 s8, s8, s9"); k("s_add_u32 s8, s8, s66"); k(f"s_add_u32 s8, s8, {WS_H + 32768:#x}")
        vq("r8", f"buffer_load_dwordx4 v[{FZ+64}:{FZ+67}], v{vST}, s[12:15], s8 offen")
    def final_loads7():
        k("s_xor_b32 s9, s37, 1"); k("s_lshl_b32 s9, s9, 11"); k("s_add_u32 s9, s9, s3")
        for u in range(2): vq("f7", f"buffer_load_dwordx4 v[{FZ+16+4*u}:{FZ+19+4*u}], v{vST}, s[12:15], s9 offen offset:{u*1024} sc1")
    def unp(dst, src, n):
        o = []
        for i in range(n): o += [f"v_lshlrev_b32 v{dst+2*i}, 16, v{src+i}", f"v_and_b32 v{dst+2*i+1}, 0xffff0000, v{src+i}"]
        return o
    def addp(acc, src, n, tmp):
        o = []
        for i in range(n):
            t = tmp + 2*(i % 2)
            o += [f"v_lshlrev_b32 v{t}, 16, v{src+i}", f"v_and_b32 v{src+i}, 0xffff0000, v{src+i}",
                  f"v_add_f32 v{acc+2*i}, v{acc+2*i}, v{t}", f"v_add_f32 v{acc+2*i+1}, v{acc+2*i+1}, v{src+i}"]
        return o
    vOUT = vDP
    def outstore(acc, nu, soff, d0):
        o = []
        for u in range(nu):
            d = d0 + 4*u
            for i in range(4): o.append(f"v_cvt_pk_bf16_f32 v{d+i}, v{acc+8*u+2*i}, v{acc+8*u+2*i+1}")
        for u in range(nu):
            d = d0 + 4*u
            for i in range(2): o.append(f"v_permlane32_swap_b32 v{d+i}, v{d+2+i}")
            o.append(("vm", "out", f"buffer_store_dwordx4 v[{d}:{d+3}], v{vOUT}, s[32:35], {soff} offen offset:{32*u}"))
        return o
    GS = at(25, P["chk6"]) + 1
    fill[at(25, .3)] += ["v_and_b32 v16, 31, v2", "v_mul_u32_u24 v16, 1152, v16", "v_lshrrev_b32 v17, 5, v2", f"v_lshl_add_u32 v{vOUT}, v17, 4, v16"]
    fill[GS-1].append(("call", final_loads6))
    fill[at(26, P["poll7"])].append(poll_issue(7))
    fill[at(26, P["chk7"])] += [poll_check(7, 70), ("call", final_loads7)]
    if wb is not None:
        def wbf():
            l = k.label("nwb")
            k("s_cmp_lg_u32 s36, 0"); k(f"s_cbranch_scc1 {l}"); k("s_cmp_ge_u32 s2, 8"); k(f"s_cbranch_scc1 {l}")
            k("buffer_wbl2 sc1"); k.put(l)
        fill[at(wb)].append(("call", wbf))
    bar_at = {cstart[c] - B_ - 1: c for c in range(1, NC)}
    lq = []; st_ = dict(rp=0, readable=0); waited = set()
    def barrier(c):
        mk = stamp and ((c not in (5, 9, 13)) if marks is None else (c in marks))
        vq.wait(f"dma{c}", " lgkmcnt(0)" if (lgk0 or mk) else "")
        if lgk0 or mk: lq.clear()
        if not (nobar and c > 4): k("s_barrier")
        k(f"v_add_u32 v{vRd[c%2]}, {(c%4)*CH}, v{vA2}")
        st_["readable"] = c + 1
        if mk: tl.mark(f"b{c}", True)
    def issue_reads(g, maxn):
        n = 0
        while st_["rp"] < N and st_["rp"] <= g + DEPTH and mf[st_["rp"]]["c"] < st_["readable"] and n < maxn:
            rp = st_["rp"]; m = mf[rp]; fb = m["fb"]
            if "cs" in m:
                k(f"ds_read_b64 a[{fb}:{fb+1}], v{m['cs'][0]} offset:{m['cs'][1]}"); lq.append(rp)
            else:
                for e in range(2):
                    k(f"ds_read_b64_tr_b16 a[{fb+2*e}:{fb+2*e+1}], v{vRd[m['c']%2]} offset:{m['o'][e]}"); lq.append(rp)
            st_["rp"] += 1; n += 1
    def run(g0, g1, fl):
        for g in range(g0, g1):
            m = mf[g]; w = []
            nd = m.get("need")
            if nd and nox and nd[0] == "x": nd = None
            if nd and nd not in waited: w.append(f"vmcnt({vq.n(nd)})"); waited.add(nd)
            if g in lq:
                idx = max(i for i, t in enumerate(lq) if t == g)
                w.append(f"lgkmcnt({min(15, len(lq) - 1 - idx)})"); del lq[:idx+1]
            if w: k("s_waitcnt " + " ".join(w))
            fb = m["fb"]; acc = m["acc"]
            C = "0" if m["first"] else f"v[{acc}:{acc+15}]"
            if "cs" in m: k(f"v_mfma_f32_32x32x8_bf16 v[{acc}:{acc+15}], a[{fb}:{fb+1}], {m['B']}, {C}")
            else: k(f"v_mfma_f32_32x32x16_bf16 v[{acc}:{acc+15}], a[{fb}:{fb+3}], {m['B']}, {C}")
            if g in bar_at:
                c = bar_at[g]
                assert st_["rp"] >= cstart[c], (c, g)
                barrier(c)
            issue_reads(g, 3)
            for it in fl[g]: emit(it)
    barrier(0)
    issue_reads(-1, DEPTH)
    run(0, GS, fill)
    lR = k.label("rw")
    k("s_cmp_eq_u32 s36, s37"); k(f"s_cbranch_scc1 {lR}")
    snap = (list(lq), dict(st_), set(waited), list(vq.q), tl.n, tl.pend, list(tl.names))
    for isR in (0, 1):
        if isR:
            k.put(lR)
            lq[:] = snap[0]; st_.update(snap[1]); waited.clear(); waited.update(snap[2]); vq.q = list(snap[3]); tl.n, tl.pend, tl.names = snap[4], snap[5], list(snap[6])
        fl = [list(x) for x in fill]
        main = [("wait", "f6")] + unp(U1, FZ, 8) + addp(U1, FZ+8, 8, T) + unp(G0, FZ+24, 8)
        if isR:
            fl[GS].insert(0, ("call", r_loads))
            rw = [("wait", "r1")] + unp(U0, FZ+32, 4) + addp(U0, FZ+36, 4, T)
            for n in range(2, 8):
                if n % 2 == 0: rw.append(("wait", f"r{n+1}"))
                rw += addp(U0, FZ+32+4*n, 4, T)
            rw += [("wait", "r8")] + unp(U0+8, FZ+64, 4) + [f"v_fma_f32 v{U0+i}, v{U0+i}, v{vR2}, v{U0+8+i}" for i in range(8)]
            rw += [["s_and_b32 s6, s38, 1", "s_lshr_b32 s7, s38, 1", "s_lshl_b32 s8, s6, 6", "s_lshl_b32 s9, s7, 5", "s_add_u32 s8, s8, s9",
                    "s_add_u32 s8, s8, s66", "s_add_u32 s6, s8, 1024"]] + outstore(U0, 1, "s6", T+4)
            spread(main + rw, at(26, .3), N - 1, fl)
        else:
            spread(main, at(26, .35), at(26, .8), fl)
        run(GS, N, fl)
        k("s_lshl_b32 s8, s38, 2"); k("s_add_u32 s8, s8, s37"); k("s_lshl_b32 s8, s8, 6"); k("s_add_u32 s8, s8, s66")
        emit([("wait", "f7")] + addp(U1, FZ+16, 8, T))
        for i in range(16): k(f"v_add_f32 v{G1+i}, v{G1+i}, v{U1+i}")
        for i in range(16): k(f"v_fma_f32 v{G1+i}, v{G1+i}, v{vR2}, v{G0+i}")
        emit(outstore(G1, 2, "s8", T+8))
        tl.finish(36, 10, 14, 15, 16)
        if not isR: k("s_endpgm")
    k.put(end)
    k("s_endpgm")
    for (ls, lb, stage, mask) in ool:
        k.put(ls)
        k("s_mov_b32 s7, 0x4000")
        lp = k.label("lp"); k.put(lp)
        k("s_sleep 1")
        k(f"buffer_load_dword v{vPL}, v{vFL}, s[12:15], s67 offen sc1")
        k("s_sub_u32 s7, s7, 1"); k(f"s_cbranch_scc1 {lb}")
        k("s_waitcnt vmcnt(0)")
        k(f"v_cmp_gt_u32 vcc, {SB+stage}, v{vPL}")
        k(f"s_and_b64 vcc, vcc, s[{mask}:{mask+1}]")
        k(f"s_cbranch_scc1 {lp}")
        k(f"s_branch {lb}")
    return k, (name, 256, 256, 4*CH + 4096)
```

```python
from common import *
import math
def gen_k1(name="qkv_kernel", stamp=False, DEPTH=6, zflags=True, pf=0):
    k = Kern(name); end = f"{name}_end"
    sp = Stamper(k, stamp, trace=0)
    NWG = 224
    k(f"s_cmp_ge_u32 s2, {NWG}"); k(f"s_cbranch_scc1 {name}_pf" if pf else f"s_cbranch_scc1 {end}")
    k("s_load_dwordx4 s[4:7], s[0:1], 0")
    k("s_load_dwordx2 s[10:11], s[0:1], 72")
    sp.start()
    k("v_lshrrev_b32 v1, 6, v0"); k("v_and_b32 v2, 63, v0")
    k("v_readfirstlane_b32 s36, v1")
    k("s_and_b32 s37, s2, 7"); k("s_lshl_b32 s37, s37, 2"); k("s_bfe_u32 s42, s2, 0x20003"); k("s_or_b32 s37, s37, s42")
    k("s_lshr_b32 s38, s2, 5")
    k("s_and_b32 s39, s36, 1")
    k("s_lshr_b32 s40, s36, 1")
    k("s_lshl_b32 s41, s38, 9"); k("s_lshl_b32 s42, s36, 7"); k("s_add_u32 s41, s41, s42")
    k("s_lshl_b32 s43, s36, 13")
    k("s_lshl_b32 s44, s37, 6"); k("s_lshl_b32 s42, s36, 4"); k("s_add_u32 s44, s44, s42"); k("s_mul_i32 s44, s44, 1152")
    k("s_mul_i32 s45, s36, 18432")
    vDW, vDX0, vDX1, vA, vXR, vSTQ, vSTV = 3, 4, 5, 6, 8, 12, 13
    vRd = [14, 15]
    vT = 16
    k("v_and_b32 v16, 3, v2"); k("v_lshlrev_b32 v16, 4, v16")
    k("v_bfe_u32 v17, v2, 2, 3")
    k("v_lshrrev_b32 v18, 5, v2")
    k("v_lshl_add_u32 v16, v18, 6, v16")
    k(f"v_mul_u32_u24 v{vDW}, 3456, v17"); k(f"v_add_u32 v{vDW}, v{vDW}, v16")
    k("v_lshrrev_b32 v16, 3, v2"); k("v_and_b32 v17, 7, v2"); k("v_lshrrev_b32 v19, 1, v16"); k("v_xor_b32 v17, v17, v19")
    k("v_mul_u32_u24 v16, 1152, v16")
    k(f"v_lshl_add_u32 v{vDX0}, v17, 4, v16")
    k("v_xor_b32 v17, 4, v17")
    k(f"v_lshl_add_u32 v{vDX1}, v17, 4, v16")
    k("v_bfe_u32 v16, v2, 2, 2"); k("v_lshlrev_b32 v16, 6, v16")
    k("v_bfe_u32 v17, v2, 4, 1"); k("v_lshl_add_u32 v16, v17, 5, v16")
    k("v_and_b32 v17, 3, v2"); k("v_lshl_add_u32 v16, v17, 3, v16")
    k("v_lshl_add_u32 v16, v18, 10, v16")
    k("s_lshl_b32 s42, s40, 14")
    k(f"v_add_u32 v{vA}, s42, v16")
    k("v_and_b32 v16, 31, v2"); k("v_lshrrev_b32 v17, 3, v16"); k("v_mul_u32_u24 v17, 9216, v17")
    k("v_and_b32 v19, 7, v16"); k("v_lshl_add_u32 v17, v19, 7, v17")
    k("s_mul_i32 s42, s39, 36864"); k("v_add_u32 v17, s42, v17")
    k("v_bfe_u32 v19, v16, 1, 3"); k("v_xor_b32 v19, v19, v18")
    for q in range(4):
        k(f"v_xor_b32 v20, {2*q}, v19"); k(f"v_lshl_add_u32 v{vXR+q}, v20, 4, v17")
    k(f"v_lshlrev_b32 v{vSTQ}, 3, v16"); k(f"v_lshl_add_u32 v{vSTQ}, v18, 8, v{vSTQ}")
    k(f"v_mul_u32_u24 v{vSTV}, 9216, v18"); k(f"v_lshl_add_u32 v{vSTV}, v16, 4, v{vSTV}")
    k("s_waitcnt lgkmcnt(0)")
    srd(k, 16, 4, S*D*2); srd(k, 20, 6, D*3*D*2)
    srd(k, 24, 10, QK_BYTES, off=WS_QK); srd(k, 28, 10, V_BYTES, off=WS_V)
    vq = VQ(k)
    if zflags:
        lz = k.label("nz")
        k("s_cmp_ge_u32 s2, 8"); k(f"s_cbranch_scc1 {lz}")
        srd(k, 32, 10, 8192, off=WS_FLAG)
        k("s_lshl_b32 s46, s2, 10"); k("v_lshlrev_b32 v20, 2, v0"); k("v_mov_b32 v21, 0")
        k("buffer_store_dword v21, v20, s[32:35], s46 offen sc1")
        k("s_waitcnt vmcnt(0)")
        k.put(lz)
    SLOT = [73728, 73728+32768, 0, 32768]
    SPARE = 73728 + 65536
    def dma_w(c):
        out = []
        for rg in range(8):
            out.append([f"s_add_u32 m0, s43, {SLOT[c%4] + rg*1024}", f"s_add_u32 s46, s41, {(64*c + 8*rg)*3456}",
                        ("vm", f"w{c}", f"buffer_load_dwordx4 v{vDW}, s[20:23], s46 offen lds")])
        return out
    for par in range(2):
        for sg in range(9):
            k(f"s_add_u32 m0, s45, {(par*9 + sg)*1024}"); k(f"s_add_u32 s46, s44, {par*8*1152 + sg*128}")
            vq("x", f"buffer_load_dwordx4 v{vDX0 if par == 0 else vDX1}, s[16:19], s46 offen lds")
    for c in range(2): vq.emit(dma_w(c))
    XR = 64; ACC = 208
    accs = [32, 48, 208, 224]
    k("s_mov_b32 s54, 0x3f803f80"); k("s_mov_b32 s55, 0x00003f80"); k("s_mov_b32 s56, 0x3f800000")
    for i in range(8): k(f"v_mov_b32 v{vT+i}, 0")
    vq.wait("x"); k("s_barrier")
    sp.st()
    for s in range(36):
        k(f"ds_read_b128 v[{XR+4*s}:{XR+4*s+3}], v{vXR + (s&3)} offset:{(s>>2)*1024}")
        if s >= 8:
            k("s_waitcnt lgkmcnt(8)")
            for i in range(4): k(f"v_dot2c_f32_bf16 v{vT+i}, s54, v{XR+4*(s-8)+i}")
    for s in range(28, 36):
        k(f"s_waitcnt lgkmcnt({35-s})")
        for i in range(4): k(f"v_dot2c_f32_bf16 v{vT+i}, s54, v{XR+4*s+i}")
    vq.wait("w0")
    k("s_barrier")
    for c in (2, 3): vq.emit(dma_w(c))
    k(f"v_add_f32 v{vT}, v{vT}, v{vT+1}"); k(f"v_add_f32 v{vT+2}, v{vT+2}, v{vT+3}"); k(f"v_add_f32 v{vT}, v{vT}, v{vT+2}")
    k(f"v_mov_b32 v{vT+1}, v{vT}")
    k(f"v_permlane32_swap_b32 v{vT}, v{vT+1}")
    k(f"v_add_f32 v{vT}, v{vT}, v{vT+1}")
    k(f"v_mul_f32 v{vT}, {fx(-1.0/576)}, v{vT}")
    sp.st()
    def center(s):
        out = []
        for i in range(4):
            r = XR + 4*s + i; a = vT + 8 + 2*i
            out += [f"v_dot2_f32_bf16 v{a}, v{r}, s55, v{vT}", f"v_dot2_f32_bf16 v{a+1}, v{r}, s56, v{vT}"]
        for i in range(4):
            r = XR + 4*s + i; a = vT + 8 + 2*i
            out += [f"v_cvt_pk_bf16_f32 v{r}, v{a}, v{a+1}"]
        for i in range(4):
            r = XR + 4*s + i
            out += [f"v_dot2c_f32_bf16 v{vT+4+i}, v{r}, v{r}"]
        return out
    k("s_lshl_b32 s47, s38, 1"); k("s_add_u32 s47, s47, s40")
    lv = k.label("v")
    k("s_cmp_ge_u32 s47, 9"); k(f"s_cbranch_scc1 {lv}")
    vq0 = list(vq.q)
    for isv in (0, 1):
        if isv: k.put(lv)
        vq.q = list(vq0)
        NB = 8
        mf = []
        for s in range(36):
            c = s // 4; sl = s % 4
            for i in range(4):
                o = (i >> 1)*8192 + sl*2048 + (i & 1)*512
                mf.append(dict(c=c, o=[o, o+256], s=s, acc=accs[i]))
        N = len(mf)
        fill = [[] for _ in range(N+1)]
        def spread(items, g0, g1):
            n = len(items); w = g1 - g0
            for i, it in enumerate(items): fill[g0 + (i*w)//n].append(it)
        for it in center(0): k(it)
        for s in range(35): spread(center(s+1), 4*s, 4*s+4)
        BA = 4
        bar_at = {16*c - BA - 1: c for c in range(1, 9)}
        for c in range(1, 6):
            spread(dma_w(c+3), 16*c - BA, 16*c - BA + 12)
        lq = []; st_ = dict(rp=0, readable=1)
        k(f"v_add_u32 v{vRd[0]}, {SLOT[0]}, v{vA}")
        def issue_reads(g, maxn):
            n = 0
            while st_["rp"] < N and st_["rp"] <= g + DEPTH and mf[st_["rp"]]["c"] < st_["readable"] and n < maxn:
                rp = st_["rp"]; m = mf[rp]; fb = 4*(rp % NB)
                for e in range(2):
                    k(f"ds_read_b64_tr_b16 a[{fb+2*e}:{fb+2*e+1}], v{vRd[m['c']%2]} offset:{m['o'][e]}"); lq.append(rp)
                st_["rp"] += 1; n += 1
        issue_reads(-1, DEPTH)
        for g in range(N):
            m = mf[g]
            if g in lq:
                idx = max(i for i, t in enumerate(lq) if t == g)
                k(f"s_waitcnt lgkmcnt({len(lq)-1-idx})"); del lq[:idx+1]
            fb = 4*(g % NB); acc = m["acc"]; xs = XR + 4*m["s"]
            C = "0" if m["s"] == 0 else f"v[{acc}:{acc+15}]"
            A_, B_ = f"a[{fb}:{fb+3}]", f"v[{xs}:{xs+3}]"
            if isv: A_, B_ = B_, A_
            k(f"v_mfma_f32_32x32x16_bf16 v[{acc}:{acc+15}], {A_}, {B_}, {C}")
            if g in bar_at:
                c = bar_at[g]
                vq.wait(f"w{c}", " lgkmcnt(0)"); lq.clear()
                k("s_barrier")
                k(f"v_add_u32 v{vRd[c%2]}, {SLOT[c%4]}, v{vA}")
                st_["readable"] = c + 1
            issue_reads(g, 2)
            for it in fill[g]: vq.emit(it)
        sp.st()
        V = vT + 4
        k(f"v_add_f32 v{V}, v{V}, v{V+1}"); k(f"v_add_f32 v{V+2}, v{V+2}, v{V+3}"); k(f"v_add_f32 v{V}, v{V}, v{V+2}")
        k(f"v_mov_b32 v{V+1}, v{V}")
        k(f"v_permlane32_swap_b32 v{V}, v{V+1}")
        k(f"v_add_f32 v{V}, v{V}, v{V+1}")
        k(f"v_mov_b32 v{V+1}, {fx(1e-5)}")
        k(f"v_fmac_f32 v{V+1}, {fx(1.0/576)}, v{V}")
        k(f"v_rsq_f32 v{V}, v{V+1}")
        k("s_lshl_b32 s48, s37, 1"); k("s_add_u32 s48, s48, s39")
        if not isv:
            k("s_mul_i32 s49, s48, 73728"); k("s_lshl_b32 s50, s47, 13"); k("s_add_u32 s49, s49, s50")
            qs = (18 ** -0.5) * math.log2(math.e)
            k(f"v_mul_f32 v{V+1}, {fx(qs)}, v{V}")
            for i in range(4):
                k("s_lshl_b32 s50, s47, 2"); k(f"s_add_u32 s50, s50, {i}"); k("s_cmp_lt_u32 s50, 18")
                k("s_cselect_b64 vcc, -1, 0")
                k(f"v_cndmask_b32 v{V+2}, v{V}, v{V+1}, vcc")
                a = accs[i]
                for r in range(16): k(f"v_mul_f32 v{a+r}, v{V+2}, v{a+r}")
                for j in range(8): k(f"v_cvt_pk_bf16_f32 v{XR+8*i+j}, v{a+2*j}, v{a+2*j+1}")
                for q in range(4):
                    k(f"buffer_store_dwordx2 v[{XR+8*i+2*q}:{XR+8*i+2*q+1}], v{vSTQ}, s[24:27], s49 offen offset:{2*q*256}")
                if i < 3: k("s_add_u32 s49, s49, 2048")
        else:
            k("v_and_b32 v26, 31, v2"); k("v_lshlrev_b32 v26, 2, v26"); k("s_lshl_b32 s50, s36, 7"); k(f"s_add_u32 s50, s50, {SPARE}")
            k("v_add_u32 v26, s50, v26")
            k(f"ds_write_b32 v26, v{V}")
            k("v_lshrrev_b32 v27, 5, v2"); k("v_lshlrev_b32 v27, 4, v27"); k("v_add_u32 v27, s50, v27")
            k("s_waitcnt lgkmcnt(0)")
            RS = XR + 64
            for q in range(4): k(f"ds_read_b128 v[{RS+4*q}:{RS+4*q+3}], v27 offset:{32*q}")
            k("s_mul_i32 s49, s48, 36864"); k("s_sub_u32 s50, s47, 9"); k("s_lshl_b32 s50, s50, 11"); k("s_add_u32 s49, s49, s50")
            k("s_add_u32 s51, s49, 18432")
            k("s_waitcnt lgkmcnt(0)")
            for i in range(4):
                if i == 2:
                    k("s_cmp_eq_u32 s47, 13"); k(f"s_cbranch_scc1 {name}_vdone")
                a = accs[i]
                for r in range(16): k(f"v_mul_f32 v{a+r}, v{RS+r}, v{a+r}")
                for j in range(8): k(f"v_cvt_pk_bf16_f32 v{XR+8*i+j}, v{a+2*j}, v{a+2*j+1}")
                k(f"buffer_store_dwordx4 v[{XR+8*i}:{XR+8*i+3}], v{vSTV}, s[28:31], s49 offen offset:{i*512}")
                k(f"buffer_store_dwordx4 v[{XR+8*i+4}:{XR+8*i+7}], v{vSTV}, s[28:31], s51 offen offset:{i*512}")
            k.put(f"{name}_vdone")
        n_save = sp.n
        sp.finish(end, 36, 2, 30, 31)
        if isv == 0:
            k("s_endpgm")
            sp.n = n_save - 1
    k.put(end); k("s_endpgm")
    if pf:
        k.put(f"{name}_pf")
        k(f"s_cmp_ge_u32 s2, 256"); k(f"s_cbranch_scc1 {end}")
        touch_code(k, NWG, 32, pf)
    return k, (name, 256 if pf else NWG, 256, 73728 + 65536 + 1024)
```

```python
from common import *
def gen_k2(name="attn_kernel", stamp=False, pf=0):
    k = Kern(name); end = f"{name}_end"
    sp = Stamper(k, stamp, base=84, trace=1)
    NWG = 512
    KB = 12288; VB = KB + 13*256 + 768
    assert VB == 16384
    LDS = VB + 24*1024
    k(f"s_cmp_ge_u32 s2, {NWG}"); k(f"s_cbranch_scc1 {end}")
    k("s_load_dwordx2 s[10:11], s[0:1], 72")
    if pf:
        for n, (ka, nb) in enumerate(pf): k(f"s_load_dwordx2 s[{40+2*n}:{41+2*n}], s[0:1], {ka}")
    sp.start()
    k("v_lshrrev_b32 v1, 6, v0"); k("v_and_b32 v2, 63, v0")
    k("v_readfirstlane_b32 s36, v1")
    k("s_and_b32 s37, s2, 7"); k("s_lshl_b32 s37, s37, 1"); k("s_bfe_u32 s4, s2, 0x10003"); k("s_or_b32 s37, s37, s4")
    k("s_lshr_b32 s38, s2, 4")
    k("s_lshl_b32 s39, s37, 2"); k("s_sub_u32 s5, s39, 8"); k("s_add_u32 s39, s39, s36")
    k("s_mul_i32 s4, s36, 3"); k("s_add_u32 s5, s5, s4")
    k("s_mul_i32 s6, s38, 9"); k("s_lshr_b32 s6, s6, 1"); k("s_lshl_b32 s6, s6, 8")
    k("s_mul_i32 s7, s39, 73728"); k("s_add_u32 s7, s7, s6")
    k(f"s_add_u32 s6, s6, {144*256}")
    vL16, vKB, vVD, vKr, vKr2, vVr, vQm = 3, 4, 5, 6, 7, 8, 9
    Q = 10
    MP = 16
    T = 24
    FR = 32
    O = 64
    SB = 80
    k(f"v_lshlrev_b32 v{vL16}, 4, v2")
    k("v_lshrrev_b32 v24, 4, v2"); k("v_add_u32 v24, s5, v24"); k("v_max_i32 v24, 0, v24"); k("v_mul_u32_u24 v24, 73728, v24")
    k("v_and_b32 v25, 15, v2"); k(f"v_lshl_add_u32 v{vKB}, v25, 4, v24")
    k("v_lshrrev_b32 v26, 5, v2"); k("v_and_b32 v27, 31, v2")
    k("s_mul_i32 s4, s38, 288")
    k("v_mul_u32_u24 v24, 9216, v26"); k("v_lshl_add_u32 v24, v27, 4, v24"); k(f"v_add_u32 v{vVD}, s4, v24")
    k("v_lshlrev_b32 v24, 3, v27"); k("v_lshl_add_u32 v25, v26, 8, v24")
    k("s_waitcnt lgkmcnt(0)")
    srd(k, 16, 10, QK_BYTES, off=WS_QK); srd(k, 20, 10, V_BYTES, off=WS_V); srd(k, 24, 10, O_BYTES, off=WS_O)
    k("s_mul_i32 s8, s36, 3072");
    for i in range(3):
        k(f"s_add_i32 s{28+i}, s5, {i}"); k(f"s_max_i32 s{28+i}, s{28+i}, 0")
        k(f"s_mul_i32 s9, s{28+i}, 73728"); k("s_add_u32 s9, s9, s6")
        k(f"s_add_u32 m0, s8, {i*1024}")
        k(f"buffer_load_dwordx4 v{vL16}, s[16:19], s9 offen lds")
    k("s_mul_i32 s9, s36, 768"); k(f"s_add_u32 m0, s9, {KB - 1024}")
    k(f"buffer_load_dwordx4 v{vKB}, s[16:19], s6 offen offset:1024 lds")
    for i in range(3):
        k(f"buffer_load_dwordx2 v[{Q+2*i}:{Q+2*i+1}], v25, s[16:19], s7 offen offset:{512*i}")
    k("s_mov_b32 s32, 0x3ffff"); k("s_mov_b32 s33, 0x3ffff"); k("s_mov_b64 exec, s[32:33]")
    k("s_mul_i32 s8, s36, 6144"); k(f"s_add_u32 s8, s8, {VB}")
    for i in range(3):
        k(f"s_mul_i32 s9, s{28+i}, 36864")
        for u in range(2):
            k(f"s_add_u32 m0, s8, {(2*i+u)*1024}")
            if u: k("s_add_u32 s9, s9, 18432")
            k(f"buffer_load_dwordx4 v{vVD}, s[20:23], s9 offen lds")
    if pf:
        k("s_mov_b64 exec, -1")
        k("s_lshl_b32 s48, s36, 9"); k("s_add_u32 s48, s48, s2")
        k(f"s_mov_b32 s14, {pf[0][1]}")
        acc_ = 0
        k("s_mov_b32 s49, 0")
        for j in range(1, len(pf)):
            acc_ += pf[j-1][1] // 8192
            k(f"s_cmp_ge_u32 s48, {acc_}")
            k(f"s_cselect_b32 s40, s{40+2*j}, s40"); k(f"s_cselect_b32 s41, s{41+2*j}, s41")
            k(f"s_cselect_b32 s14, {pf[j][1]}, s14")
            k(f"s_cselect_b32 s49, {acc_}, s49")
        k("s_sub_u32 s48, s48, s49")
        k("s_mov_b32 s12, s40"); k("s_mov_b32 s13, s41"); k("s_mov_b32 s15, 0x00020000")
        k("s_lshl_b32 s48, s48, 13"); k("v_lshlrev_b32 v28, 7, v2")
        k("buffer_load_dword v224, v28, s[12:15], s48 offen")
        k("s_mov_b64 exec, s[32:33]")
    k("s_not_b64 exec, exec")
    for i in range(4): k(f"v_mov_b32 v{FR+i}, 0x3f803f80")
    k(f"v_add_u32 v{vVr}, s8, v{vL16}")
    for i in range(6): k(f"ds_write_b128 v{vVr}, v[{FR}:{FR+3}] offset:{i*1024}")
    k("s_mov_b64 exec, -1")
    k("s_lshl_b32 s4, s36, 10"); k(f"v_add_u32 v{vKr}, s4, v25")
    k("s_lshl_b32 s4, s36, 8"); k(f"s_add_u32 s4, s4, {KB}"); k(f"v_add_u32 v{vKr2}, s4, v24")
    k("s_lshl_b32 s4, s36, 11"); k(f"s_add_u32 s4, s4, {VB}"); k(f"v_add_u32 v{vVr}, s4, v{vL16}")
    k(f"v_lshlrev_b32 v26, 2, v26"); k(f"v_sub_u32 v{vQm}, v27, v26")
    MS = 40
    for r in range(16):
        k(f"v_cmp_le_i32 s[{MS+2*r}:{MS+2*r+1}], {8*(r>>2)+(r&3)}, v{vQm}")
    k("v_mov_b32 v24, 0xffff")
    for j in range(8):
        k(f"v_cndmask_b32 v{MP+j}, 0, v24, s[{MS+4*j}:{MS+4*j+1}]")
        k(f"v_cndmask_b32 v{MP+j}, v{MP+j}, -1, s[{MS+4*j+2}:{MS+4*j+3}]")
    k("s_bitcmp1_b32 s38, 0")
    k("s_cselect_b32 s32, 0, -1"); k("s_mov_b32 s33, -1")
    k("s_cselect_b32 s34, -1, 0"); k("s_mov_b32 s35, 0")
    k("s_mov_b32 s12, -1"); k("s_mov_b32 s13, 0")
    k("s_sub_i32 s14, 8, s39")
    k(f"s_waitcnt vmcnt({6+(1 if pf else 0)})")
    k(f"v_cndmask_b32 v{Q}, 0, v{Q}, s[32:33]")
    k(f"v_cndmask_b32 v{Q+4}, 0, v{Q+4}, s[12:13]")
    k(f"v_cndmask_b32 v{Q+5}, 0, v{Q+5}, s[34:35]")
    k("s_barrier")
    sp.st()
    order = [8, 0, 1, 2, 3, 4, 5, 6, 7]
    def S(t): return SB + 16*t
    def kread(i):
        t = order[i]; f = FR + 8*(i % 4)
        k(f"ds_read_b64 v[{f}:{f+1}], v{vKr} offset:{t*1024}")
        k(f"ds_read_b64 v[{f+2}:{f+3}], v{vKr} offset:{t*1024+512}")
        k(f"ds_read_b64 v[{f+4}:{f+5}], v{vKr2} offset:{t*256}")
    for i in range(3): kread(i)
    ool = []
    work = []
    for r in range(16): work.append((2, f"v_cndmask_b32 v{S(8)+r}, v{S(0)+r}, v{S(8)+r}, s[{MS+2*r}:{MS+2*r+1}]"))
    MX = [T, T+1, T+2, T+3]
    first = [True]*4
    for i, t in enumerate(order):
        if t == 0: continue
        for j in range(8):
            c = j % 4; a = S(t) + 2*j
            if first[c]: work.append((max(i, 1)+1, f"v_max_f32 v{MX[c]}, v{a}, v{a+1}")); first[c] = False
            else: work.append((max(i, 1)+1, f"v_max3_f32 v{MX[c]}, v{a}, v{a+1}, v{MX[c]}"))
    wp = 0
    for i, t in enumerate(order):
        f = FR + 8*(i % 4)
        nlater = min(2, 8 - i) * 3
        k(f"s_waitcnt lgkmcnt({nlater})")
        if t < 8:
            ln = k.label("neg"); lb = k.label("back")
            k(f"s_cmp_gt_i32 s14, {t}"); k(f"s_cbranch_scc1 {ln}")
            ool.append((ln, lb, t))
        k(f"v_mfma_f32_32x32x16_bf16 v[{S(t)}:{S(t)+15}], v[{f}:{f+3}], v[{Q}:{Q+3}], 0")
        k(f"v_mfma_f32_32x32x8_bf16 v[{S(t)}:{S(t)+15}], v[{f+4}:{f+5}], v[{Q+4}:{Q+5}], v[{S(t)}:{S(t)+15}]")
        if t < 8: k.put(lb)
        if i + 3 < 9: kread(i + 3)
        n = 0
        while wp < len(work) and work[wp][0] <= i and n < 12:
            k(work[wp][1]); wp += 1; n += 1
    k(f"s_waitcnt vmcnt({1 if pf else 0})")
    k("s_barrier")
    pv = [(1, S(1)), (2, S(2)), (3, S(3)), (4, S(4)), (5, S(5)), (6, S(6)), (7, S(7)), (8, S(8)), (0, S(0))]
    def vread(i):
        t = pv[i][0]; f = FR + 8*(i % 4)
        for u in range(2): k(f"ds_read_b128 v[{f+4*u}:{f+4*u+3}], v{vVr} offset:{(2*t+u)*1024}")
    for i in range(3): vread(i)
    while wp < len(work): k(work[wp][1]); wp += 1
    k(f"v_max_f32 v{T}, v{T}, v{T+1}"); k(f"v_max3_f32 v{T}, v{T+2}, v{T+3}, v{T}")
    k(f"v_mov_b32 v{T+1}, v{T}")
    k(f"v_permlane32_swap_b32 v{T}, v{T+1}")
    k(f"v_max_f32 v{T}, v{T}, v{T+1}")
    sp.st()
    def soft(t, half):
        out = []; b = S(t) + 8*half
        for r in range(8): out.append(f"v_sub_f32 v{b+r}, v{b+r}, v{T}")
        for r in range(8): out.append(f"v_exp_f32 v{b+r}, v{b+r}")
        for j in range(4):
            d = S(t) + 4*half + j
            out.append(f"v_cvt_pk_bf16_f32 v{d}, v{b+2*j}, v{b+2*j+1}")
        if t == 8:
            for j in range(4):
                d = S(t) + 4*half + j; e = S(0) + 4*half + j
                out.append(f"v_bfi_b32 v{e}, v{MP+4*half+j}, 0, v{d}")
                out.append(f"v_and_b32 v{d}, v{MP+4*half+j}, v{d}")
        return out
    steps = [(i, u) for i in range(9) for u in range(2)]
    for x in soft(1, 0): k(x)
    for n, (i, u) in enumerate(steps):
        t, P = pv[i]; f = FR + 8*(i % 4)
        if u == 0:
            k(f"s_waitcnt lgkmcnt({min(2, 8-i)*2})")
        nxt = steps[n+1] if n + 1 < len(steps) else None
        if nxt is not None and pv[nxt[0]][0] != 0:
            w = soft(pv[nxt[0]][0], nxt[1])
        else: w = []
        for x in w[:2]: k(x)
        C = "0" if n == 0 else f"v[{O}:{O+15}]"
        k(f"v_mfma_f32_32x32x16_bf16 v[{O}:{O+15}], v[{f+4*u}:{f+4*u+3}], v[{P+4*u}:{P+4*u+3}], {C}")
        if u == 1 and i + 3 < 9: vread(i + 3)
        for x in w[2:]: k(x)
    k("s_mul_i32 s4, s39, 36864"); k("s_lshl_b32 s5, s38, 10"); k("s_add_u32 s5, s5, s4")
    k("s_lshr_b32 s6, s38, 2"); k("s_lshl_b32 s6, s6, 9"); k("s_and_b32 s7, s38, 3"); k("s_lshl_b32 s7, s7, 2")
    k("s_add_u32 s6, s6, s7"); k("s_add_u32 s6, s6, s4"); k("s_add_u32 s6, s6, 32768")
    k(f"v_rcp_f32 v{T}, v{O+10}")
    for r in range(10): k(f"v_mul_f32 v{O+r}, v{O+r}, v{T}")
    for j in range(5): k(f"v_cvt_pk_bf16_f32 v{FR+j}, v{O+2*j}, v{O+2*j+1}")
    k(f"buffer_store_dwordx4 v[{FR}:{FR+3}], v{vL16}, s[24:27], s5 offen")
    k("s_mov_b64 exec, s[12:13]")
    k(f"buffer_store_dword v{FR+4}, v{vL16}, s[24:27], s6 offen")
    k("s_mov_b64 exec, -1")
    sp.finish(end, 36, 2, 30, 31)
    k.put(end); k("s_endpgm")
    for (ln, lb, t) in ool:
        k.put(ln)
        for r in range(16): k(f"v_mov_b32 v{S(t)+r}, {fx(-1e30)}")
        k(f"s_branch {lb}")
    return k, (name, NWG, 256, LDS)
```

```python
from common import *
def gen_k3(name="proj_kernel", stamp=False, DEPTH=6, smod="", cs=False, pfd=False):
    k = Kern(name); end = f"{name}_end"
    sp = Stamper(k, stamp, trace=2)
    NWG = 144
    XB = 73728; LDS = XB + 16384
    k(f"s_cmp_ge_u32 s2, {NWG}"); k(f"s_cbranch_scc1 {name}_cs" if cs else f"s_cbranch_scc1 {end}")
    k("s_load_dwordx2 s[4:5], s[0:1], 0")
    k("s_load_dwordx2 s[6:7], s[0:1], 16")
    k("s_load_dwordx2 s[10:11], s[0:1], 72")
    sp.start()
    k("v_lshrrev_b32 v1, 6, v0"); k("v_and_b32 v2, 63, v0")
    k("v_readfirstlane_b32 s36, v1")
    k("s_and_b32 s37, s2, 7"); k("s_lshl_b32 s37, s37, 1"); k("s_bfe_u32 s8, s2, 0x10003"); k("s_or_b32 s37, s37, s8")
    k("s_lshr_b32 s38, s2, 4")
    k("s_lshl_b32 s39, s37, 2"); k("s_add_u32 s39, s39, s36")
    k("s_mul_i32 s40, s39, 36864")
    k("s_lshl_b32 s41, s38, 7")
    vL16, vW1, vW2, vDX0, vDX1, vA, vXR = 3, 4, 5, 6, 7, 8, 9
    T = 16
    ACC = [32, 48]; XV = 64
    k(f"v_lshlrev_b32 v{vL16}, 4, v2")
    k("v_and_b32 v16, 3, v2"); k("v_lshlrev_b32 v16, 4, v16"); k("v_lshrrev_b32 v18, 5, v2"); k("v_lshl_add_u32 v16, v18, 6, v16")
    k("v_bfe_u32 v17, v2, 2, 3")
    k(f"v_mul_u32_u24 v{vW1}, 1152, v17"); k(f"v_add_u32 v{vW1}, v{vW1}, v16")
    k("v_lshrrev_b32 v19, 2, v17"); k("v_mul_u32_u24 v19, 72, v19"); k("v_bfe_u32 v20, v17, 1, 1"); k("v_mul_u32_u24 v20, 18, v20")
    k("v_and_b32 v21, 1, v17"); k("v_add3_u32 v19, v19, v20, v21"); k("v_add_u32 v19, 16, v19")
    k(f"v_mul_u32_u24 v{vW2}, 1152, v19"); k(f"v_add_u32 v{vW2}, v{vW2}, v16")
    k("v_lshrrev_b32 v16, 3, v2"); k("v_and_b32 v17, 7, v2"); k("v_lshrrev_b32 v19, 1, v16"); k("v_xor_b32 v17, v17, v19")
    k("v_mul_u32_u24 v16, 1152, v16")
    k(f"v_lshl_add_u32 v{vDX0}, v17, 4, v16"); k("v_xor_b32 v17, 4, v17"); k(f"v_lshl_add_u32 v{vDX1}, v17, 4, v16")
    k("v_bfe_u32 v16, v2, 2, 2"); k("v_lshlrev_b32 v16, 6, v16")
    k("v_bfe_u32 v17, v2, 4, 1"); k("v_lshl_add_u32 v16, v17, 5, v16")
    k("v_and_b32 v17, 3, v2"); k("v_lshl_add_u32 v16, v17, 3, v16")
    k(f"v_lshl_add_u32 v{vA}, v18, 8, v16")
    k("v_and_b32 v16, 31, v2"); k("v_lshlrev_b32 v17, 7, v16"); k("v_lshl_add_u32 v17, v18, 3, v17")
    k("s_lshl_b32 s8, s36, 12"); k(f"s_add_u32 s8, s8, {XB}"); k("v_add_u32 v17, s8, v17")
    k("v_bfe_u32 v19, v16, 1, 3"); k(f"v_lshl_add_u32 v{vXR}, v19, 4, v17")
    k("s_waitcnt lgkmcnt(0)")
    srd(k, 16, 4, S*D*2); srd(k, 20, 6, D*D*2)
    srd(k, 24, 10, O_BYTES, off=WS_O); srd(k, 28, 10, H_BYTES, off=WS_H); srd(k, 32, 10, ST_BYTES, off=WS_ST)
    vq = VQ(k)
    k("s_lshr_b32 s8, s36, 1"); k("s_mul_i32 s8, s8, 18"); k("s_and_b32 s9, s36, 1"); k("s_lshl_b32 s42, s9, 3"); k("s_add_u32 s8, s8, s42")
    k("s_mul_i32 s42, s8, 1152"); k("s_add_u32 s42, s42, s41")
    k("s_lshr_b32 s8, s36, 1"); k("s_mul_i32 s8, s8, 144"); k("s_mul_i32 s9, s9, 36"); k("s_add_u32 s8, s8, s9")
    k("s_mul_i32 s43, s8, 1152"); k("s_add_u32 s43, s43, s41")
    k("s_lshl_b32 s44, s36, 10")
    GR = [(0, 6), (6, 12), (12, 18)]
    def wdma(i):
        k(f"s_add_u32 m0, s44, {i*4096}")
        if i < 16:
            k(f"s_add_u32 s45, s42, {36*i*1152}")
            vq(f"w{i//6}", f"buffer_load_dwordx4 v{vW1}, s[20:23], s45 offen lds")
        else:
            k(f"s_add_u32 s45, s43, {288*(i-16)*1152}")
            vq(f"w{i//6}", f"buffer_load_dwordx4 v{vW2}, s[20:23], s45 offen lds")
    def oload(s):
        if s % 4 == 0: k(f"s_add_u32 s46, s40, {s*1024}")
        vq(f"o{s}", f"buffer_load_dwordx4 a[{32+4*s}:{32+4*s+3}], v{vL16}, s[24:27], s46 offen offset:{(s%4)*1024}")
    for g in range(3):
        for i in range(6*g, 6*g+6): wdma(i)
        for s in range(12*g, 12*g+12): oload(s)
    k("s_lshl_b32 s8, s36, 12"); k(f"s_add_u32 s8, s8, {XB}"); k("s_add_u32 s9, s40, s41")
    for rg in range(4):
        k(f"s_add_u32 m0, s8, {rg*1024}"); k(f"s_add_u32 s45, s9, {rg*8*1152}")
        vq("x", f"buffer_load_dwordx4 v{vDX0 if rg % 2 == 0 else vDX1}, s[16:19], s45 offen lds")
    mf = [(s, dt) for s in range(36) for dt in range(2)]
    N = len(mf); NB = 8
    lq = []; st_ = dict(rp=0, readable=0)
    def issue_reads(g, maxn):
        n = 0
        while st_["rp"] < N and st_["rp"] <= g + DEPTH and mf[st_["rp"]][0] < st_["readable"] and n < maxn:
            rp = st_["rp"]; s, dt = mf[rp]; fb = 4*(rp % NB)
            for e in range(2):
                off = (2*s+e)*1024 + dt*512
                va = vA if off < 65536 else 10
                k(f"ds_read_b64_tr_b16 a[{fb+2*e}:{fb+2*e+1}], v{va} offset:{off % 65536}"); lq.append(rp)
            st_["rp"] += 1; n += 1
    k(f"v_add_u32 v10, 0x10000, v{vA}")
    def bar(g):
        vq.wait(f"w{g}"); k("s_barrier"); st_["readable"] = 12*(g+1)
    bar(0); sp.st()
    issue_reads(-1, DEPTH)
    for g in range(N):
        s, dt = mf[g]
        w = ""
        if g in lq:
            idx = max(i for i, t in enumerate(lq) if t == g)
            w = f"lgkmcnt({len(lq)-1-idx})"; del lq[:idx+1]
        if dt == 0: w = f"vmcnt({vq.n(f'o{s}')}) " + w
        if w: k("s_waitcnt " + w)
        fb = 4*(g % NB); a = ACC[dt]
        C = "0" if s == 0 else f"v[{a}:{a+15}]"
        k(f"v_mfma_f32_32x32x16_bf16 v[{a}:{a+15}], a[{fb}:{fb+3}], a[{32+4*s}:{32+4*s+3}], {C}")
        if g == 24 - 5: bar(1)
        if g == 48 - 5: bar(2)
        issue_reads(g, 2)
        if g == N - 3:
            vq.wait("x")
            for c in range(8):
                k(f"v_xor_b32 v{T+c}, {c*16}, v{vXR}")
            for c in range(8):
                k(f"ds_read_b64 v[{XV+2*c}:{XV+2*c+1}], v{T+c}"); lq.append(-1)
    sp.st()
    k("s_waitcnt lgkmcnt(0)")
    k("s_lshl_b32 s8, s38, 12"); k("s_add_u32 s8, s8, s40")
    k(f"v_mov_b32 v{T}, 0"); k(f"v_mov_b32 v{T+1}, 0"); k(f"v_mov_b32 v{T+2}, 0"); k(f"v_mov_b32 v{T+3}, 0")
    for dt in range(2):
        a = ACC[dt]
        for q in range(4):
            c = 4*dt + q
            for i in range(2):
                x = XV + 2*c + i; r = a + 4*q + 2*i
                k(f"v_lshlrev_b32 v{T+4}, 16, v{x}"); k(f"v_and_b32 v{T+5}, 0xffff0000, v{x}")
                k(f"v_add_f32 v{r}, v{r}, v{T+4}"); k(f"v_add_f32 v{r+1}, v{r+1}, v{T+5}")
                k(f"v_cvt_pk_bf16_f32 v{x}, v{r}, v{r+1}")
                k(f"v_add_f32 v{T}, v{T}, v{r}"); k(f"v_add_f32 v{T+2}, v{T+2}, v{r+1}")
                k(f"v_fmac_f32 v{T+1}, v{r}, v{r}"); k(f"v_fmac_f32 v{T+3}, v{r+1}, v{r+1}")
            if q % 2 == 1:
                u = q // 2; x0 = XV + 8*dt + 4*u
                k(f"buffer_store_dwordx4 v[{x0}:{x0+3}], v{vL16}, s[28:31], s8 offen offset:{(2*dt+u)*1024} {smod}")
    k(f"v_add_f32 v{T}, v{T}, v{T+2}"); k(f"v_add_f32 v{T+1}, v{T+1}, v{T+3}")
    k(f"v_mov_b32 v{T+2}, v{T}"); k(f"v_mov_b32 v{T+3}, v{T+1}")
    k(f"v_permlane32_swap_b32 v{T}, v{T+2}"); k(f"v_permlane32_swap_b32 v{T+1}, v{T+3}")
    k(f"v_add_f32 v{T}, v{T}, v{T+2}"); k(f"v_add_f32 v{T+1}, v{T+1}, v{T+3}")
    k("s_mul_i32 s8, s39, 2304"); k("s_lshl_b32 s9, s38, 8"); k("s_add_u32 s8, s8, s9")
    k(f"v_lshlrev_b32 v{T+4}, 3, v2")
    k("s_mov_b32 exec_hi, 0")
    k(f"buffer_store_dwordx2 v[{T}:{T+1}], v{T+4}, s[32:35], s8 offen {smod}")
    k("s_mov_b64 exec, -1")
    sp.finish(end, 36, 2, 30, 31)
    k.put(end); k("s_endpgm")
    if cs:
        k.put(f"{name}_cs")
        k(f"s_cmp_ge_u32 s2, {NWG+72}"); k(f"s_cbranch_scc1 {name}_pf" if pfd else f"s_cbranch_scc1 {end}")
        colsum_code(k, NWG, end)
        if pfd:
            k.put(f"{name}_pf")
            k(f"s_cmp_ge_u32 s2, 256"); k(f"s_cbranch_scc1 {end}")
            touch_code(k, NWG+72, 40, [(48, D*F*2)])
    return k, (name, (256 if pfd else NWG+72) if cs else NWG, 256, LDS)
```

```python
from mkall import *
from ffn2 import *
WG_, WU_, WD_, WO_ = (32, D*F*2), (40, D*F*2), (48, D*F*2), (16, D*D*2)
def be(fn, stamp=True, pf1=[WO_, WG_], pf2=[WU_], pfd=True, lgk0=False, BAR_AHEAD=6, rl=None, rlm='', **kw):
    ks = [gen_k1(stamp=stamp, pf=pf1), gen_k2(stamp=stamp, pf=pf2, fill=0 if kw.get('selfill', True) else 5, rl=rl, rlm=rlm)]
    ks += [gen_k3(stamp=stamp, cs=True, pfd=pfd), gen_ffn2(stamp=stamp, lgk0=lgk0, BAR_AHEAD=BAR_AHEAD, rl=rl is not None, **kw)]
    open(fn, "w").write(emit_file([k for k, l in ks], [l for k, l in ks], header=hdr))
```

```python
from mke import *
be("p1.s", False, pf1=[WO_, WG_], pf2=[WU_], pfd=True)
be("p2.s", False, pf1=[WO_, WG_, WU_], pf2=0, pfd=True)
be("p3.s", False, pf1=[WO_, WG_, WU_], pf2=[WD_])
be("p4.s", False, pf1=[WO_, WG_], pf2=[WU_, WD_])
be("p5.s", False, pf1=[WO_, WG_], pf2=[WU_])
```

```python
from common import *
import copy
CH = 36864
CSB = 4*CH

def gen_ffn2(name="ffn_kernel", DEPTH=8, BAR_AHEAD=4, NB=10, stamp=False, SB=0, DSP=27, lgk0=True, nodma=False, nox=False, nohs=False, P=None, marks=None, nobar=False, hst='sc1', hld='sc1', wb=None, selfill=True, prof=None, l2pf=None, rl=False):
    P = dict(dict(ld6=.55, chk6=.15, ld7=.25, chk7=.85, sched=1, sf0=4.5, sf1=5.9, sfst=1), **(P or {}))
    k = Kern(name); end = f"{name}_end"
    tl = TL(k, stamp, 72, 100, 3)
    k(f"s_cmp_ge_u32 s2, 256"); k(f"s_cbranch_scc1 {end}")
    k("s_load_dwordx4 s[4:7], s[0:1], 32")
    k("s_load_dwordx4 s[28:31], s[0:1], 48")
    k("s_load_dwordx2 s[10:11], s[0:1], 72")
    tl.start()
    k("v_lshrrev_b32 v1, 6, v0"); k("v_and_b32 v2, 63, v0")
    k("v_readfirstlane_b32 s36, v1")
    k("s_and_b32 s37, s2, 3")
    k("s_bfe_u32 s38, s2, 0x20003")
    k("s_bfe_u32 s3, s2, 0x10002"); k("s_lshl_b32 s3, s3, 3"); k("s_lshr_b32 s8, s2, 5"); k("s_add_u32 s3, s3, s8")
    k("s_lshl_b32 s39, s3, 2"); k("s_add_u32 s39, s39, s36")
    k("s_lshl_b32 s40, s37, 2"); k("s_add_u32 s40, s40, s38")
    k("s_lshl_b32 s41, s36, 10")
    vDP, vDL, vDD, vA2, vST, vR2, vCS, vDL2, vFL, vPL, vCL = 3, 4, 5, 6, 7, 8, 9, 12, 13, 14, 1
    vRd = [10, 11]
    T = 16; MB = 28
    k("s_mul_i32 s57, s40, 288"); k("s_and_b32 s56, s40, 1")
    k("s_lshl_b32 s58, s56, 5"); k("s_add_u32 s58, s58, s57")
    k("s_mul_i32 s60, s36, 73728"); k("s_lshl_b32 s57, s58, 1"); k("s_add_u32 s60, s60, s57")
    k("s_mul_i32 s66, s39, 36864")
    k("v_and_b32 v16, 3, v2"); k("v_lshlrev_b32 v16, 4, v16")
    k("v_bfe_u32 v15, v2, 2, 3")
    k("v_lshrrev_b32 v17, 5, v2"); k("v_lshlrev_b32 v17, 6, v17")
    k("v_add_u32 v17, v17, v16")
    k(f"v_mul_u32_u24 v{vDP}, 9216, v15"); k(f"v_add_u32 v{vDP}, v{vDP}, v17")
    k(f"v_lshlrev_b32 v{vST}, 4, v2")
    k("s_cmp_lt_u32 s36, 2"); k(f"s_cselect_b32 s3, {144*9216}, 0")
    k("s_waitcnt lgkmcnt(0)")
    tl.mark("t0", True)
    srd(k, 16, 4, D*F*2); srd(k, 20, 6, D*F*2); srd(k, 12, 10, WS_BYTES); srd(k, 24, 28, D*F*2); srd(k, 32, 30, S*D*2)
    k("s_cselect_b32 s28, s4, s6"); k("s_cselect_b32 s29, s5, s7"); k(f"s_mov_b32 s30, {D*F*2:#x}"); k("s_mov_b32 s31, 0x00020000")
    k("s_add_u32 s5, s60, s3"); k(f"s_sub_u32 s5, s5, {16*9216}")
    G0, G1, U0, U1 = 32, 48, 64, 80
    HO = 96; STG = 240; XA = 4*NB
    assert XA + 144 + 72 <= 256
    def hreg(x, t):
        if x == 0: return ("v", HO + 8*t)
        if t < 6:
            idx = (x-1)*6 + t
            return ("v", 168 + 8*idx) if idx < 9 else ("a", XA + 144 + 8*(idx-9))
        return ("a", XA + ((x-1)*3 + t - 6)*8)
    def hop(x, t, u):
        c, r = hreg(x, t); return f"{c}[{r+4*u}:{r+4*u+3}]"
    vq = VQ(k)
    chunks = [("Q", p, q) for p in range(4) for q in range(4)] + [("L", "g"), ("L", "u")]
    A_t = [[(0, t) for t in range(9)],
           [(1, 0), (1, 1), (1, 2), (1, 3), (2, 0), (2, 1), (2, 2), (2, 3), (3, 0)],
           [(3, 1), (3, 2), (3, 3), (1, 4), (1, 5), (2, 4), (2, 5), (3, 4), (3, 5)],
           [(1, 6), (1, 7), (2, 6), (2, 7), (3, 6), (3, 7), (1, 8), (2, 8), (3, 8)]]
    pr = lambda x, ps: [("p", x, p) for p in ps]
    UN = dict(Ce=pr(0, range(4)) + pr(1, (0, 1)) + pr(2, (0, 1)) + pr(3, (0,)),
              R=pr(0, range(4)) + pr(1, range(4)) + [("l", 0)],
              Cl=pr(3, (1,)) + [("p", x, p) for p in (2, 3) for x in (1, 2, 3)] + [("l", 0), ("l", 1)],
              O0=pr(0, range(4)) + pr(1, range(4)) + [("l", 0)], O1=pr(2, range(4)) + pr(3, range(4)) + [("l", 1)])
    chunks += [("A", 0), ("A", 1), ("A", 2), ("N", "Ce"), ("N", "R"), ("A", 3), ("N", "Cl"), ("N", "O0"), ("N", "O1")]
    NC = len(chunks)
    def dma_instrs(c):
        ch = chunks[c]; slot = c % 4; out = []
        for j in range(9):
            pre = []
            if ch[0] == "L":
                so = f"s_add_u32 s9, s61, {64*j*9216}"; srdn = 16 if ch[1] == "g" else 20; vo = vDL
                if rl: so = f"s_add_u32 s9, s61, {4096*j + (ch[1] == 'u')*16*36864}"; srdn = 12; vo = vST
            elif ch[0] == "Q":
                p, q = ch[1], ch[2]; vo = vDP
                if j < 4: so = f"s_add_u32 s9, s60, {(144*q + 32*j)*9216 + 128*p}"; srdn = 16
                elif j == 4: so = f"s_add_u32 s9, s5, {144*q*9216 + 128*p}"; srdn = 28
                else: so = f"s_add_u32 s9, s60, {(144*q + 8*(4*j-18))*9216 + 128*p}"; srdn = 20
            elif ch[0] == "A":
                x, t = A_t[ch[1]][j]
                so = f"s_add_u32 s9, s{42+x}, {32*t*1152}" if t < 8 else f"s_mov_b32 s9, s{46+x}"; srdn = 24; vo = vDD
            else:
                un = UN[ch[1]][j]
                so = f"s_add_u32 s9, s{50+un[1]}, {64*un[2]*1152}" if un[0] == "p" else f"s_mov_b32 s9, s{54+un[1]}"; srdn = 24; vo = vDL
                if rl:
                    srdn = 12
                    if un[0] == "p": so = f"s_add_u32 s9, s{50+un[1]}, {4096*un[2]}"
                if j == 0 and ch[1] != "O1":
                    if ch[1] == "R": pre = ["s_and_b32 s8, s38, 1", "s_add_u32 s8, s8, 16"]
                    elif ch[1][0] == "C": pre = ["s_xor_b32 s8, s37, 1", "s_lshl_b32 s9, s38, 2", "s_add_u32 s8, s8, s9"]
                    else: pre = ["s_lshl_b32 s9, s38, 2", "s_add_u32 s8, s37, s9"]
                    pre += ["s_lshl_b32 s8, s8, 6", f"v_add_u32 v{vDL}, s8, v{vDL2}"] if not rl else ["s_mul_i32 s8, s8, 294912", f"v_add_u32 v{vDL}, s8, v{vST}"]
            if nodma and c >= 4 and j > 0: continue
            out.append(pre + [f"s_add_u32 m0, s41, {slot*CH + j*4096}", so, ("vm", f"dma{c}", f"buffer_load_dwordx4 v{vo}, s[{srdn}:{srdn+3}], s9 offen lds")])
        return out
    def hload(s):
        return [f"s_add_u32 s9, s66, {WS_H + (s//4)*4096:#x}",
                ("vm", f"h{s}", f"buffer_load_dwordx4 a[{XA+4*s}:{XA+4*s+3}], v{vST}, s[12:15], s9 offen offset:{(s%4)*1024}")]
    d0 = dma_instrs(0)
    vq.emit(d0)
    for s in range(9): vq.emit(hload(s))
    vq.emit(dma_instrs(1))
    k("s_lshr_b32 s8, s37, 1"); k("s_xor_b32 s8, s8, 1"); k("s_lshl_b32 s9, s38, 1"); k("s_add_u32 s8, s8, s9"); k("s_lshl_b32 s8, s8, 7")
    k("s_mul_i32 s9, s36, 9216"); k("s_add_u32 s8, s8, s9")
    k("s_lshl_b32 s9, s9, 1")
    for x in range(4):
        k(f"s_xor_b32 s56, s40, {x}"); k("s_mul_i32 s57, s56, 288"); k("s_and_b32 s56, s56, 1")
        k("s_lshl_b32 s58, s56, 5"); k("s_add_u32 s58, s58, s57")
        k("s_xor_b32 s56, s56, 1"); k("s_lshl_b32 s56, s56, 8"); k("s_add_u32 s56, s56, s57")
        if x == 0 and not rl:
            k("s_mul_i32 s61, s36, 147456"); k("s_lshl_b32 s57, s56, 1"); k("s_add_u32 s61, s61, s57")
        if rl:
            k(f"s_lshl_b32 s{50+x}, s58, 6"); k(f"s_add_u32 s{50+x}, s{50+x}, s41"); k(f"s_add_u32 s{50+x}, s{50+x}, {WS_WD2:#x}")
            k("s_lshl_b32 s57, s56, 6")
        k("s_mul_i32 s58, s58, 1152"); k("s_mul_i32 s56, s56, 1152")
        k(f"s_add_u32 s{42+x}, s58, s8"); k(f"s_add_u32 s{46+x}, s56, s8")
        if not rl: k(f"s_add_u32 s{50+x}, s58, s9")
        sl_ = "s57" if rl else "s56"
        if x % 2 == 0: k(f"s_mov_b32 s{54+x//2}, {sl_}")
        else:
            k("s_cmp_ge_u32 s36, 2"); k(f"s_cselect_b32 s{54+x//2}, {sl_}, s{54+x//2}")
    if rl:
        k("s_and_b32 s9, s36, 1"); k("s_lshl_b32 s9, s9, 10"); k(f"s_add_u32 s9, s9, {WS_WD2:#x}"); k("s_add_u32 s54, s54, s9"); k("s_add_u32 s55, s55, s9")
        k("s_mul_i32 s61, s40, 36864"); k("s_add_u32 s61, s61, s41"); k(f"s_add_u32 s61, s61, {WS_WL:#x}")
    else:
        k("s_and_b32 s9, s36, 1"); k("s_mul_i32 s9, s9, 18432"); k("s_add_u32 s54, s54, s9"); k("s_add_u32 s55, s55, s9")
    k("s_lshl_b32 s8, s39, 4")
    for x in range(4):
        k(f"s_xor_b32 s9, s40, {x}"); k("s_add_u32 s9, s9, s8"); k("s_mul_i32 s9, s9, 18432"); k(f"s_add_u32 s{62+x}, s9, {WS_HX:#x}")
    k("s_lshl_b32 s67, s39, 7"); k(f"s_add_u32 s67, s67, {WS_FLAG:#x}")
    k(f"s_mul_i32 s68, s39, {80*2048}"); k(f"s_add_u32 s68, s68, {WS_PT:#x}")
    k(f"v_mul_u32_u24 v{vDD}, 1152, v15"); k(f"v_add_u32 v{vDD}, v{vDD}, v17")
    k("v_lshrrev_b32 v15, 2, v2"); k(f"v_mul_u32_u24 v{vDL}, 9216, v15"); k(f"v_add_u32 v{vDL}, v{vDL}, v16")
    k(f"v_mul_u32_u24 v{vDL2}, 1152, v15"); k(f"v_add_u32 v{vDL2}, v{vDL2}, v16")
    k("v_bfe_u32 v16, v2, 2, 2"); k("v_lshlrev_b32 v16, 6, v16")
    k("v_bfe_u32 v15, v2, 4, 1"); k("v_lshl_add_u32 v16, v15, 5, v16")
    k("v_and_b32 v15, 3, v2"); k("v_lshl_add_u32 v16, v15, 3, v16")
    k("v_lshrrev_b32 v15, 5, v2")
    k(f"v_lshl_add_u32 v{vA2}, v15, 8, v16")
    k(f"v_and_b32 v{vFL}, 15, v2"); k(f"v_lshlrev_b32 v{vFL}, 2, v{vFL}")
    k("v_and_b32 v17, 31, v2"); k("v_lshlrev_b32 v17, 3, v17")
    k("s_and_b32 s8, s40, 1"); k("s_lshl_b32 s9, s8, 8"); k(f"s_add_u32 s9, s9, {CSB}"); k(f"v_add_u32 v{vCS}, s9, v17")
    k("s_xor_b32 s8, s8, 1"); k("s_lshl_b32 s9, s8, 11"); k(f"s_add_u32 s9, s9, {CSB}"); k(f"v_add_u32 v{vCL}, s9, v17")
    k("s_lshl_b32 s8, s37, 2"); k("s_lshl_b32 s56, 15, s8"); k("s_lshl_b32 s9, 1, s40"); k("s_andn2_b32 s56, s56, s9"); k("s_mov_b32 s57, 0")
    k("s_xor_b32 s8, s40, 8"); k("s_lshl_b32 s58, 1, s8"); k("s_xor_b32 s8, s40, 12"); k("s_lshl_b32 s8, 1, s8"); k("s_or_b32 s58, s58, s8")
    k("s_and_b32 s8, s38, 1"); k("s_lshl_b32 s8, 0x5555, s8"); k("s_andn2_b32 s8, s8, s9")
    k("s_cmp_eq_u32 s36, s37"); k("s_cselect_b32 s58, s8, s58"); k("s_mov_b32 s59, 0")
    k("s_xor_b32 s8, s40, 4"); k("s_lshl_b32 s70, 1, s8"); k("s_mov_b32 s71, 0")
    k("s_lshl_b32 s69, s40, 2"); k("s_add_u32 s69, s69, s67")
    k("s_mul_i32 s39, s39, 2304"); k(f"s_add_u32 s39, s39, {WS_ST:#x}")
    SR = [STG + 2*i for i in range(8)] + [T + 8]
    stats_ld = [("vm", "st", f"buffer_load_dwordx2 v[{SR[i]}:{SR[i]+1}], v17, s[12:15], s39 offen offset:{256*i}") for i in range(9)]
    cs_ld = [[f"s_add_u32 m0, s41, {CSB}", "s_mul_i32 s9, s40, 2304", "s_add_u32 s9, s9, s41", f"s_add_u32 s9, s9, {WS_CS:#x}",
              ("vm", "cs", f"buffer_load_dwordx4 v{vST}, s[12:15], s9 offen lds")]]
    a0, a1 = SR[0], SR[0]+1
    stats_calc = [("wait", "st")]
    for i in range(1, 9): stats_calc += [f"v_add_f32 v{a0}, v{a0}, v{SR[i]}", f"v_add_f32 v{a1}, v{a1}, v{SR[i]+1}"]
    stats_calc += [f"v_mul_f32 v{a0}, {fx(-1.0/576)}, v{a0}", f"v_mul_f32 v{a1}, {fx(1.0/576)}, v{a1}",
                   f"v_fma_f32 v{a1}, -v{a0}, v{a0}, v{a1}", f"v_max_f32 v{a1}, 0, v{a1}", f"v_add_f32 v{a1}, {fx(1e-5)}, v{a1}",
                   f"v_rcp_f32 v{vR2}, v{a1}",
                   f"v_cvt_pk_bf16_f32 v{MB}, v{a0}, v{a0}", f"v_lshlrev_b32 v{a1}, 16, v{MB}", f"v_sub_f32 v{a0}, v{a0}, v{a1}",
                   f"v_cvt_pk_bf16_f32 v{MB+3}, v{a0}, v{a0}", f"v_cmp_lt_u32 vcc, 31, v2", f"v_cndmask_b32 v{MB}, v{MB}, v{MB+3}, vcc",
                   f"v_mov_b32 v{MB+1}, 0", f"v_mov_b32 v{MB+2}, 0", f"v_mov_b32 v{MB+3}, v{MB}"]
    ool = []
    def emit(it):
        if isinstance(it, tuple) and it[0] == "wait": pwait(f"s_waitcnt vmcnt({vq.n(it[1])})", "fin" if it[1] != "fh" else "")
        elif isinstance(it, tuple) and it[0] == "call": it[1]()
        elif isinstance(it, list):
            for x in it: emit(x)
        else: vq.emit(it)
    def publish(stage, tag):
        def f():
            pwait(f"s_waitcnt vmcnt({min(vq.n(t) for t in (tag if isinstance(tag, list) else [tag]))})", "pub")
            k(f"v_mov_b32 v15, {SB+stage}")
            k("s_mov_b64 exec, 1")
            vq("fl", f"buffer_store_dword v15, off, s[12:15], s69 sc1")
            k("s_mov_b64 exec, -1")
        return ("call", f)
    def poll_issue(n):
        return ("vm", f"poll{n}", f"buffer_load_dword v{vPL}, v{vFL}, s[12:15], s67 offen sc1")
    def poll_check(stage, mask):
        def f():
            pwait(f"s_waitcnt vmcnt({vq.n(f'poll{stage}')})", "pub")
            ls = k.label("spin"); lb = k.label("go")
            k(f"v_cmp_gt_u32 vcc, {SB+stage}, v{vPL}")
            k(f"s_and_b64 vcc, vcc, s[{mask}:{mask+1}]")
            k(f"s_cbranch_scc1 {ls}")
            if stage == 5 and selfill:
                k(f"v_cmp_gt_u32 vcc, {P['sfst']}, v{vPL}"); k(f"s_cbranch_vccnz {ls}")
            k.put(lb)
            ool.append((ls, lb, stage, mask))
        return ("call", f)
    def xload(x, t):
        if nox: return [["s_nop 0"]]
        return [[f"s_add_u32 s9, s{62+x}, {t*2048}", ("vm", f"x{x}_{t}", f"buffer_load_dwordx4 {hop(x,t,u)}, v{vST}, s[12:15], s9 offen offset:{u*1024} {hld}")] for u in range(2)]
    mf = []
    XB = lambda s: f"a[{XA+4*s}:{XA+4*s+3}]"
    for c, ch in enumerate(chunks):
        if ch[0] == "L":
            isu = ch[1] == "u"; acc = U0 if isu else G0
            mf.append(dict(c=c, cs=(vCL, 0), B=f"v[{MB+2*isu}:{MB+2*isu+1}]", acc=acc, first=True))
            for s in range(36):
                mf.append(dict(c=c, o=[s*1024, s*1024+512], B=XB(s), acc=acc, first=False))
        elif ch[0] == "Q":
            p, q = ch[1], ch[2]
            if p == 0 and q < 3: seq = [(ft, isu, sl) for sl in range(9) for ft in range(2) for isu in range(2)]
            else: seq = [(ft, isu, sl) for ft in range(2) for sl in range(-1 if q == 3 else 0, 9) for isu in range(2)]
            for ft, isu, sl in seq:
                acc = (U0 if isu else G0) + 16*ft
                if sl < 0:
                    mf.append(dict(c=c, cs=(vCS, (2*p+ft)*256), B=f"v[{MB+2*isu}:{MB+2*isu+1}]", acc=acc, first=False)); continue
                sg = 9*q + sl; n0 = 18*isu + 2*sl
                mf.append(dict(c=c, o=[n0*1024+ft*512, (n0+1)*1024+ft*512], B=XB(sg), acc=acc, first=(sg == 0), need=f"h{sg}"))
        elif ch[0] == "A":
            for j, (x, t) in enumerate(A_t[ch[1]]):
                for u in range(2):
                    for dt in range(2):
                        blk = 4*j + 2*u
                        mf.append(dict(c=c, o=[blk*1024+dt*512, (blk+1)*1024+dt*512], B=hop(x, t, u), acc=(G1, U1)[dt],
                                       first=(ch[1] == 0 and j == 0 and u == 0), need=f"x{x}_{t}" if x else None))
        else:
            acc = dict(R=G0, C=U0, O=G1)[ch[1][0]]
            tls = []
            for j, un in enumerate(UN[ch[1]]):
                if un[0] == "p": tls += [(un[1], 2*un[2], 2*j), (un[1], 2*un[2]+1, 2*j+1)]
                else: tls += [(2*un[1], 8, 2*j), (2*un[1]+1, 8, 2*j+1)]
            if ch[1] in ("R", "O0"): tls = [e for e in tls if e[0] == 0] + [e for e in tls if e[0] != 0]
            for n, (x, t, pos) in enumerate(tls):
                for u in range(2):
                    mf.append(dict(c=c, o=[(2*pos+u)*1024, (2*pos+u)*1024+512], B=hop(x, t, u), acc=acc,
                                   first=(ch[1] in ("R", "Ce", "O0") and n == 0 and u == 0), need=f"x{x}_{t}" if x else None))
    N = len(mf); assert N == 990
    cstart = {}
    for g, e in enumerate(mf): cstart.setdefault(e["c"], g); e["fb"] = 4*(g % NB)
    cstart[NC] = N
    fill = [[] for _ in range(N + 1)]
    def spread(items, g0, g1, fl=None):
        fl = fill if fl is None else fl
        n = len(items); w = g1 - g0
        for i, it in enumerate(items): fl[g0 + (i * w) // n].append(it)
    def at(c, frac=0.0): return cstart[c] + int(frac*(cstart[c+1] - cstart[c])) if frac else cstart[c]
    def hcalc(g, u, t):
        out = []; h = HO + 8*t
        for i in range(8):
            out.append(f"v_mul_f32 v{u+2*i}, v{u+2*i}, v{g+2*i}")
            out.append(f"v_mul_f32 v{u+2*i+1}, v{u+2*i+1}, v{g+2*i+1}")
            out.append(f"v_cvt_pk_bf16_f32 v{h+i}, v{u+2*i}, v{u+2*i+1}")
            if i % 4 == 3 and (not nohs or i == 7) and not P.get("hs"): out.append(hstore(t, i//4))
        return out
    def hstore(t, u):
        h = HO + 8*t + 4*u
        return [f"s_add_u32 s9, s62, {t*2048}", ("vm", f"hs{t}", f"buffer_store_dwordx4 v[{h}:{h+3}], v{vST}, s[12:15], s9 offen offset:{u*1024} {hst}" if not nohs else f"buffer_store_dword v{h}, off, s[12:15], s9 sc1")]
    def pstore(acc, slotcalc, sb, tag):
        out = [slotcalc]
        for u in range(2):
            for i in range(4):
                out.append(f"v_cvt_pk_bf16_f32 v{sb+4*u+i}, v{acc+8*u+2*i}, v{acc+8*u+2*i+1}")
            out.append(("vm", tag, f"buffer_store_dwordx4 v[{sb+4*u}:{sb+4*u+3}], v{vST}, s[12:15], s6 offen offset:{u*1024} sc1"))
        return out
    W0 = 4; B_ = BAR_AHEAD
    spread([hload(s) for s in range(9, 18)] + dma_instrs(2), 0, at(1) - B_ - 2)
    spread([hload(s) for s in range(18, 27)] + stats_ld + cs_ld + dma_instrs(3), at(1) - B_, at(2) - B_ - 2)
    spread([hload(s) for s in range(27, 36)] + dma_instrs(4), at(2) - B_, at(3) - B_ - 2)
    spread(stats_calc, at(2, .4), at(3) - 2)
    spread(dma_instrs(5) + dma_instrs(6), at(3) - B_, at(4) - B_ - 2)
    for c in range(4, NC - 3):
        g0 = cstart[c] - B_
        spread(dma_instrs(c + 3), g0, g0 + DSP)
    for p in range(4):
        spread(hcalc(G0, U0, 2*p), at(4*p+3) + 20 + W0, at(4*p+4))
        spread(hcalc(G1, U1, 2*p+1), at(4*p+4) + W0, at(4*p+4) + 17)
    spread(hcalc(G0, U0, 8), at(18) + W0, at(18) + 18)
    def atf(x): return at(int(x), x - int(x)) if x != int(x) else at(int(x)) - B_
    if P.get("hs"):
        for n, x in enumerate(P["hs"]): fill[atf(x)].append(hstore(n//2, n%2))
    if l2pf:
        k("s_lshr_b32 s8, s2, 5"); k("s_lshl_b32 s8, s8, 1"); k("s_and_b32 s9, s36, 1"); k("s_add_u32 s8, s8, s9"); k(f"s_mul_i32 s8, s8, {36*9216}")
        k("s_mul_i32 s9, s36, 73728"); k("s_sub_u32 s58, s60, s9"); k("s_add_u32 s58, s58, s8")
        k("s_mul_i32 s9, s36, 147456"); k("s_sub_u32 s59, s61, s9"); k("s_add_u32 s59, s59, s8")
        k("s_lshr_b32 s8, s2, 3"); k("s_lshl_b32 s8, s8, 2"); k("s_add_u32 s8, s8, s36"); k(f"s_mul_i32 s8, s8, {27*128}")
        k(f"s_mul_i32 s9, s37, {1152*1152}"); k("s_add_u32 s70, s8, s9")
        k("v_mul_u32_u24 v19, 9216, v2"); k("v_lshlrev_b32 v20, 7, v2")
        for p in (1, 2, 3, 4):
            so = f"s_add_u32 s9, s58, {128*p}" if p < 4 else "s_mov_b32 s9, s59"
            fill[atf(l2pf[p-1])].append([so, "s_mov_b32 exec_hi, 15", ("vm", "pf", f"buffer_load_dword v18, v19, s[28:31], s9 offen"), "s_mov_b32 exec_hi, -1"])
        for n in range(3):
            fill[atf(l2pf[4+n])].append([f"s_add_u32 s9, s70, {n*128*27*128}", "s_mov_b64 exec, 0x7ffffff", ("vm", "pf", f"buffer_load_dword v18, v20, s[24:27], s9 offen"), "s_mov_b64 exec, -1"])
    def atf_old(x): return at(int(x), x - int(x)) if x != int(x) else at(int(x)) - B_
    if P["sched"] == 0:
        SCH = [(6, 7, 8, 8.01, 11.9), (10, 11, 12, 12.01, 15.9), (14, 15, 16, 16.01, 19.5), (18, 19, 20, 20.01, 21.4), (19.6, 20.6, 21.5, 21.53, 21.9)]
    elif P["sched"] == 1:
        SCH = [(7, 9, 10, 10.01, 13.5), (11, 13, 14, 14.01, 17.2), (15, 16.5, 17.5, 17.53, 19.5), (18.5, 19.8, 20.7, 20.73, 21.8), (20, 21.2, 22, 22.01, 22.3)]
    else: SCH = P["sched"]
    for p, (a, b, c, d, e) in enumerate(SCH):
        fill[atf(a)].append(publish(p+1, f"hs{min(8, 2*p+1)}" if (p+1 != P["sfst"] or not selfill) else [f"hs{min(8, 2*p+1)}", "sf"]))
        fill[atf(b)].append(poll_issue(p+1)); fill[atf(c)].append(poll_check(p+1, 56))
        spread(sum([xload(x, t) for x in (1, 2, 3) for t in ((2*p, 2*p+1) if p < 4 else (8,))], []), atf(d), atf(e))
    slotA = ["s_lshr_b32 s8, s37, 1", "s_xor_b32 s8, s8, 1", "s_lshl_b32 s8, s8, 3", "s_lshl_b32 s9, s38, 4", "s_add_u32 s8, s8, s9",
             "s_add_u32 s8, s8, s37", "s_lshl_b32 s8, s8, 11", "s_add_u32 s6, s8, s68"]
    slotB = ["s_add_u32 s6, s6, 8192"]
    slotR = ["s_and_b32 s8, s38, 1", "s_lshl_b32 s8, s8, 3", "s_lshl_b32 s9, s37, 1", "s_add_u32 s8, s8, s9", "s_lshr_b32 s9, s38, 1",
             "s_add_u32 s8, s8, s9", "s_add_u32 s8, s8, 64", "s_lshl_b32 s8, s8, 11", "s_add_u32 s6, s8, s68"]
    slotC = ["s_xor_b32 s8, s37, 1", "s_lshl_b32 s8, s8, 2", "s_lshl_b32 s9, s38, 4", "s_add_u32 s8, s8, s9", "s_add_u32 s8, s8, s37",
             "s_lshl_b32 s8, s8, 11", "s_add_u32 s6, s8, s68"]
    if selfill:
        sfl = [[f"v_mov_b32 v{STG+i}, -1" for i in range(4)]]
        for sc in (slotA, slotB, slotR, slotC):
            sfl += [sc] + [("vm", "sf", f"buffer_store_dwordx4 v[{STG}:{STG+3}], v{vST}, s[12:15], s6 offen offset:{u*1024} sc1") for u in range(2)]
        if P.get("sf"):
            fill[atf(P["sf"][0])-1].append(sfl[0])
            for n, x in enumerate(P["sf"]):
                if n % 2 == 0: fill[atf(x)].append(sfl[1 + 3*(n//2)])
                fill[atf(x)].append(sfl[2 + 3*(n//2) + n%2])
        else: spread(sfl, atf(P["sf0"]), atf(P["sf1"]))
    spread(pstore(G0, slotR, STG, "p6"), at(23) + W0, at(23) + W0 + 8)
    spread(pstore(G1, slotA, T, "p6"), at(24) + 3, at(24) + 7)
    spread(pstore(U1, slotB, T+8, "p6"), at(24) + 7, at(24) + 11)
    spread(pstore(U0, slotC, STG+8, "p7"), at(25) + 3, at(25) + 7)
    FZ = HO
    def em(tag, text, track):
        if track: vq(tag, text)
        else: k(text)
    def h_loads():
        k("s_lshl_b32 s8, s38, 2"); k("s_add_u32 s8, s8, s37"); k("s_lshl_b32 s9, s8, 11"); k("s_add_u32 s9, s9, s66"); k(f"s_add_u32 s9, s9, {WS_H:#x}")
        k("s_lshl_b32 s3, s8, 13"); k("s_add_u32 s3, s3, s68")
        for u in range(2): vq("fh", f"buffer_load_dwordx4 v[{FZ+24+4*u}:{FZ+27+4*u}], v{vST}, s[12:15], s9 offen offset:{u*1024}")
    def final_loads6(track=True):
        for n, x in enumerate((2, 3)):
            k(f"s_xor_b32 s9, s37, {x}"); k("s_lshl_b32 s9, s9, 11"); k("s_add_u32 s9, s9, s3")
            for u in range(2): em("f6", f"buffer_load_dwordx4 v[{FZ+8*n+4*u}:{FZ+8*n+4*u+3}], v{vST}, s[12:15], s9 offen offset:{u*1024} sc1", track)
    def r_loads(track=True):
        k("s_and_b32 s8, s38, 1"); k("s_lshr_b32 s9, s38, 1")
        k("s_lshl_b32 s8, s8, 14"); k("s_lshl_b32 s9, s9, 10"); k("s_add_u32 s8, s8, s9"); k("s_add_u32 s8, s8, s68"); k(f"s_add_u32 s8, s8, {64*2048}")
        for n in range(8):
            em(f"fr", f"buffer_load_dwordx4 v[{FZ+32+4*n}:{FZ+35+4*n}], v{vST}, s[12:15], s8 offen offset:{(n%2)*2048} sc1", track)
            if n % 2 == 1 and n < 7: k("s_add_u32 s8, s8, 4096")
    def rh_load():
        k("s_and_b32 s8, s38, 1"); k("s_lshr_b32 s9, s38, 1"); k("s_lshl_b32 s9, s9, 10")
        k("s_lshl_b32 s8, s8, 11"); k("s_add_u32 s8, s8, s9"); k("s_add_u32 s8, s8, s66"); k(f"s_add_u32 s8, s8, {WS_H + 32768:#x}")
        vq("fh", f"buffer_load_dwordx4 v[{FZ+64}:{FZ+67}], v{vST}, s[12:15], s8 offen")
    def final_loads7(track=True):
        k("s_xor_b32 s9, s37, 1"); k("s_lshl_b32 s9, s9, 11"); k("s_add_u32 s9, s9, s3")
        for u in range(2): em("f7", f"buffer_load_dwordx4 v[{FZ+16+4*u}:{FZ+19+4*u}], v{vST}, s[12:15], s9 offen offset:{u*1024} sc1", track)
    ool2 = []
    def maxchain(r0, n):
        o = [f"v_max_u32 v{vPL}, v{r0}, v{r0+1}"]
        for i in range(2, n, 2): o.append(f"v_max3_u32 v{vPL}, v{r0+i}, v{r0+i+1}, v{vPL}")
        return o
    def scheck(tag, r0, n, loader):
        def f():
            ls = k.label("retry"); lb = k.label("ok")
            k(f"v_cmp_eq_u32 vcc, -1, v{vPL}")
            k(f"s_cbranch_vccnz {ls}")
            k.put(lb)
            ool2.append((ls, lb, r0, n, loader))
        return [("wait", tag)] + maxchain(r0, n) + [("call", f)]
    def unp(dst, src, n):
        o = []
        for i in range(n): o += [f"v_lshlrev_b32 v{dst+2*i}, 16, v{src+i}", f"v_and_b32 v{dst+2*i+1}, 0xffff0000, v{src+i}"]
        return o
    def addp(acc, src, n, tmp):
        o = []
        for i in range(n):
            t = tmp + 2*(i % 2)
            o += [f"v_lshlrev_b32 v{t}, 16, v{src+i}", f"v_and_b32 v{src+i}, 0xffff0000, v{src+i}",
                  f"v_add_f32 v{acc+2*i}, v{acc+2*i}, v{t}", f"v_add_f32 v{acc+2*i+1}, v{acc+2*i+1}, v{src+i}"]
        return o
    vOUT = vDP
    def outstore(acc, nu, soff, d0):
        o = []
        for u in range(nu):
            d = d0 + 4*u
            for i in range(4): o.append(f"v_cvt_pk_bf16_f32 v{d+i}, v{acc+8*u+2*i}, v{acc+8*u+2*i+1}")
        for u in range(nu):
            d = d0 + 4*u
            for i in range(2): o.append(f"v_permlane32_swap_b32 v{d+i}, v{d+2+i}")
            o.append(("vm", "out", f"buffer_store_dwordx4 v[{d}:{d+3}], v{vOUT}, s[32:35], {soff} offen offset:{32*u}"))
        return o
    GS = at(25, P["ld6"])
    fill[at(25, .3)] += ["v_and_b32 v16, 31, v2", "v_mul_u32_u24 v16, 1152, v16", "v_lshrrev_b32 v17, 5, v2", f"v_lshl_add_u32 v{vOUT}, v17, 4, v16"]
    fill[GS-1].append(("call", h_loads))
    fill[GS+1].append(("call", final_loads6))
    fill[at(26, P["ld7"])].append(("call", final_loads7))
    if wb is not None:
        def wbf():
            l = k.label("nwb")
            k("s_cmp_lg_u32 s36, 0"); k(f"s_cbranch_scc1 {l}"); k("s_cmp_ge_u32 s2, 8"); k(f"s_cbranch_scc1 {l}")
            k("buffer_wbl2 sc1"); k.put(l)
        fill[at(wb)].append(("call", wbf))
    bar_at = {cstart[c] - B_ - 1: c for c in range(1, NC)}
    lq = []; st_ = dict(rp=0, readable=0); waited = set()
    pf_ = dict(pend=[], n=0)
    def prof_flush(c):
        d = 72 + c - 4
        if prof == "spin": return
        if prof == "bar":
            k("s_sub_u32 s8, s98, s96"); k("s_sub_u32 s9, s100, s98"); k("s_min_u32 s8, s8, 0xffff"); k("s_min_u32 s9, s9, 0xffff")
            k("s_lshl_b32 s9, s9, 16"); k(f"s_or_b32 s{d}, s8, s9")
        else:
            k(f"s_mov_b32 s{d}, 0")
            for n, (a, b) in enumerate(pf_["pend"]):
                k(f"s_sub_u32 s8, s{b}, s{a}"); k("s_min_u32 s8, s8, 0xffff")
                if n: k("s_lshl_b32 s8, s8, 16")
                k(f"s_or_b32 s{d}, s{d}, s8")
            pf_["pend"] = []
    def pwait(text, kind):
        if prof == kind and len(pf_["pend"]) < 2 and st_["readable"] > 3:
            a, b = [(96, 98), (100, 58)][len(pf_["pend"])]
            k(f"s_memtime s[{a}:{a+1}]"); k(text); k(f"s_memtime s[{b}:{b+1}]"); pf_["pend"].append((a, b))
        else: k(text)
    def barrier(c):
        mk = stamp and ((c not in (5, 9, 13)) if marks is None else (c in marks))
        if prof and prof != "spin":
            k("s_waitcnt lgkmcnt(0)"); lq.clear()
            if c >= 4: prof_flush(c)
            if prof == "bar": k("s_memtime s[96:97]")
            vq.wait(f"dma{c}")
            if prof == "bar": k("s_memtime s[98:99]")
            k("s_barrier")
            if prof == "bar": k("s_memtime s[100:101]")
        else:
            vq.wait(f"dma{c}", " lgkmcnt(0)" if (lgk0 or mk) else "")
            if lgk0 or mk: lq.clear()
            if not (nobar and c > 4): k("s_barrier")
        k(f"v_add_u32 v{vRd[c%2]}, {(c%4)*CH}, v{vA2}")
        st_["readable"] = c + 1
        if mk: tl.mark(f"b{c}", True)
    def issue_reads(g, maxn):
        n = 0
        while st_["rp"] < N and st_["rp"] <= g + DEPTH and mf[st_["rp"]]["c"] < st_["readable"] and n < maxn:
            rp = st_["rp"]; m = mf[rp]; fb = m["fb"]
            if "cs" in m:
                k(f"ds_read_b64 a[{fb}:{fb+1}], v{m['cs'][0]} offset:{m['cs'][1]}"); lq.append(rp)
            else:
                for e in range(2):
                    k(f"ds_read_b64_tr_b16 a[{fb+2*e}:{fb+2*e+1}], v{vRd[m['c']%2]} offset:{m['o'][e]}"); lq.append(rp)
            st_["rp"] += 1; n += 1
    def run(g0, g1, fl):
        for g in range(g0, g1):
            m = mf[g]; w = []
            nd = m.get("need")
            if nd and nox and nd[0] == "x": nd = None
            if nd and nd not in waited: w.append(f"vmcnt({vq.n(nd)})"); waited.add(nd)
            if g in lq:
                idx = max(i for i, t in enumerate(lq) if t == g)
                w.append(f"lgkmcnt({min(15, len(lq) - 1 - idx)})"); del lq[:idx+1]
            if w:
                if w[0].startswith("vm"): pwait("s_waitcnt " + w[0], "x"); w = w[1:]
                if w: k("s_waitcnt " + " ".join(w))
            fb = m["fb"]; acc = m["acc"]
            C = "0" if m["first"] else f"v[{acc}:{acc+15}]"
            if "cs" in m: k(f"v_mfma_f32_32x32x8_bf16 v[{acc}:{acc+15}], a[{fb}:{fb+1}], {m['B']}, {C}")
            else: k(f"v_mfma_f32_32x32x16_bf16 v[{acc}:{acc+15}], a[{fb}:{fb+3}], {m['B']}, {C}")
            if g in bar_at:
                c = bar_at[g]
                assert st_["rp"] >= cstart[c], (c, g)
                barrier(c)
            issue_reads(g, 3)
            for it in fl[g]: emit(it)
    if prof == "spin":
        for i in range(24): k(f"s_mov_b32 s{72+i}, 0")
    barrier(0)
    issue_reads(-1, DEPTH)
    run(0, GS, fill)
    lR = k.label("rw")
    k("s_cmp_eq_u32 s36, s37"); k(f"s_cbranch_scc1 {lR}")
    snap = (list(lq), dict(st_), set(waited), list(vq.q), tl.n, tl.pend, list(tl.names), list(pf_['pend']))
    for isR in (0, 1):
        if isR:
            k.put(lR)
            lq[:] = snap[0]; st_.update(snap[1]); waited.clear(); waited.update(snap[2]); vq.q = list(snap[3]); tl.n, tl.pend, tl.names = snap[4], snap[5], list(snap[6]); pf_['pend'] = list(snap[7])
        fl = [list(x) for x in fill]
        main = [("wait", "fh")] + unp(G0, FZ+24, 8) + scheck("f6", FZ, 16, final_loads6) + unp(U1, FZ, 8) + addp(U1, FZ+8, 8, T)
        last = scheck("f7", FZ+16, 8, final_loads7) + addp(U1, FZ+16, 8, T)
        g7 = at(26, P["chk7"])
        if isR:
            fl[GS] += [("call", rh_load), ("call", r_loads)]
            rw = scheck("fr", FZ+32, 32, r_loads) + unp(U0, FZ+32, 4)
            for n in range(1, 8): rw += addp(U0, FZ+32+4*n, 4, T)
            rw += unp(U0+8, FZ+64, 4) + [f"v_fma_f32 v{U0+i}, v{U0+i}, v{vR2}, v{U0+8+i}" for i in range(8)]
            rw += [["s_and_b32 s6, s38, 1", "s_lshr_b32 s9, s38, 1", "s_lshl_b32 s8, s6, 6", "s_lshl_b32 s9, s9, 5", "s_add_u32 s8, s8, s9",
                    "s_add_u32 s8, s8, s66", "s_add_u32 s6, s8, 1024"]] + outstore(U0, 1, "s6", T+4)
            spread(rw + main, at(26, P["chk6"]) - 4, g7, fl)
        else:
            spread(main, at(26, P["chk6"]), at(26, .7), fl)
        spread(last, g7, N, fl)
        run(GS, N, fl)
        k("s_lshl_b32 s8, s38, 2"); k("s_add_u32 s8, s8, s37"); k("s_lshl_b32 s8, s8, 6"); k("s_add_u32 s8, s8, s66")
        for i in range(16): k(f"v_add_f32 v{G1+i}, v{G1+i}, v{U1+i}")
        for i in range(16): k(f"v_fma_f32 v{G1+i}, v{G1+i}, v{vR2}, v{G0+i}")
        emit(outstore(G1, 2, "s8", T+8))
        if prof:
            k("s_waitcnt lgkmcnt(0)"); prof_flush(27)
            srd(k, 16, 10, 0x40000, off=WS_TL + 3*0x40000)
            k("s_mov_b64 exec, 1")
            k("s_lshl_b32 s20, s2, 2"); k("s_add_u32 s20, s20, s36"); k("s_lshl_b32 s20, s20, 8")
            for i in range(24):
                k(f"v_mov_b32 v14, s{72+i}"); k(f"buffer_store_dword v14, off, s[16:19], s20 offset:{4*i}")
        tl.finish(36, 10, 14, 15, 16)
        if not isR: k("s_endpgm")
    k.put(end)
    k("s_endpgm")
    def spin_exit(lb, slot):
        if prof != "spin": return lb
        lx = k.label("sx"); post.append((lx, lb, slot)); return lx
    post = []
    for (ls, lb, stage, mask) in ool:
        k.put(ls)
        if prof == "spin": k("s_memtime s[96:97]")
        lb = spin_exit(lb, stage)
        k("s_mov_b32 s7, 0x4000")
        lp = k.label("lp"); k.put(lp)
        k("s_sleep 1")
        k(f"buffer_load_dword v{vPL}, v{vFL}, s[12:15], s67 offen sc1")
        k("s_sub_u32 s7, s7, 1"); k(f"s_cbranch_scc1 {lb}")
        k("s_waitcnt vmcnt(0)")
        k(f"v_cmp_gt_u32 vcc, {SB+stage}, v{vPL}")
        k(f"s_and_b64 vcc, vcc, s[{mask}:{mask+1}]")
        k(f"s_cbranch_scc1 {lp}")
        if stage == 5 and selfill:
            k(f"v_cmp_gt_u32 vcc, {P['sfst']}, v{vPL}"); k(f"s_cbranch_vccnz {lp}")
        k(f"s_branch {lb}")
    for (ls, lb, r0, n, loader) in ool2:
        k.put(ls)
        if prof == "spin": k("s_memtime s[96:97]")
        lb = spin_exit(lb, {16: 8, 8: 9, 32: 10}[n])
        k("s_mov_b32 s7, 0x4000")
        lp = k.label("lp"); k.put(lp)
        loader(False)
        k("s_waitcnt vmcnt(0)")
        k("s_sub_u32 s7, s7, 1"); k(f"s_cbranch_scc1 {lb}")
        for x in maxchain(r0, n): k(x)
        k(f"v_cmp_eq_u32 vcc, -1, v{vPL}")
        k(f"s_cbranch_vccnz {lp}")
        k(f"s_branch {lb}")
    for (lx, lb, slot) in post:
        k.put(lx)
        k("s_memtime s[98:99]"); k("s_waitcnt lgkmcnt(0)"); k("s_sub_u32 s8, s98, s96"); k("s_min_u32 s8, s8, 0xffff"); k(f"s_or_b32 s{72+slot}, s8, 0x10000"); k(f"s_branch {lb}")
    return k, (name, 256, 256, 4*CH + 4096)
```

```python
from common import *
def gen_k2(name="attn_kernel", stamp=False, pf=0, fill=0, rl=None, rlm=''):
    k = Kern(name); end = f"{name}_end"
    sp = Stamper(k, stamp, base=84, trace=1)
    NWG = 512
    KB = 12288; VB = KB + 13*256 + 768
    assert VB == 16384
    LDS = VB + 24*1024
    k(f"s_cmp_ge_u32 s2, {NWG}"); k(f"s_cbranch_scc1 {end}")
    k("s_load_dwordx2 s[10:11], s[0:1], 72")
    if pf:
        for n, (ka, nb) in enumerate(pf): k(f"s_load_dwordx2 s[{40+2*n}:{41+2*n}], s[0:1], {ka}")
    if rl is not None:
        k("s_load_dwordx4 s[52:55], s[0:1], 32"); k("s_load_dwordx2 s[56:57], s[0:1], 48")
    sp.start()
    k("v_lshrrev_b32 v1, 6, v0"); k("v_and_b32 v2, 63, v0")
    k("v_readfirstlane_b32 s36, v1")
    k("s_and_b32 s37, s2, 7"); k("s_lshl_b32 s37, s37, 1"); k("s_bfe_u32 s4, s2, 0x10003"); k("s_or_b32 s37, s37, s4")
    k("s_lshr_b32 s38, s2, 4")
    k("s_lshl_b32 s39, s37, 2"); k("s_sub_u32 s5, s39, 8"); k("s_add_u32 s39, s39, s36")
    k("s_mul_i32 s4, s36, 3"); k("s_add_u32 s5, s5, s4")
    k("s_mul_i32 s6, s38, 9"); k("s_lshr_b32 s6, s6, 1"); k("s_lshl_b32 s6, s6, 8")
    k("s_mul_i32 s7, s39, 73728"); k("s_add_u32 s7, s7, s6")
    k(f"s_add_u32 s6, s6, {144*256}")
    vL16, vKB, vVD, vKr, vKr2, vVr, vQm = 3, 4, 5, 6, 7, 8, 9
    Q = 10
    MP = 16
    T = 24
    FR = 32
    O = 64
    SB = 80
    k(f"v_lshlrev_b32 v{vL16}, 4, v2")
    k("v_lshrrev_b32 v24, 4, v2"); k("v_add_u32 v24, s5, v24"); k("v_max_i32 v24, 0, v24"); k("v_mul_u32_u24 v24, 73728, v24")
    k("v_and_b32 v25, 15, v2"); k(f"v_lshl_add_u32 v{vKB}, v25, 4, v24")
    k("v_lshrrev_b32 v26, 5, v2"); k("v_and_b32 v27, 31, v2")
    k("s_mul_i32 s4, s38, 288")
    k("v_mul_u32_u24 v24, 9216, v26"); k("v_lshl_add_u32 v24, v27, 4, v24"); k(f"v_add_u32 v{vVD}, s4, v24")
    k("v_lshlrev_b32 v24, 3, v27"); k("v_lshl_add_u32 v25, v26, 8, v24")
    k("s_waitcnt lgkmcnt(0)")
    srd(k, 16, 10, QK_BYTES, off=WS_QK); srd(k, 20, 10, V_BYTES, off=WS_V); srd(k, 24, 10, O_BYTES, off=WS_O)
    k("s_mul_i32 s8, s36, 3072");
    for i in range(3):
        k(f"s_add_i32 s{28+i}, s5, {i}"); k(f"s_max_i32 s{28+i}, s{28+i}, 0")
        k(f"s_mul_i32 s9, s{28+i}, 73728"); k("s_add_u32 s9, s9, s6")
        k(f"s_add_u32 m0, s8, {i*1024}")
        k(f"buffer_load_dwordx4 v{vL16}, s[16:19], s9 offen lds")
    k("s_mul_i32 s9, s36, 768"); k(f"s_add_u32 m0, s9, {KB - 1024}")
    k(f"buffer_load_dwordx4 v{vKB}, s[16:19], s6 offen offset:1024 lds")
    for i in range(3):
        k(f"buffer_load_dwordx2 v[{Q+2*i}:{Q+2*i+1}], v25, s[16:19], s7 offen offset:{512*i}")
    k("s_mov_b32 s32, 0x3ffff"); k("s_mov_b32 s33, 0x3ffff"); k("s_mov_b64 exec, s[32:33]")
    k("s_mul_i32 s8, s36, 6144"); k(f"s_add_u32 s8, s8, {VB}")
    for i in range(3):
        k(f"s_mul_i32 s9, s{28+i}, 36864")
        for u in range(2):
            k(f"s_add_u32 m0, s8, {(2*i+u)*1024}")
            if u: k("s_add_u32 s9, s9, 18432")
            k(f"buffer_load_dwordx4 v{vVD}, s[20:23], s9 offen lds")
    if pf:
        k("s_mov_b64 exec, -1")
        k("s_lshl_b32 s48, s36, 9"); k("s_add_u32 s48, s48, s2")
        k(f"s_mov_b32 s14, {pf[0][1]}")
        acc_ = 0
        k("s_mov_b32 s49, 0")
        for j in range(1, len(pf)):
            acc_ += pf[j-1][1] // 8192
            k(f"s_cmp_ge_u32 s48, {acc_}")
            k(f"s_cselect_b32 s40, s{40+2*j}, s40"); k(f"s_cselect_b32 s41, s{41+2*j}, s41")
            k(f"s_cselect_b32 s14, {pf[j][1]}, s14")
            k(f"s_cselect_b32 s49, {acc_}, s49")
        k("s_sub_u32 s48, s48, s49")
        k("s_mov_b32 s12, s40"); k("s_mov_b32 s13, s41"); k("s_mov_b32 s15, 0x00020000")
        k("s_lshl_b32 s48, s48, 13"); k("v_lshlrev_b32 v28, 7, v2")
        k("buffer_load_dword v224, v28, s[12:15], s48 offen")
        k("s_mov_b64 exec, s[32:33]")
    if rl is not None:
        k("s_mov_b64 exec, -1")
        k("s_lshl_b32 s58, s36, 9"); k("s_add_u32 s58, s58, s2")
        k("s_mul_i32 s59, s58, 52429"); k("s_lshr_b32 s59, s59, 18")
        k("s_mul_i32 s60, s59, 5"); k("s_sub_u32 s60, s58, s60")
        k("s_lshl_b32 s60, s60, 1"); k("s_cmp_ge_u32 s59, 144"); k("s_addc_u32 s60, s60, 0"); k("s_min_u32 s60, s60, 8")
        k(f"s_mul_i32 s61, s59, {16*1152}"); k("s_lshl_b32 s62, s60, 7"); k("s_add_u32 s61, s61, s62")
        k(f"s_mul_i32 s100, s60, {2*294912}"); k("s_lshl_b32 s62, s59, 10"); k("s_add_u32 s100, s100, s62"); k(f"s_add_u32 s100, s100, {WS_WD2-WS_WL:#x}")
        k("s_sub_u32 s59, s58, 1440"); k("s_and_b32 s60, s59, 7"); k("s_lshr_b32 s62, s59, 4")
        k(f"s_mul_i32 s63, s62, {16*9216}"); k("s_mul_i32 s64, s60, 1152"); k("s_add_u32 s63, s63, s64"); k("s_add_u32 s63, s63, 512")
        k("s_and_b32 s64, s59, 15"); k(f"s_mul_i32 s64, s64, {2*36864}"); k("s_lshl_b32 s62, s62, 10"); k("s_add_u32 s64, s64, s62")
        k("s_bitcmp1_b32 s59, 3"); k("s_cselect_b32 s52, s54, s52"); k("s_cselect_b32 s53, s55, s53")
        k("s_cmp_lt_u32 s58, 1440")
        k("s_cselect_b32 s12, s56, s52"); k("s_cselect_b32 s13, s57, s53"); k("s_cselect_b32 s61, s61, s63"); k("s_cselect_b32 s100, s100, s64")
        k("s_mov_b32 s62, 9216"); k("s_cselect_b32 s62, 1152, s62"); k("s_mov_b32 s63, 36864"); k("s_cselect_b32 s63, 294912, s63")
        k("s_cmp_lt_u32 s58, 2016")
        k(f"s_cselect_b32 s14, {D*F*2:#x}, 0"); k("s_mov_b32 s15, 0x00020000")
        k(f"s_cselect_b32 s98, {WS_WD2-WS_WL+18*294912:#x}, 0"); k("s_mov_b32 s99, 0x00020000")
        k(f"s_add_u32 s96, s10, {WS_WL:#x}"); k("s_addc_u32 s97, s11, 0")
        k("v_lshrrev_b32 v28, 3, v2"); k("v_mul_lo_u32 v226, s62, v28"); k("v_and_b32 v29, 7, v2"); k("v_lshl_add_u32 v226, v29, 4, v226")
        k("buffer_load_dwordx4 v[228:231], v226, s[12:15], s61 offen")
        k("s_lshl_b32 s62, s62, 3"); k("s_add_u32 s61, s61, s62")
        k("buffer_load_dwordx4 v[232:235], v226, s[12:15], s61 offen")
        k("v_bfe_u32 v29, v2, 2, 1"); k("v_mul_lo_u32 v227, s63, v29"); k("v_lshl_add_u32 v227, v28, 6, v227"); k("v_and_b32 v29, 3, v2"); k("v_lshl_add_u32 v227, v29, 4, v227")
        k("s_mov_b64 exec, s[32:33]")
        fill += 2
    k("s_not_b64 exec, exec")
    for i in range(4): k(f"v_mov_b32 v{FR+i}, 0x3f803f80")
    k(f"v_add_u32 v{vVr}, s8, v{vL16}")
    for i in range(6): k(f"ds_write_b128 v{vVr}, v[{FR}:{FR+3}] offset:{i*1024}")
    k("s_mov_b64 exec, -1")
    if fill >= 5:
        srd(k, 12, 10, 64*80*2048, off=WS_PT)
        for i in range(4): k(f"v_mov_b32 v{O+i}, -1")
        k("s_lshl_b32 s48, s2, 2"); k("s_add_u32 s48, s48, s36"); k(f"s_mul_i32 s48, s48, {5*1024}")
        for i in range(5):
            if i == 4: k("s_add_u32 s48, s48, 4096")
            k(f"buffer_store_dwordx4 v[{O}:{O+3}], v{vL16}, s[12:15], s48 offen offset:{(i%4)*1024} sc1")
    k("s_lshl_b32 s4, s36, 10"); k(f"v_add_u32 v{vKr}, s4, v25")
    k("s_lshl_b32 s4, s36, 8"); k(f"s_add_u32 s4, s4, {KB}"); k(f"v_add_u32 v{vKr2}, s4, v24")
    k("s_lshl_b32 s4, s36, 11"); k(f"s_add_u32 s4, s4, {VB}"); k(f"v_add_u32 v{vVr}, s4, v{vL16}")
    k(f"v_lshlrev_b32 v26, 2, v26"); k(f"v_sub_u32 v{vQm}, v27, v26")
    MS = 40
    for r in range(16):
        k(f"v_cmp_le_i32 s[{MS+2*r}:{MS+2*r+1}], {8*(r>>2)+(r&3)}, v{vQm}")
    k("v_mov_b32 v24, 0xffff")
    for j in range(8):
        k(f"v_cndmask_b32 v{MP+j}, 0, v24, s[{MS+4*j}:{MS+4*j+1}]")
        k(f"v_cndmask_b32 v{MP+j}, v{MP+j}, -1, s[{MS+4*j+2}:{MS+4*j+3}]")
    k("s_bitcmp1_b32 s38, 0")
    k("s_cselect_b32 s32, 0, -1"); k("s_mov_b32 s33, -1")
    k("s_cselect_b32 s34, -1, 0"); k("s_mov_b32 s35, 0")
    k("s_mov_b32 s12, -1"); k("s_mov_b32 s13, 0")
    k("s_sub_i32 s14, 8, s39")
    k(f"s_waitcnt vmcnt({6+(1 if pf else 0)+fill})")
    k(f"v_cndmask_b32 v{Q}, 0, v{Q}, s[32:33]")
    k(f"v_cndmask_b32 v{Q+4}, 0, v{Q+4}, s[12:13]")
    k(f"v_cndmask_b32 v{Q+5}, 0, v{Q+5}, s[34:35]")
    k("s_barrier")
    sp.st()
    order = [8, 0, 1, 2, 3, 4, 5, 6, 7]
    def S(t): return SB + 16*t
    def kread(i):
        t = order[i]; f = FR + 8*(i % 4)
        k(f"ds_read_b64 v[{f}:{f+1}], v{vKr} offset:{t*1024}")
        k(f"ds_read_b64 v[{f+2}:{f+3}], v{vKr} offset:{t*1024+512}")
        k(f"ds_read_b64 v[{f+4}:{f+5}], v{vKr2} offset:{t*256}")
    for i in range(3): kread(i)
    ool = []
    work = []
    for r in range(16): work.append((2, f"v_cndmask_b32 v{S(8)+r}, v{S(0)+r}, v{S(8)+r}, s[{MS+2*r}:{MS+2*r+1}]"))
    MX = [T, T+1, T+2, T+3]
    first = [True]*4
    for i, t in enumerate(order):
        if t == 0: continue
        for j in range(8):
            c = j % 4; a = S(t) + 2*j
            if first[c]: work.append((max(i, 1)+1, f"v_max_f32 v{MX[c]}, v{a}, v{a+1}")); first[c] = False
            else: work.append((max(i, 1)+1, f"v_max3_f32 v{MX[c]}, v{a}, v{a+1}, v{MX[c]}"))
    wp = 0
    for i, t in enumerate(order):
        f = FR + 8*(i % 4)
        nlater = min(2, 8 - i) * 3
        k(f"s_waitcnt lgkmcnt({nlater})")
        if t < 8:
            ln = k.label("neg"); lb = k.label("back")
            k(f"s_cmp_gt_i32 s14, {t}"); k(f"s_cbranch_scc1 {ln}")
            ool.append((ln, lb, t))
        k(f"v_mfma_f32_32x32x16_bf16 v[{S(t)}:{S(t)+15}], v[{f}:{f+3}], v[{Q}:{Q+3}], 0")
        k(f"v_mfma_f32_32x32x8_bf16 v[{S(t)}:{S(t)+15}], v[{f+4}:{f+5}], v[{Q+4}:{Q+5}], v[{S(t)}:{S(t)+15}]")
        if t < 8: k.put(lb)
        if i + 3 < 9: kread(i + 3)
        n = 0
        while wp < len(work) and work[wp][0] <= i and n < 12:
            k(work[wp][1]); wp += 1; n += 1
    k(f"s_waitcnt vmcnt({(1 if pf else 0)+fill})")
    k("s_barrier")
    pv = [(1, S(1)), (2, S(2)), (3, S(3)), (4, S(4)), (5, S(5)), (6, S(6)), (7, S(7)), (8, S(8)), (0, S(0))]
    def vread(i):
        t = pv[i][0]; f = FR + 8*(i % 4)
        for u in range(2): k(f"ds_read_b128 v[{f+4*u}:{f+4*u+3}], v{vVr} offset:{(2*t+u)*1024}")
    for i in range(3): vread(i)
    while wp < len(work): k(work[wp][1]); wp += 1
    k(f"v_max_f32 v{T}, v{T}, v{T+1}"); k(f"v_max3_f32 v{T}, v{T+2}, v{T+3}, v{T}")
    k(f"v_mov_b32 v{T+1}, v{T}")
    k(f"v_permlane32_swap_b32 v{T}, v{T+1}")
    k(f"v_max_f32 v{T}, v{T}, v{T+1}")
    sp.st()
    def soft(t, half):
        out = []; b = S(t) + 8*half
        for r in range(8): out.append(f"v_sub_f32 v{b+r}, v{b+r}, v{T}")
        for r in range(8): out.append(f"v_exp_f32 v{b+r}, v{b+r}")
        for j in range(4):
            d = S(t) + 4*half + j
            out.append(f"v_cvt_pk_bf16_f32 v{d}, v{b+2*j}, v{b+2*j+1}")
        if t == 8:
            for j in range(4):
                d = S(t) + 4*half + j; e = S(0) + 4*half + j
                out.append(f"v_bfi_b32 v{e}, v{MP+4*half+j}, 0, v{d}")
                out.append(f"v_and_b32 v{d}, v{MP+4*half+j}, v{d}")
        return out
    steps = [(i, u) for i in range(9) for u in range(2)]
    for x in soft(1, 0): k(x)
    for n, (i, u) in enumerate(steps):
        t, P = pv[i]; f = FR + 8*(i % 4)
        if u == 0:
            k(f"s_waitcnt lgkmcnt({min(2, 8-i)*2})")
        nxt = steps[n+1] if n + 1 < len(steps) else None
        if nxt is not None and pv[nxt[0]][0] != 0:
            w = soft(pv[nxt[0]][0], nxt[1])
        else: w = []
        for x in w[:2]: k(x)
        C = "0" if n == 0 else f"v[{O}:{O+15}]"
        k(f"v_mfma_f32_32x32x16_bf16 v[{O}:{O+15}], v[{f+4*u}:{f+4*u+3}], v[{P+4*u}:{P+4*u+3}], {C}")
        if u == 1 and i + 3 < 9: vread(i + 3)
        for x in w[2:]: k(x)
        if n == rl:
            k("s_waitcnt vmcnt(0)")
            k(f"buffer_store_dwordx4 v[228:231], v227, s[96:99], s100 offen {rlm}")
            k(f"buffer_store_dwordx4 v[232:235], v227, s[96:99], s100 offen offset:512 {rlm}")
    k("s_mul_i32 s4, s39, 36864"); k("s_lshl_b32 s5, s38, 10"); k("s_add_u32 s5, s5, s4")
    k("s_lshr_b32 s6, s38, 2"); k("s_lshl_b32 s6, s6, 9"); k("s_and_b32 s7, s38, 3"); k("s_lshl_b32 s7, s7, 2")
    k("s_add_u32 s6, s6, s7"); k("s_add_u32 s6, s6, s4"); k("s_add_u32 s6, s6, 32768")
    k(f"v_rcp_f32 v{T}, v{O+10}")
    for r in range(10): k(f"v_mul_f32 v{O+r}, v{O+r}, v{T}")
    for j in range(5): k(f"v_cvt_pk_bf16_f32 v{FR+j}, v{O+2*j}, v{O+2*j+1}")
    k(f"buffer_store_dwordx4 v[{FR}:{FR+3}], v{vL16}, s[24:27], s5 offen")
    k("s_mov_b64 exec, s[12:13]")
    k(f"buffer_store_dword v{FR+4}, v{vL16}, s[24:27], s6 offen")
    k("s_mov_b64 exec, -1")
    sp.finish(end, 36, 2, 30, 31)
    k.put(end); k("s_endpgm")
    for (ln, lb, t) in ool:
        k.put(ln)
        for r in range(16): k(f"v_mov_b32 v{S(t)+r}, {fx(-1e30)}")
        k(f"s_branch {lb}")
    return k, (name, NWG, 256, LDS)
```

```python
from mke import *
be("g1.s", False, P=dict(sf0=4.6, sf1=14, sfst=3), rl=17)
be("g2.s", False, P=dict(sf0=4.6, sf1=17.5, sfst=4), rl=4, rlm='sc1')
be("g3.s", False, P=dict(sf=[5.3,5.8,6.3,6.8,9.3,9.8,13.5,14.3], sfst=3), rl=17)
```

```python
from asmlib import *
import struct
def f2u(x): return struct.unpack("<I", struct.pack("<f", x))[0]
def fx(x): return hex(f2u(x))
D = 576; F = 4608; S = 2048
WS_QK = 0x000000; QK_BYTES = 64 * 73728
WS_V = 0x500000; V_BYTES = 64 * 36864
WS_O = 0x800000; O_BYTES = 64 * 36864
WS_H = 0xB00000; H_BYTES = 64 * 36864
WS_TRACE = 0x8000000
WS_PART = 0x1000000; PART_BYTES = 16 * 64 * 36864

class Stamper:
    def __init__(self, k, on, base=72, nwg=4, trace=None):
        self.trace = trace; self.k = k; self.on = on; self.n = 0; self.base = base; self.nwg = nwg
    def start(self):
        if self.on:
            b = self.base
            self.k(f"s_load_dwordx2 s[{b-12}:{b-11}], s[0:1], 64")
            self.k(f"s_memrealtime s[{b-10}:{b-9}]")
            self.st()
    def st(self):
        if self.on:
            b = self.base
            self.k(f"s_memtime s[{b+2*self.n}:{b+1+2*self.n}]"); self.n += 1
    def finish(self, end, swave, vlane, vt0, vt1, wave=0):
        if not self.on: return
        k = self.k; b = self.base
        self.st()
        k("s_waitcnt vmcnt(0)")
        self.st()
        k(f"s_memrealtime s[{b-8}:{b-7}]"); k("s_waitcnt lgkmcnt(0)"); k(f"s_sub_u32 s{b-8}, s{b-8}, s{b-10}")
        k(f"s_cmp_lg_u32 s{swave}, {wave}"); k(f"s_cbranch_scc1 {end}")
        if self.trace is not None:
            srd(k, b-4, 10, 0x10000, off=WS_TRACE + self.trace*0x10000)
            k("s_mov_b64 exec, 1")
            k(f"s_lshl_b32 s{b-7}, s2, 4"); k(f"v_mov_b32 v{vt1}, s{b-7}")
            k(f"v_mov_b32 v{vt0}, s{b-10}"); k(f"buffer_store_dword v{vt0}, v{vt1}, s[{b-4}:{b-1}], 0 offen")
            k(f"v_mov_b32 v{vt0}, s{b-8}"); k(f"buffer_store_dword v{vt0}, v{vt1}, s[{b-4}:{b-1}], 0 offen offset:4")
            k(f"s_getreg_b32 s{b-7}, hwreg(HW_REG_HW_ID)"); k(f"v_mov_b32 v{vt0}, s{b-7}"); k(f"buffer_store_dword v{vt0}, v{vt1}, s[{b-4}:{b-1}], 0 offen offset:8")
            k(f"s_getreg_b32 s{b-7}, hwreg(HW_REG_XCC_ID)"); k(f"v_mov_b32 v{vt0}, s{b-7}"); k(f"buffer_store_dword v{vt0}, v{vt1}, s[{b-4}:{b-1}], 0 offen offset:12")
        k(f"s_cmp_ge_u32 s2, {self.nwg}"); k(f"s_cbranch_scc1 {end}")
        srd(k, b-4, b-12, 256)
        k("s_mov_b64 exec, 1")
        k(f"s_lshl_b32 s{b-7}, s2, 6"); k(f"v_mov_b32 v{vt1}, s{b-7}")
        k(f"v_mov_b32 v{vt0}, s{b-8}")
        k(f"buffer_store_dword v{vt0}, v{vt1}, s[{b-4}:{b-1}], 0 offen")
        for i in range(1, self.n):
            k(f"s_sub_u32 s{b-8}, s{b+2*i}, s{b}"); k(f"v_mov_b32 v{vt0}, s{b-8}")
            k(f"buffer_store_dword v{vt0}, v{vt1}, s[{b-4}:{b-1}], 0 offen offset:{4*i}")

class VQ:
    def __init__(self, k): self.k = k; self.q = []
    def __call__(self, tag, text): self.k(text); self.q.append(tag)
    def n(self, tag):
        idx = max(i for i, t in enumerate(self.q) if t == tag)
        return min(63, len(self.q) - 1 - idx)
    def wait(self, tag, extra=""):
        self.k(f"s_waitcnt vmcnt({self.n(tag)}){extra}")
    def emit(self, it):
        if isinstance(it, tuple): self(it[1], it[2])
        elif isinstance(it, list):
            for x in it: self.emit(x)
        else: self.k(it)
WS_ST = 0xE00000; ST_BYTES = 64 * 9 * 256
WS_FLAG = 0xF00000
WS_HX = 0x1000000
WS_PT = 0x2400000
WS_BYTES = 268435456

WS_TL = 0x9000000
class TL:
    def __init__(self, k, on, lo, pp, kidx):
        self.k = k; self.on = on; self.lo = lo; self.pp = pp; self.n = 0; self.pend = False; self.kidx = kidx; self.names = []
    def start(self):
        if self.on:
            self.k(f"s_memrealtime s[{self.pp}:{self.pp+1}]"); self.pend = True; self.names.append("rt0")
    def flush(self):
        if self.on and self.pend:
            self.k(f"s_mov_b32 s{self.lo+self.n}, s{self.pp}"); self.n += 1; self.pend = False
    def mark(self, name, drained=False):
        if not self.on: return
        if self.pend and not drained: self.k("s_waitcnt lgkmcnt(0)")
        self.flush()
        self.k(f"s_memtime s[{self.pp}:{self.pp+1}]"); self.pend = True; self.names.append(name)
    def finish(self, swave, sws, vt0, vt1, t0):
        if not self.on: return
        k = self.k
        self.mark("end")
        k("s_waitcnt vmcnt(0)")
        self.mark("drain")
        k("s_waitcnt lgkmcnt(0)"); self.flush()
        k(f"s_memrealtime s[{self.pp}:{self.pp+1}]"); self.pend = True; self.names.append("rt1")
        k("s_waitcnt lgkmcnt(0)"); self.flush()
        srd(k, t0, sws, 0x40000, off=WS_TL + self.kidx*0x40000)
        k("s_mov_b64 exec, 1")
        k(f"s_lshl_b32 s{t0+4}, s2, 2"); k(f"s_add_u32 s{t0+4}, s{t0+4}, s{swave}"); k(f"s_lshl_b32 s{t0+4}, s{t0+4}, 8")
        for i in range(self.n):
            k(f"v_mov_b32 v{vt0}, s{self.lo+i}")
            k(f"buffer_store_dword v{vt0}, off, s[{t0}:{t0+3}], s{t0+4} offset:{4*i}")
        k(f"s_getreg_b32 s{self.pp}, hwreg(HW_REG_XCC_ID)"); k(f"v_mov_b32 v{vt0}, s{self.pp}")
        k(f"buffer_store_dword v{vt0}, off, s[{t0}:{t0+3}], s{t0+4} offset:252")
        import json
        json.dump(self.names, open(f"tl_names_{self.kidx}.json", "w"))

WS_CS = 0xF10000; CS_BYTES = 4608*8
def colsum_code(k, wg0, end, lds_off=0):
    k("s_load_dwordx4 s[4:7], s[0:1], 32")
    k("s_load_dwordx2 s[10:11], s[0:1], 72")
    k("v_lshrrev_b32 v1, 6, v0"); k("v_and_b32 v2, 63, v0")
    k("v_readfirstlane_b32 s36, v1")
    k(f"s_sub_u32 s37, s2, {wg0}")
    k("v_lshrrev_b32 v3, 3, v2"); k("v_mul_u32_u24 v3, 9216, v3"); k("v_and_b32 v4, 7, v2"); k("v_lshl_add_u32 v3, v4, 4, v3")
    k("s_and_b32 s8, s36, 1"); k(f"s_mul_i32 s8, s8, {288*9216}"); k("s_lshl_b32 s9, s37, 7"); k("s_add_u32 s8, s8, s9")
    k("s_waitcnt lgkmcnt(0)")
    k("s_cmp_ge_u32 s36, 2"); k("s_cselect_b32 s4, s6, s4"); k("s_cselect_b32 s5, s7, s5")
    srd(k, 16, 4, D*F*2); srd(k, 20, 10, CS_BYTES, off=WS_CS)
    for j in range(36):
        k(f"buffer_load_dwordx4 v[{16+4*j}:{19+4*j}], v3, s[16:19], s8 offen")
        if j < 35: k(f"s_add_u32 s8, s8, {8*9216}")
    k("s_mov_b32 s4, 0x00003f80"); k("s_mov_b32 s5, 0x3f800000")
    for i in range(8): k(f"v_mov_b32 v{8+i}, 0")
    for j in range(36):
        k(f"s_waitcnt vmcnt({35-j})")
        for i in range(4):
            k(f"v_dot2c_f32_bf16 v{8+2*i}, s4, v{16+4*j+i}"); k(f"v_dot2c_f32_bf16 v{9+2*i}, s5, v{16+4*j+i}")
    k("v_lshlrev_b32 v3, 5, v0")
    k(f"ds_write_b128 v3, v[8:11] offset:{lds_off}"); k(f"ds_write_b128 v3, v[12:15] offset:{lds_off+16}")
    k("s_waitcnt lgkmcnt(0)"); k("s_barrier")
    k("s_cmp_ge_u32 s36, 2"); k(f"s_cbranch_scc1 {end}")
    k("v_and_b32 v3, 1, v0"); k("v_lshlrev_b32 v3, 12, v3"); k("v_lshrrev_b32 v4, 1, v0"); k("v_lshl_add_u32 v3, v4, 2, v3")
    for n in range(16): k(f"ds_read_b32 v{16+n}, v3 offset:{lds_off + n*256}")
    k("s_waitcnt lgkmcnt(0)")
    for st in (8, 4, 2, 1):
        for n in range(st): k(f"v_add_f32 v{16+n}, v{16+n}, v{16+n+st}")
    k("v_cvt_pk_bf16_f32 v17, v16, v16"); k("v_lshlrev_b32 v17, 16, v17"); k("v_sub_f32 v18, v16, v17")
    k("v_cvt_pk_bf16_f32 v17, v17, v18")
    k("v_lshlrev_b32 v3, 2, v0"); k("s_lshl_b32 s8, s37, 9")
    k("buffer_store_dword v17, v3, s[20:23], s8 offen")
    k("s_endpgm")
def touch_code(k, wg0, nwg, regs):
    k(f"s_sub_u32 s3, s2, {wg0}"); k("s_lshl_b32 s3, s3, 15"); k("v_lshlrev_b32 v1, 7, v0")
    for n, (ka, nb) in enumerate(regs): k(f"s_load_dwordx2 s[{40+2*n}:{41+2*n}], s[0:1], {ka}")
    k("s_waitcnt lgkmcnt(0)")
    for n, (ka, nb) in enumerate(regs): srd(k, 4+4*n, 40+2*n, nb)
    mx = max(nb for ka, nb in regs)
    for j in range((mx + nwg*32768 - 1)//(nwg*32768)):
        for n, (ka, nb) in enumerate(regs):
            if j*nwg*32768 < nb: k(f"buffer_load_dword v2, v1, s[{4+4*n}:{7+4*n}], s3 offen")
        k(f"s_add_u32 s3, s3, {nwg*32768}")
    k("s_endpgm")

WS_WL = 0x3000000
WS_WD2 = 0x3200000
N_QKV = 0x000000; QKV_SLOT = 64*2304; QKV_BYTES = 48*QKV_SLOT
N_O = 0x800000; N_HC = N_O + 64*36864
N_FILL_BYTES = 2*64*36864
N_H = 0xD00000
N_FLAG = 0xF80000
N_SQ = 0xF90000
N_MX = 0xFC0000
N_BW = 0xFC4000
N_WO = 0x3800000
WO_BYTES = 648*1024
Z_O = 0x800000; Z_HC = 0xA40000; Z_MN = 0xC80000; Z_SQ = 0xC82000; Z_FILL_BYTES = 0x48A000
Z_MX = 0xF00000; Z_BW = 0xF04000; Z_FLAG = 0x2800000; Z_WO = 0x3800000
class TL2:
    def __init__(self, k, on, vtl, pp, kidx):
        self.k = k; self.on = on; self.v = vtl; self.pp = pp; self.n = 0; self.pend = False; self.kidx = kidx; self.names = []
    def start(self):
        if self.on:
            self.k(f"s_memrealtime s[{self.pp}:{self.pp+1}]"); self.pend = True; self.names.append("rt0")
    def flush(self):
        if self.on and self.pend:
            self.k(f"v_writelane_b32 v{self.v}, s{self.pp}, {self.n}"); self.n += 1; self.pend = False
    def mark(self, name, drained=False):
        if not self.on: return
        if self.pend and not drained: self.k("s_waitcnt lgkmcnt(0)")
        self.flush()
        self.k(f"s_memtime s[{self.pp}:{self.pp+1}]"); self.pend = True; self.names.append(name)
    def finish(self, swave, sws, vt, t0):
        if not self.on: return
        k = self.k
        self.mark("end")
        k("s_waitcnt vmcnt(0)")
        self.mark("drain")
        k("s_waitcnt lgkmcnt(0)"); self.flush()
        k(f"s_memrealtime s[{self.pp}:{self.pp+1}]"); self.pend = True; self.names.append("rt1")
        k("s_waitcnt lgkmcnt(0)"); self.flush()
        assert self.n <= 63
        srd(k, t0, sws, 0x40000, off=WS_TL + self.kidx*0x40000)
        k(f"s_lshl_b32 s{t0+4}, s2, 2"); k(f"s_add_u32 s{t0+4}, s{t0+4}, s{swave}"); k(f"s_lshl_b32 s{t0+4}, s{t0+4}, 8")
        k(f"v_lshlrev_b32 v{vt}, 2, v2")
        k(f"buffer_store_dword v{self.v}, v{vt}, s[{t0}:{t0+3}], s{t0+4} offen")
        import json
        json.dump(self.names, open(f"tl_names_{self.kidx}.json", "w"))
```

```python
from common import *
SL = 16384
RW1 = 6*SL
CSO = RW1 + 36864
RWD = 160*1024 - 18432
W8_HX = 0x1000000
W8_HR = 0x2000000
W8_PT = 0x4000000

KAo = RW1; KBo = RW1 + 16384; VBo = RW1 + 21504
EXo = RW1; RXo = RW1 + 49152; MXo = RW1 + 57344; SQo = RW1 + 58368
RETRY = 0x1000

def gen_fz(name="fz_kernel", stamp=False, B_=2, nox=False, nodma=False, P=None, marks=None, prio=None, KA=8, hld='sc1', hst='sc1', touch=True, fillm='sc1', nofill=False, xld='sc1', ptre=False):
    PG, PP_ = 16, 13
    selfill = False; spoll = False; xfill = None
    P = dict(dict(), **(P or {}))
    k = Kern(name); end = f"{name}_end"
    tl = TL2(k, stamp, 18, 100, 3)
    k(f"s_cmp_ge_u32 s2, 256"); k(f"s_cbranch_scc1 {end}")
    k("s_load_dwordx2 s[10:11], s[0:1], 72")
    k("s_load_dwordx4 s[4:7], s[0:1], 32")
    k("s_load_dwordx4 s[28:31], s[0:1], 48")
    k("s_load_dwordx2 s[96:97], s[0:1], 0")
    tl.start()
    k("v_lshrrev_b32 v1, 6, v0"); k("v_and_b32 v2, 63, v0")
    k("v_readfirstlane_b32 s36, v1")
    k("s_and_b32 s37, s2, 7")
    k("s_bfe_u32 s38, s2, 0x20003")
    k("s_lshr_b32 s3, s2, 5"); k("s_lshl_b32 s3, s3, 3"); k("s_add_u32 s39, s3, s36")
    k("s_lshl_b32 s40, s37, 2"); k("s_add_u32 s40, s40, s38")
    k("s_lshl_b32 s41, s36, 10")
    vE = [3, 5]; vO = [4, 6]; vRR = 7; vD1, vD2, vDR1, vST, vXL, vFL, vPL, vR2, vOUT, T = 8, 9, 10, 12, 13, 14, 15, 16, 19, 20
    ACC = 24; XR = 96; FR = 240; NB = 4; DEPTH = 3
    blk = lambda b, tt=0: ACC + 8*b + 4*tt
    vq = VQ(k); lq = []
    def xm(nm):
        if stamp and marks and nm in marks:
            k("s_waitcnt lgkmcnt(0)"); lq.clear(); tl.mark(nm, True)
    vKr, vKr2, vVr, vQm = 3, 4, 5, 6
    Q = 224; MP = 232; AT = 24; AF = 32; O = 64; SB = 80; XM = 28; XRS = 230; MXR = 231
    S_ = lambda t: SB + 16*t
    k("s_add_u32 s44, s39, s36"); k("s_sub_u32 s44, s44, 8")
    k("s_mul_i32 s49, s40, 9"); k("s_lshr_b32 s49, s49, 1"); k("s_lshl_b32 s49, s49, 8")
    k("s_mul_i32 s47, s39, 73728"); k("s_add_u32 s47, s47, s49")
    k(f"s_add_u32 s49, s49, {144*256}")
    k("s_max_i32 s60, s44, 0"); k("s_add_i32 s61, s44, 1"); k("s_max_i32 s61, s61, 0")
    k(f"v_lshlrev_b32 v{vST}, 4, v2")
    k("v_lshrrev_b32 v24, 4, v2"); k("v_add_u32 v24, s44, v24"); k("v_max_i32 v24, 0, v24"); k("v_mul_u32_u24 v24, 73728, v24")
    k("v_and_b32 v25, 15, v2"); k(f"v_lshl_add_u32 v30, v25, 4, v24")
    k("v_lshrrev_b32 v26, 5, v2"); k("v_and_b32 v27, 31, v2")
    k("s_mul_i32 s8, s40, 288")
    k("v_mul_u32_u24 v24, 9216, v26"); k("v_lshl_add_u32 v24, v27, 4, v24"); k(f"v_add_u32 v31, s8, v24")
    k("v_lshlrev_b32 v24, 3, v27"); k("v_lshl_add_u32 v25, v26, 8, v24")
    k("s_lshl_b32 s45, s36, 11")
    k("s_mov_b32 s58, -1"); k("s_mov_b32 s59, 0")
    k("s_waitcnt lgkmcnt(0)")
    tl.mark("t0", True)
    srd(k, 12, 10, WS_BYTES)
    for i in range(2):
        k(f"s_mul_i32 s9, s{60+i}, 73728"); k("s_add_u32 s9, s9, s49"); k(f"s_add_u32 m0, s45, {KAo + i*1024}")
        vq("k", f"buffer_load_dwordx4 v{vST}, s[12:15], s9 offen lds")
    k("s_lshl_b32 s9, s36, 9"); k(f"s_add_u32 m0, s9, {KBo}"); k("s_add_u32 s9, s49, 1024"); k("s_mov_b64 exec, s[58:59]")
    vq("k", f"buffer_load_dwordx4 v30, s[12:15], s9 offen lds")
    k("s_mov_b64 exec, -1")
    for i in range(3): vq("q", f"buffer_load_dwordx2 v[{Q+2*i}:{Q+2*i+1}], v25, s[12:15], s47 offen offset:{512*i}")
    k("s_mov_b32 s52, 0x3ffff"); k("s_mov_b32 s53, 0x3ffff"); k("s_mov_b64 exec, s[52:53]")
    k("s_lshl_b32 s8, s36, 12"); k(f"s_add_u32 s8, s8, {VBo}")
    for i in range(2):
        k(f"s_mul_i32 s9, s{60+i}, 36864"); k(f"s_add_u32 s9, s9, {WS_V:#x}")
        for u in range(2):
            k(f"s_add_u32 m0, s8, {(2*i+u)*1024}")
            if u: k("s_add_u32 s9, s9, 18432")
            vq("v", f"buffer_load_dwordx4 v31, s[12:15], s9 offen lds")
    k("s_not_b64 exec, exec")
    for i in range(4): k(f"v_mov_b32 v{AF+i}, 0x3f803f80")
    k(f"v_add_u32 v{vVr}, s8, v{vST}")
    for i in range(4): k(f"ds_write_b128 v{vVr}, v[{AF}:{AF+3}] offset:{i*1024}")
    k("s_mov_b64 exec, -1")
    srd(k, 16, 4, D*F*2); srd(k, 20, 6, D*F*2); srd(k, 24, 28, D*F*2); srd(k, 32, 30, S*D*2)
    k(f"s_mov_b32 s98, {S*D*2:#x}"); k("s_mov_b32 s99, 0x00020000")
    if touch:
        k("s_lshr_b32 s8, s2, 3"); k("s_lshl_b32 s8, s8, 3"); k("s_add_u32 s8, s8, s36")
        k("s_mul_i32 s9, s8, 911"); k("s_lshr_b32 s9, s9, 16"); k("s_mul_i32 s62, s9, 72"); k("s_sub_u32 s8, s8, s62")
        k(f"s_mul_i32 s62, s8, {8*9216}"); k("s_mul_i32 s63, s37, 1152"); k("s_add_u32 s62, s62, s63")
        k("s_mov_b32 s50, 9216"); k(f"s_mov_b32 s30, {D*F*2:#x}"); k("s_mov_b32 s31, 0x00020000")
        k("s_mul_i32 s63, s63, 576"); k(f"s_mul_i32 s54, s8, {8*1152}"); k("s_add_u32 s63, s63, s54")
        k("s_cmp_eq_u32 s9, 2"); k("s_cselect_b32 s62, s63, s62"); k("s_cselect_b32 s50, 1152, s50")
        k("s_cmp_eq_u32 s9, 0"); k("s_cselect_b32 s28, s4, s28"); k("s_cselect_b32 s29, s5, s29")
        k("s_cmp_eq_u32 s9, 1"); k("s_cselect_b32 s28, s6, s28"); k("s_cselect_b32 s29, s7, s29")
        k("s_min_u32 s8, s8, 26"); k("s_lshl_b32 s8, s8, 13"); k(f"s_mul_i32 s63, s37, {4*55296}"); k("s_add_u32 s63, s63, s8"); k(f"s_add_u32 s63, s63, {WS_WL:#x}")
        k("s_cmp_eq_u32 s9, 3"); k("s_cselect_b32 s28, s10, s28"); k("s_cselect_b32 s29, s11, s29"); k("s_cselect_b32 s62, s63, s62"); k("s_cselect_b32 s50, 1024, s50")
        k(f"s_cselect_b32 s30, {WS_BYTES:#x}, s30")
        k("v_lshrrev_b32 v30, 3, v2"); k("v_mul_lo_u32 v30, s50, v30"); k("v_and_b32 v31, 7, v2"); k("v_lshl_add_u32 v7, v31, 7, v30")
    tch = [("vm", "tch", "buffer_load_dword v17, v7, s[28:31], s62 offen")] if touch else []
    k(f"s_add_u32 s8, s41, {KAo}"); k(f"v_add_u32 v{vKr}, s8, v25")
    k("s_lshl_b32 s8, s36, 8"); k(f"s_add_u32 s8, s8, {KBo}"); k(f"v_add_u32 v{vKr2}, s8, v24")
    k(f"s_add_u32 s8, s45, {VBo}"); k(f"v_add_u32 v{vVr}, s8, v{vST}")
    k(f"v_lshlrev_b32 v30, 2, v26"); k(f"v_sub_u32 v{vQm}, v27, v30")
    MS = 64
    for r in range(16): k(f"v_cmp_le_i32 s[{MS+2*r}:{MS+2*r+1}], {8*(r>>2)+(r&3)}, v{vQm}")
    k("v_mov_b32 v24, 0xffff")
    for j in range(8):
        k(f"v_cndmask_b32 v{MP+j}, 0, v24, s[{MS+4*j}:{MS+4*j+1}]")
        k(f"v_cndmask_b32 v{MP+j}, v{MP+j}, -1, s[{MS+4*j+2}:{MS+4*j+3}]")
    k("s_bitcmp1_b32 s40, 0")
    k("s_cselect_b32 s52, 0, -1"); k("s_mov_b32 s53, -1")
    k("s_cselect_b32 s56, -1, 0"); k("s_mov_b32 s57, 0")
    k("s_sub_i32 s54, 8, s39")
    k("s_and_b32 s8, s36, 1"); k("s_lshl_b32 s8, s8, 1"); k("s_bfe_u32 s9, s36, 0x10001"); k("s_or_b32 s8, s8, s9"); k("s_and_b32 s9, s36, 4"); k("s_or_b32 s8, s8, s9")
    k("s_lshl_b32 s42, s8, 10")
    k("s_mul_i32 s43, s36, 73728"); k("s_mul_i32 s8, s37, 1152"); k("s_add_u32 s43, s43, s8"); k("s_lshl_b32 s9, s38, 8"); k("s_add_u32 s43, s43, s9")
    k("s_mul_i32 s46, s39, 36864")
    def dlane(d):
        k("v_bfe_u32 v20, v2, 2, 3"); k("v_bfe_u32 v21, v2, 4, 1"); k("v_lshlrev_b32 v21, 1, v21"); k("v_and_b32 v22, 3, v2"); k("v_xor_b32 v21, v21, v22")
        k("v_lshlrev_b32 v21, 4, v21"); k("v_lshrrev_b32 v23, 5, v2"); k("v_lshl_add_u32 v21, v23, 6, v21")
    dlane(0)
    k(f"v_mul_u32_u24 v{vD1}, 9216, v20"); k(f"v_add_u32 v{vD1}, v{vD1}, v21")
    k("s_lshl_b32 s8, s37, 3"); k("s_lshr_b32 s9, s2, 5"); k("s_add_u32 s8, s8, s9")
    k("s_lshl_b32 s48, s8, 2"); k("s_add_u32 s48, s48, s38"); k("s_lshl_b32 s48, s48, 16"); k("s_add_u32 s48, s48, s41"); k(f"s_add_u32 s48, s48, {W8_HX:#x}")
    k("s_lshr_b32 s8, s2, 3"); k(f"s_lshl_b32 s51, s8, 19"); k("s_add_u32 s51, s51, s41"); k(f"s_add_u32 s51, s51, {W8_PT:#x}")
    k(f"s_lshl_b32 s55, s37, {PG}"); k("s_add_u32 s55, s55, s51")
    for e in range(4): k(f"v_mov_b32 v{T+e}, -1")
    k("s_add_u32 s3, s3, s37"); k("s_mul_i32 s50, s3, 36864")
    k("s_and_b32 s8, s36, 3"); k("s_mul_i32 s63, s8, 9216")
    k("s_lshl_b32 s9, s38, 2"); k("s_lshr_b32 s60, s36, 1"); k("s_add_u32 s9, s9, s60")
    k("s_mul_i32 s60, s9, 36864"); k("s_xor_b32 s9, s9, 1"); k("s_mul_i32 s61, s9, 36864")
    k(f"s_add_u32 s9, s63, {Z_WO:#x}"); k("s_add_u32 s60, s60, s9"); k("s_add_u32 s61, s61, s9")
    k("s_mul_i32 s44, s38, 37888"); k("s_add_u32 s44, s44, s9"); k(f"s_add_u32 s44, s44, {576*1024}")
    k("s_add_u32 s63, s63, s50"); k(f"s_add_u32 s63, s63, {Z_O:#x}")
    k("s_cmp_lt_u32 s36, 4"); k("s_cselect_b32 s4, 0x1ffff, 0"); k("s_mov_b32 s5, s4")
    k("s_lshl_b32 s45, s38, 3"); k("s_add_u32 s45, s45, s36")
    k("v_mul_u32_u24 v30, 1152, v27"); k("v_lshl_add_u32 v30, v26, 3, v30"); k("v_lshlrev_b32 v31, 2, v27")
    k("s_lshl_b32 s6, s45, 5"); k("s_add_u32 s6, s6, s50")
    k("s_lshl_b32 s7, s38, 5"); k("s_add_u32 s7, s7, s50"); k("s_bfe_u32 s8, s36, 0x10001"); k("s_lshl_b32 s8, s8, 4"); k("s_add_u32 s7, s7, s8")
    k("s_and_b32 s8, s36, 1"); k("s_lshl_b32 s8, s8, 2"); k("s_add_u32 s7, s7, s8")
    k("s_lshl_b32 s8, s3, 7"); k(f"s_add_u32 s8, s8, {Z_MX:#x}")
    vq("xr", f"buffer_load_dword v{XRS}, v30, s[96:99], s7 offen offset:1024")
    vq("xr", f"buffer_load_dword v{MXR}, v31, s[12:15], s8 offen")
    vq("xr", f"buffer_load_dwordx2 v[{XM}:{XM+1}], v30, s[96:99], s6 offen")
    vq("xr", f"buffer_load_dwordx2 v[{XM+2}:{XM+3}], v30, s[96:99], s6 offen offset:16")
    DSL = [6, 7, 0, 1, 2, 3, 4, 5, 6]
    DX = [(0, 0), (1, 0), (2, 0), (3, 0), None, (0, 1), (1, 1), (2, 1), (3, 1)]
    KS = [(j//2, j % 2) for j in range(12)] + [(6, 0), (7, 0), (8, 0), (6, 1), (7, 1), (8, 1)]
    def dmaC(c):
        s = (c % 6)*SL
        return [[f"s_add_u32 s9, s43, {(c % 9)*64*9216 + (c//9)*128}", f"s_add_u32 m0, s42, {s}", ("vm", f"dC{c}", f"buffer_load_dwordx4 v{vD1}, s[16:19], s9 offen lds")],
                [f"s_add_u32 s9, s43, {(c % 9)*64*9216 + (c//9)*128}", f"s_add_u32 m0, s42, {s+8192}", ("vm", f"dC{c}", f"buffer_load_dwordx4 v{vD1}, s[20:23], s9 offen lds")]]
    def dmaD(c):
        if c == 4: so = lambda g: [f"s_add_u32 s9, s{44+g}, {512*1152}"]
        else: so = lambda g: [f"s_add_u32 s9, s{44+g}, s{60+DX[c][0]}"] + ([f"s_add_u32 s9, s9, {64*1152}"] if DX[c][1] else [])
        return [so(g) + [f"s_add_u32 m0, s41, {DSL[c]*SL + g*8192}", ("vm", f"dD{c}", f"buffer_load_dwordx4 v{vD2}, s[24:27], s9 offen lds")] for g in range(2)]
    def dmaR(d):
        base = RWD if d else RW1; vo = vST if d else vDR1; nj = 2 if d else 4
        def f():
            l = k.label("r2")
            k(f"s_cmp_ge_u32 s36, {nj}"); k(f"s_cbranch_scc1 {l}")
            k(f"s_add_u32 s9, s53, {36864*d + 8192*nj}"); k(f"s_add_u32 m0, s41, {base + 8192*nj}"); k(f"buffer_load_dwordx4 v{vo}, s[12:15], s9 offen lds")
            k.put(l)
        so = (lambda j: [f"s_xor_b32 s9, s54, {j << 13}", "s_add_u32 s9, s9, s52"]) if d else (lambda j: [f"s_add_u32 s9, s53, {8192*j}"])
        return [("call", f)] + [so(j) + [f"s_add_u32 m0, s41, {base + 8192*j}", ("vm", f"dR{d}", f"buffer_load_dwordx4 v{vo}, s[12:15], s9 offen lds")] for j in range(nj)]
    xr = lambda s, tt: f"v[{XR+8*s+4*tt}:{XR+8*s+4*tt+3}]"
    def xload(s, m=None):
        if m is None: m = "sc1" if s < 2 else xld
        return [[f"s_add_u32 s9, s46, {Z_HC + (s//2)*4096:#x}", ("vm", f"x{s}", f"buffer_load_dwordx4 {xr(s,tt)}, v{vXL}, s[12:15], s9 offen offset:{(s%2)*2048 + tt*256} {m}")] for tt in range(2)]
    def hload(j):
        if nox: return [["s_nop 0"]]
        c, ks = KS[j]
        so = (lambda tt: f"s_add_u32 s9, s47, {(2*ks + tt) << 13}") if c == 4 else (lambda tt: f"s_xor_b32 s9, s48, {(8*DX[c][0] + 4*DX[c][1] + 2*ks + tt) << 13:#x}")
        return [[so(tt), ("vm", f"h{j}", f"buffer_load_dwordx4 {xr(j,tt)}, v{vST}, s[12:15], s9 offen {hld}")] for tt in range(2)]
    def emit(it):
        if isinstance(it, tuple) and it[0] == "wait": vq.wait(it[1])
        elif isinstance(it, tuple) and it[0] == "call": it[1]()
        elif isinstance(it, list):
            for x in it: emit(x)
        else: vq.emit(it)
    def paddr(p):
        if ptre: return [f"s_add_u32 s9, s48, {((8-p) << 13):#x}"]
        return [f"s_xor_b32 s9, s55, {((p&7) << PG) | ((p&7) << PP_):#x}"]
    sfl = [[f"s_add_u32 s9, s48, {(4+n) << 13:#x}", ("vm", "sf", f"buffer_store_dwordx4 v[{T}:{T+3}], v{vST}, s[12:15], s9 offen {fillm}")] for n in range(4)]
    sfl += [paddr(p) + [("vm", "sf", f"buffer_store_dwordx4 v[{T}:{T+3}], v{vST}, s[12:15], s9 offen {fillm}")] for p in range(1, 9)]
    if nofill: sfl = []
    AG = [240, 244, 248, 252, Q, S_(0)+8, S_(0)+12]
    for t in range(1, 6): AG += [S_(t)+8, S_(t)+12, S_(t), S_(t)+4]
    aorder = [(n, e) for n in range(9) for e in range(3)]
    AR = {ne: AG[x] for x, ne in enumerate(aorder)}
    def aload(x):
        n, e = aorder[x]; r = AG[x]
        ad = f"s_add_u32 s9, s{(60, 61, 44)[e]}, {(n//4)*4096}"
        ld = f"buffer_load_dwordx4 v[{r}:{r+3}], v{vST}, s[12:15], s9 offen offset:{(n%4)*1024}"
        if e == 2: return [ad, "s_mov_b64 exec, s[4:5]", ld, "s_mov_b64 exec, -1"]
        return [ad, ("vm", "wo", ld)]
    tpos = P.get("tpos", None)
    tat = {}
    if touch and tpos is not None:
        nb = len(tpos); lw = 64 // nb
        for j, st in enumerate(tpos):
            m = ((1 << lw) - 1) << (lw*j)
            tat.setdefault(st, []).append([f"s_mov_b32 exec_lo, {m & 0xffffffff:#x}", f"s_mov_b32 exec_hi, {m >> 32:#x}", tch[0], "s_mov_b64 exec, -1"])
        tch = []
    bg = tch + sum([dmaC(c) for c in range(6)], [])
    npre = P.get("npre", 3)
    for x in bg[:npre]: emit(x)
    bg = bg[npre:]
    vq.wait("q")
    k(f"v_cndmask_b32 v{Q}, 0, v{Q}, s[52:53]")
    k(f"v_cndmask_b32 v{Q+4}, 0, v{Q+4}, s[58:59]")
    k(f"v_cndmask_b32 v{Q+5}, 0, v{Q+5}, s[56:57]")
    k("s_barrier")
    xm("kq")
    order = [8, 0, 1, 2, 3, 4, 5, 6, 7]
    def kread(i):
        t = order[i]; f = AF + 8*(i % 4)
        k(f"ds_read_b64 v[{f}:{f+1}], v{vKr} offset:{t*1024}")
        k(f"ds_read_b64 v[{f+2}:{f+3}], v{vKr} offset:{t*1024+512}")
        k(f"ds_read_b64 v[{f+4}:{f+5}], v{vKr2} offset:{t*256}")
    for i in range(3): kread(i)
    aool = []
    work = []
    for r in range(16): work.append((2, f"v_cndmask_b32 v{S_(8)+r}, v{S_(0)+r}, v{S_(8)+r}, s[{MS+2*r}:{MS+2*r+1}]"))
    MX = [AT, AT+1, AT+2, AT+3]
    first = [True]*4
    for i, t in enumerate(order):
        if t == 0: continue
        for j in range(8):
            c = j % 4; a = S_(t) + 2*j
            if first[c]: work.append((max(i, 1)+1, f"v_max_f32 v{MX[c]}, v{a}, v{a+1}")); first[c] = False
            else: work.append((max(i, 1)+1, f"v_max3_f32 v{MX[c]}, v{a}, v{a+1}, v{MX[c]}"))
    wp = 0
    nq = P.get("nq", 1)
    for i, t in enumerate(order):
        f = AF + 8*(i % 4)
        k(f"s_waitcnt lgkmcnt({min(2, 8 - i) * 3})")
        if t < 8:
            ln = k.label("neg"); lb = k.label("back")
            k(f"s_cmp_gt_i32 s54, {t}"); k(f"s_cbranch_scc1 {ln}")
            aool.append((ln, lb, t))
        k(f"v_mfma_f32_32x32x16_bf16 v[{S_(t)}:{S_(t)+15}], v[{f}:{f+3}], v[{Q}:{Q+3}], 0")
        k(f"v_mfma_f32_32x32x8_bf16 v[{S_(t)}:{S_(t)+15}], v[{f+4}:{f+5}], v[{Q+4}:{Q+5}], v[{S_(t)}:{S_(t)+15}]")
        if t < 8: k.put(lb)
        if i + 3 < 9: kread(i + 3)
        for x in bg[:nq]: emit(x)
        bg = bg[nq:]
        n = 0
        while wp < len(work) and work[wp][0] <= i and n < 12:
            k(work[wp][1]); wp += 1; n += 1
    vq.wait("v")
    k("s_barrier")
    pv = [(1, S_(1)), (2, S_(2)), (3, S_(3)), (4, S_(4)), (5, S_(5)), (6, S_(6)), (7, S_(7)), (8, S_(8)), (0, S_(0))]
    def vread(i):
        t = pv[i][0]; f = AF + 8*(i % 4)
        for u in range(2): k(f"ds_read_b128 v[{f+4*u}:{f+4*u+3}], v{vVr} offset:{(2*t+u)*1024}")
    for i in range(3): vread(i)
    for x in bg: emit(x)
    while wp < len(work): k(work[wp][1]); wp += 1
    k(f"v_max_f32 v{AT}, v{AT}, v{AT+1}"); k(f"v_max3_f32 v{AT}, v{AT+2}, v{AT+3}, v{AT}")
    k(f"v_mov_b32 v{AT+1}, v{AT}")
    k(f"v_permlane32_swap_b32 v{AT}, v{AT+1}")
    k(f"v_max_f32 v{AT}, v{AT}, v{AT+1}")
    xm("mx")
    def soft(t, half):
        out = []; b = S_(t) + 8*half
        for r in range(8): out.append(f"v_sub_f32 v{b+r}, v{b+r}, v{AT}")
        for r in range(8): out.append(f"v_exp_f32 v{b+r}, v{b+r}")
        for j in range(4):
            d = S_(t) + 4*half + j
            out.append(f"v_cvt_pk_bf16_f32 v{d}, v{b+2*j}, v{b+2*j+1}")
        if t == 8:
            for j in range(4):
                d = S_(t) + 4*half + j; e = S_(0) + 4*half + j
                out.append(f"v_bfi_b32 v{e}, v{MP+4*half+j}, 0, v{d}")
                out.append(f"v_and_b32 v{d}, v{MP+4*half+j}, v{d}")
        return out
    steps = [(i, u) for i in range(9) for u in range(2)]
    for x in soft(1, 0): k(x)
    ap = 0; fp = 0
    for n, (i, u) in enumerate(steps):
        t, Pr = pv[i]; f = AF + 8*(i % 4)
        if u == 0: k(f"s_waitcnt lgkmcnt({min(2, 8-i)*2})")
        nxt = steps[n+1] if n + 1 < len(steps) else None
        w = soft(pv[nxt[0]][0], nxt[1]) if (nxt is not None and pv[nxt[0]][0] != 0) else []
        for x in w[:2]: k(x)
        C = "0" if n == 0 else f"v[{O}:{O+15}]"
        k(f"v_mfma_f32_32x32x16_bf16 v[{O}:{O+15}], v[{f+4*u}:{f+4*u+3}], v[{Pr+4*u}:{Pr+4*u+3}], {C}")
        if u == 1 and i + 3 < 9: vread(i + 3)
        avail = 7 + 2*n
        vm = []
        while ap < min(avail, 27) and len(vm) < P.get("apn", 2): vm.append(aload(ap)); ap += 1
        if fp < len(sfl): vm.append(sfl[fp]); fp += 1
        vm += tat.get(n, [])
        rest = w[2:]
        for j, x in enumerate(vm):
            lo = (j*len(rest))//len(vm); hi = ((j+1)*len(rest))//len(vm)
            emit(x)
            for y in rest[lo:hi]: k(y)
        if not vm:
            for y in rest: k(y)
    assert ap == 27 and fp == len(sfl)
    k("s_lshl_b32 s8, s40, 10"); k("s_add_u32 s8, s8, s46"); k(f"s_add_u32 s8, s8, {Z_O:#x}")
    k("s_lshr_b32 s6, s40, 2"); k("s_lshl_b32 s6, s6, 9"); k("s_and_b32 s7, s40, 3"); k("s_lshl_b32 s7, s7, 2")
    k("s_add_u32 s6, s6, s7"); k("s_add_u32 s6, s6, s46"); k(f"s_add_u32 s6, s6, {Z_O + 32768:#x}")
    k(f"v_rcp_f32 v{AT}, v{O+10}")
    for r in range(10): k(f"v_mul_f32 v{O+r}, v{O+r}, v{AT}")
    for j in range(5): k(f"v_cvt_pk_bf16_f32 v{AF+j}, v{O+2*j}, v{O+2*j+1}")
    vq("os", f"buffer_store_dwordx4 v[{AF}:{AF+3}], v{vST}, s[12:15], s8 offen sc1")
    k("s_mov_b64 exec, s[58:59]")
    vq("os", f"buffer_store_dword v{AF+4}, v{vST}, s[12:15], s6 offen sc1")
    k("s_mov_b64 exec, -1")
    xm("at")
    PA = S_(6); RA = S_(8); XC = O
    BG = [40, 44, 48, 52, 56, 60, 80, 84, 232]
    vq.wait("xr")
    for j in range(4):
        k(f"v_lshlrev_b32 v{XC+2*j}, 16, v{XM+j}"); k(f"v_and_b32 v{XC+2*j+1}, 0xffff0000, v{XM+j}")
    for j in range(8): k(f"v_mov_b32 v{XC+8+j}, 0")
    vEW = 24
    k("s_lshl_b32 s8, s36, 11"); k(f"s_add_u32 s8, s8, {EXo}"); k(f"v_add_u32 v{vEW}, s8, v{vST}")
    for p_ in range(1, 4): k(f"v_xor_b32 v{vEW+p_}, {p_*2048}, v{vEW}")
    k("v_and_b32 v29, 31, v2"); k("v_lshlrev_b32 v29, 4, v29"); k(f"v_add_u32 v29, {MXo}, v29")
    k("s_and_b32 s8, s36, 3"); k("s_lshl_b32 s9, s8, 2"); k("v_add_u32 v30, s9, v29")
    k("s_lshr_b32 s9, s8, 1"); k("s_lshl_b32 s9, s9, 10"); k("s_and_b32 s8, s8, 1"); k("s_lshl_b32 s8, s8, 3"); k("s_add_u32 s8, s8, s9"); k(f"s_add_u32 s8, s8, {RXo}")
    k(f"v_add_u32 v28, s8, v{vST}")
    dlane(0)
    k("s_and_b32 s8, s37, 3"); k("s_lshl_b32 s8, s8, 5"); k("v_xor_b32 v21, s8, v21")
    k(f"v_mul_u32_u24 v{vD2}, 1152, v20"); k(f"v_add_u32 v{vD2}, v{vD2}, v21")
    k("v_bfe_u32 v0, v2, 4, 1"); k("v_and_b32 v1, 15, v2")
    k("v_lshlrev_b32 v21, 4, v1"); k("v_lshl_add_u32 v21, v0, 9, v21"); k(f"v_lshl_add_u32 v{vDR1}, v23, 8, v21"); k(f"v_lshl_add_u32 v{vXL}, v23, 10, v21")
    k("v_lshlrev_b32 v22, 3, v22")
    k("v_lshl_add_u32 v21, v20, 6, v22"); k("v_lshl_add_u32 v21, v23, 10, v21"); k(f"v_lshl_add_u32 v{vE[0]}, v0, 5, v21"); k(f"v_xor_b32 v{vO[0]}, 32, v{vE[0]}")
    k(f"v_add_u32 v{vE[1]}, 0x10000, v{vE[0]}"); k(f"v_add_u32 v{vO[1]}, 0x10000, v{vO[0]}")
    k("v_lshl_add_u32 v21, v20, 5, v22"); k("v_lshl_add_u32 v21, v23, 8, v21"); k(f"v_add_u32 v{vRR}, {RW1}, v21")
    k(f"v_and_b32 v{vFL}, 3, v2"); k(f"v_lshlrev_b32 v{vFL}, 2, v{vFL}")
    k("v_lshl_add_u32 v11, v23, 4, v1"); k("v_lshlrev_b32 v11, 2, v11")
    k("v_and_b32 v19, 31, v2"); k("v_lshlrev_b32 v19, 10, v19")
    k("s_mul_i32 s53, s40, 55296"); k(f"s_add_u32 s53, s53, {WS_WL:#x}"); k("s_add_u32 s52, s53, 36864"); k("s_add_u32 s53, s53, s41")
    k("s_lshl_b32 s54, s38, 12"); k("s_xor_b32 s54, s54, s41")
    k("s_lshl_b32 s8, s37, 3"); k("s_lshr_b32 s9, s2, 5"); k("s_add_u32 s8, s8, s9")
    k("s_lshl_b32 s47, s8, 15"); k("s_add_u32 s47, s47, s41"); k(f"s_add_u32 s47, s47, {W8_HR:#x}")
    k("s_lshl_b32 s8, s37, 6"); k("s_add_u32 s8, s8, s39"); k(f"s_lshl_b32 s49, s8, 7"); k(f"s_add_u32 s49, s49, {Z_FLAG:#x}")
    k("s_mov_b32 s56, 15"); k("s_mov_b32 s57, 0")
    k("s_lshl_b32 s6, s45, 10"); k("s_add_u32 s6, s6, s50"); k(f"s_add_u32 s6, s6, {Z_HC:#x}")
    k(f"s_mov_b32 s7, {RETRY}")
    k("s_barrier")
    k("s_waitcnt vmcnt(0)")
    xm("oa")
    lcp1 = k.label("cp1"); lpj = k.label("pj")
    k("s_cmp_ge_u32 s36, 4"); k(f"s_cbranch_scc1 {lcp1}")
    for cp in range(2):
        if cp: k.put(lcp1)
        lr = k.label("pr"); lo = k.label("po"); k.put(lr)
        for n in range(9):
            if n % 4 == 0: k(f"s_add_u32 s9, s63, {(n//4)*4096}")
            k(f"buffer_load_dwordx4 v[{BG[n]}:{BG[n]+3}], v{vST}, s[12:15], s9 offen offset:{(n%4)*1024} sc1")
        for n in range(9):
            k(f"s_waitcnt vmcnt({8-n})")
            for e in range(3 - cp):
                d = (PA, PA+16, RA)[e]; a = AR[(n, e)]
                C = f"v[{d}:{d+15}]" if n else (f"v[{XC}:{XC+15}]" if e == 0 else "0")
                k(f"v_mfma_f32_32x32x16_bf16 v[{d}:{d+15}], v[{a}:{a+3}], v[{BG[n]}:{BG[n]+3}], {C}")
        for j in range(6): k(f"ds_write_b128 v{vEW}, v[{PA+8+4*j}:{PA+11+4*j}] offset:{(j//2)*16384 + (j%2)*1024}")
        k(f"v_cmp_u_f32 vcc, v{PA+8}, v{PA+8}")
        if cp == 0:
            for j in range(2): k(f"ds_write_b128 v{vEW}, v[{RA+4*j}:{RA+4*j+3}] offset:{RXo-EXo + j*1024}")
            k("s_mov_b64 exec, s[58:59]")
            k(f"ds_write_b32 v30, v{RA+8}")
            k("s_mov_b64 exec, -1")
        k(f"s_cbranch_vccz {lpj}")
        k("s_sub_u32 s7, s7, 1"); k(f"s_cbranch_scc0 {lr}")
        if cp == 0: k(f"s_branch {lpj}")
    k.put(lpj)
    xm("pm")
    k("s_waitcnt lgkmcnt(0)"); k("s_barrier")
    ER = 40
    k(f"ds_read_b128 v[{ER-4}:{ER-1}], v29")
    for j in range(6): k(f"ds_read_b128 v[{ER+4*j}:{ER+4*j+3}], v{vEW+1+j//2} offset:{(j//2)*16384 + (j%2)*1024}")
    k("s_waitcnt lgkmcnt(6)")
    k(f"v_add_f32 v{ER-4}, v{ER-4}, v{ER-3}"); k(f"v_add_f32 v{ER-2}, v{ER-2}, v{ER-1}"); k(f"v_add_f32 v{ER-4}, v{ER-4}, v{ER-2}"); k(f"v_add_f32 v{MXR}, v{MXR}, v{ER-4}")
    for e in range(8): k(f"v_sub_f32 v{PA+e}, v{PA+e}, v{MXR}")
    for j in range(6):
        k(f"s_waitcnt lgkmcnt({5-j})")
        for e in range(4): k(f"v_add_f32 v{PA+4*(j%2)+e}, v{PA+4*(j%2)+e}, v{ER+4*j+e}")
    for e in range(4): k(f"v_cvt_pk_bf16_f32 v{ER-4+e}, v{PA+2*e}, v{PA+2*e+1}")
    k(f"buffer_store_dwordx4 v[{ER-4}:{ER-1}], v{vST}, s[12:15], s6 offen sc1")
    k(f"v_mul_f32 v32, v{PA}, v{PA}"); k(f"v_mul_f32 v33, v{PA+1}, v{PA+1}")
    for e in range(2, 8): k(f"v_fmac_f32 v{32+e%2}, v{PA+e}, v{PA+e}")
    lnr = k.label("nr"); lnm = k.label("nm")
    k("s_cmp_lt_u32 s36, 4"); k(f"s_cbranch_scc1 {lnr}")
    for j in range(4): k(f"ds_read_b64 v[{ER+2*j}:{ER+2*j+1}], v28 offset:{j*2048}")
    k(f"v_lshlrev_b32 v0, 16, v{XRS}"); k(f"v_and_b32 v1, 0xffff0000, v{XRS}")
    k(f"v_sub_f32 v0, v0, v{MXR}"); k(f"v_sub_f32 v1, v1, v{MXR}")
    k("s_lshl_b32 s8, s38, 10"); k("s_add_u32 s8, s8, s50"); k("s_and_b32 s9, s36, 3"); k("s_lshl_b32 s9, s9, 2"); k("s_add_u32 s8, s8, s9"); k(f"s_add_u32 s8, s8, {Z_HC + 32768:#x}")
    for j in range(4):
        k(f"s_waitcnt lgkmcnt({3-j})")
        k(f"v_add_f32 v0, v0, v{ER+2*j}"); k(f"v_add_f32 v1, v1, v{ER+2*j+1}")
    k("v_cvt_pk_bf16_f32 v34, v0, v1")
    k(f"buffer_store_dword v34, v{vST}, s[12:15], s8 offen sc1")
    k("v_fmac_f32 v32, v0, v0"); k("v_fmac_f32 v33, v1, v1")
    k(f"s_branch {lnm}")
    k.put(lnr)
    k("s_cmp_lg_u32 s45, 0"); k(f"s_cbranch_scc1 {lnm}")
    k("s_lshl_b32 s8, s3, 7"); k(f"s_add_u32 s8, s8, {Z_MN:#x}"); k("v_and_b32 v0, 31, v2"); k("v_lshlrev_b32 v0, 2, v0"); k(f"v_mov_b32 v1, v{MXR}")
    k(f"buffer_store_dword v1, v0, s[12:15], s8 offen sc1")
    k.put(lnm)
    k("v_add_f32 v32, v32, v33"); k("s_lshl_b32 s8, s36, 8"); k(f"s_add_u32 s8, s8, {SQo}"); k("v_lshl_add_u32 v33, v2, 2, s8")
    k("ds_write_b32 v33, v32")
    k("s_lshl_b32 s59, s3, 9"); k("s_lshl_b32 s8, s38, 2"); k("s_add_u32 s59, s59, s8"); k(f"s_add_u32 s59, s59, {Z_SQ:#x}")
    xm("hs")
    k("s_mul_i32 s8, s37, 576"); k("s_lshl_b32 s9, s36, 3"); k("s_add_u32 s9, s9, s8"); k("s_mul_i32 s9, s9, 1152"); k("s_lshl_b32 s3, s38, 8"); k("s_add_u32 s9, s9, s3")
    k("s_lshr_b32 s3, s37, 2"); k("s_lshl_b32 s3, s3, 7"); k("s_add_u32 s44, s9, s3"); k("s_xor_b32 s3, s3, 128"); k("s_add_u32 s45, s9, s3")
    for x in range(4): k(f"s_xor_b32 s9, s38, {x}"); k(f"s_mul_i32 s{60+x}, s9, {128*1152}")
    k("s_lshl_b32 s8, s38, 2"); k("s_add_u32 s50, s49, s8")
    k("s_cmp_eq_u32 s36, s37"); k("s_cselect_b32 s58, 1.0, 0")
    k(f"s_add_u32 s8, s46, {Z_HC:#x}")
    k(f"s_mov_b32 s7, {RETRY}")
    k("s_waitcnt vmcnt(0)")
    xm("ha")
    vq.q = []
    lh = k.label("hint"); lho = k.label("hok"); k.put(lh)
    vq("hint", f"buffer_load_dword v{vPL}, v19, s[12:15], s8 offen offset:1020 sc1")
    emit(xload(0)); emit(xload(1))
    k("s_sub_u32 s7, s7, 1"); k(f"s_cbranch_scc1 {lho}")
    vq.wait("hint")
    k(f"v_cmp_eq_u32 vcc, -1, v{vPL}")
    k("s_nop 1")
    k(f"s_cbranch_vccnz {lh}")
    k.put(lho)
    xm("hv")
    NX0 = P.get("nx0", 3)
    for s in range(2, NX0): emit(xload(s))
    ool = []
    def publish(stage, tags, tn=None):
        def f():
            xm(f"p{stage}a")
            k(f"s_waitcnt vmcnt({min(vq.n(t) for t in tags)})")
            xm(f"p{stage}b")
            k(f"v_mov_b32 v1, {stage}")
            k("s_mov_b64 exec, 1")
            if spoll: k(f"s_add_u32 s9, s50, {stage << 16:#x}")
            vq("fl", f"buffer_store_dword v1, off, s[12:15], {'s9' if spoll else 's50'} sc1")
            k("s_mov_b64 exec, -1")
        return ("call", f)
    def poll_issue(n):
        if spoll: return [f"s_add_u32 s68, s49, {n << 16:#x}", "s_buffer_load_dwordx4 s[64:67], s[12:15], s68"]
        return ("vm", f"poll{n}", f"buffer_load_dword v{vPL}, v{vFL}, s[12:15], s49 offen sc1")
    def ptest(stage, lab):
        k(f"v_cmp_gt_u32 vcc, {stage}, v{vPL}"); k(f"s_and_b64 vcc, vcc, s[56:57]"); k(f"s_cbranch_scc1 {lab}")
        if stage == 3 and selfill:
            k(f"v_cmp_gt_u32 vcc, 2, v{vPL}"); k(f"s_and_b64 vcc, vcc, s[58:59]"); k(f"s_cbranch_scc1 {lab}")
    def poll_check(stage):
        def f():
            xm(f"c{stage}a")
            if spoll: k("s_waitcnt lgkmcnt(0)"); lq.clear()
            else: vq.wait(f"poll{stage}")
            xm(f"c{stage}b")
            ls = k.label("spin"); lb = k.label("go")
            if spoll:
                k("s_and_b64 s[64:65], s[64:65], s[66:67]"); k("s_and_b32 s64, s64, s65"); k(f"s_cbranch_scc0 {ls}")
            else: ptest(stage, ls)
            k.put(lb); ool.append((ls, lb, stage))
            xm(f"c{stage}c")
        return ("call", f)
    fr = []
    def ard(slot, grp, t, ks):
        o = slot*SL + grp*8192 + 4*ks*1024 + (t >> 1)*512
        v = (vO if t & 1 else vE)[o >> 16]
        return [(v, o & 0xffff), (v, (o & 0xffff) + 2048)]
    GRP = [[0, 1, 2], [3, 4, 5], [6, 7, 8], [9, 10, 11], [12, 13, 14], [15, 16, 17]]
    km = lambda cc: [(c, t, ks, m) for c in cc for ks in range(2) for t in range(4) for m in range(2)]
    pm = lambda cc, o=(0, 1): [(c, t, ks, m) for pr in o for c in cc for ks in range(2) for t in (2*pr, 2*pr+1) for m in range(2)]
    for G in GRP:
        seq = {6: km([6, 7]) + pm([8]), 9: pm([9], (1, 0)) + km([10, 11]), 15: pm(G)}.get(G[0], km(G))
        for c, t, ks, m in seq:
            q = c % 9
            s = 2*q + ks
            fr.append(dict(c=f"C{G[0]}", rd=ard(c % 6, m, t, ks), mm=[(blk(2*t+m, tt), xr(s, tt), s == 0) for tt in range(2)]))
        if G[0] == 6:
            for s in range(18):
                for m in range(2):
                    o = m*18432 + s*1024
                    fr.append(dict(c="RP", rd=[(vRR, o), (vRR, o+512)], mm=[(blk(2+m, tt), xr(s, tt), s == 0) for tt in range(2)]))
    def dfrag(p, j, cn):
        c, ks = KS[j]
        if p == 8:
            q = 16 + ks if c == 4 else 2*(2*DX[c][0] + DX[c][1]) + ks
            o = RWD - RW1 + q*1024; rd = [(vRR, o), (vRR, o+512)]
        else: rd = ard(DSL[c], p >> 2, p & 3, ks)
        fr.append(dict(c=cn, rd=rd, mm=[(blk(p, tt), xr(j, tt), j == 0 and p not in (0, 8)) for tt in range(2)], need=(f"h{j}" if c != 5 else None)))
    for ps in ((8, 0, 1, 2, 3), (4, 5, 6, 7)):
        for j in range(2):
            for p in ps: dfrag(p, j, "D0")
    for j in range(2, KA):
        for p in range(8, 0, -1): dfrag(p, j, "D1")
    for p in range(8, 0, -1):
        for j in range(KA, 18): dfrag(p, j, f"B{p}")
    for j in range(2, 18): dfrag(0, j, "G")
    N = len(fr)
    cs_ = {}; order = []
    for g, e in enumerate(fr):
        if e["c"] not in cs_: cs_[e["c"]] = g; order.append(e["c"])
    cs_["END"] = N; order.append("END")
    def at(c, frac=0.0):
        a = cs_[c]; b = cs_[order[order.index(c)+1]]
        return a + int(frac*(b - a))
    fill = [[] for _ in range(N + 1)]
    def spread(items, g0, g1):
        n = len(items); w = g1 - g0
        for i, it in enumerate(items): fill[g0 + (i*w)//n].append(it)
    bars = {f"C{G[0]}": ([f"dC{G[-1]}"] if G[0] >= 6 else []) for G in GRP}
    bars.update({"RP": ["dR0"], "D0": ["dD1", "dR1"], "D1": ["dD4"], "B8": ["dD8"]})
    bar_at = {cs_[c] - B_ - 1: c for c in bars if cs_[c] > 0}
    ab = lambda c: cs_[c] - B_
    def hdst(pr, n, tt): return blk(4*pr, tt) if n == 0 else XR + 8*(10+pr) + 4*tt
    def hcalc(pr, n, tt):
        ga, ua, gb, ub = blk(4*pr, tt), blk(4*pr+1, tt), blk(4*pr+2, tt), blk(4*pr+3, tt); d = hdst(pr, n, tt)
        out = [f"v_mul_f32 v{ua+e}, v{ua+e}, v{ga+e}" for e in range(4)] + [f"v_mul_f32 v{ub+e}, v{ub+e}, v{gb+e}" for e in range(4)]
        return out + [f"v_cvt_pk_bf16_f32 v{d+e}, v{(ua, ub)[e//2]+2*(e%2)}, v{(ua, ub)[e//2]+2*(e%2)+1}" for e in range(4)]
    def hstore(pr, n, tt):
        d = hdst(pr, n, tt)
        return [f"s_add_u32 s9, s48, {(n*4+pr*2+tt) << 13:#x}", ("vm", f"hs{n}{pr}", f"buffer_store_dwordx4 v[{d}:{d+3}], v{vST}, s[12:15], s9 offen {hst}")]
    def hcalcR():
        g, u = blk(2), blk(3)
        out = [f"v_mul_f32 v{u+e}, v{u+e}, v{g+e}" for e in range(8)] + [f"v_cvt_pk_bf16_f32 v{g+e}, v{u+2*e}, v{u+2*e+1}" for e in range(4)]
        out.append(["s_lshl_b32 s9, s38, 13", "s_add_u32 s9, s9, s47", ("vm", "hsR", f"buffer_store_dwordx4 v[{g}:{g+3}], v{vST}, s[12:15], s9 offen {hst}")])
        return out
    def psend(p):
        a = blk(p)
        return [f"v_cvt_pk_bf16_f32 v{a+e}, v{a+2*e}, v{a+2*e+1}" for e in range(4)] + \
               [paddr(p) + [("vm", f"ps{p}", f"buffer_store_dwordx4 v[{a}:{a+3}], v{vST}, s[12:15], s9 offen sc1")]]
    spread(sum([xload(s) for s in range(NX0, 18)], []), 0, P.get("xend", 100))
    if P.get("dsch", 1) == 0:
        spread(dmaC(6) + dmaC(7) + dmaC(8) + dmaR(0), ab("C3"), at("C3", .8))
        spread(dmaC(9) + dmaC(10) + dmaC(11), ab("C6"), at("C6", .6))
        spread(dmaC(12) + dmaC(13) + dmaC(14), ab("RP"), at("RP", .9))
        spread(dmaD(0) + dmaD(1) + dmaR(1), ab("C9"), at("C9", .8))
    else:
        spread(dmaC(6) + dmaC(7) + dmaC(8), ab("C3"), at("C3", P.get("d6", .6)))
        spread(dmaR(0), at("C6") + P.get("r0", -10), at("C6") + P.get("r0", -10) + 20)
        spread(dmaC(9) + dmaC(10) + dmaC(11), at("C6", .3), at("C6", .95))
        spread(dmaC(12) + dmaC(13) + dmaC(14), ab("RP"), at("RP", .9))
        spread(dmaD(0) + dmaD(1) + dmaR(1), ab("C9"), at("C9", .8))
    spread(dmaC(15) + dmaC(16) + dmaC(17), ab("C12"), at("C12", .6))
    spread(dmaD(2) + dmaD(3) + dmaD(4), ab("C15"), at("C15", .6))
    spread(dmaD(5) + dmaD(6) + dmaD(7), ab("D0") + 8, ab("D0") + 30)
    spread(dmaD(8), ab("D0") + 30, ab("D0") + 36)
    RP, C9, D0 = at("RP"), at("C9"), at("D0")
    spread(hcalc(0, 0, 0) + hcalc(0, 0, 1), RP - 7, RP)
    spread(hcalc(1, 0, 0) + hcalc(1, 0, 1), RP + 1, RP + 12)
    for n, (pr, tt) in enumerate(((0, 0), (0, 1), (1, 0), (1, 1))): fill[RP - 2 + 11*n].append(hstore(pr, 0, tt))
    spread(hcalcR(), C9 + 1, C9 + 8)
    spread(hcalc(0, 1, 0) + [hstore(0, 1, 0)] + hcalc(0, 1, 1), D0 - 25, D0 - 13); fill[D0 - 10].append(hstore(0, 1, 1))
    spread(hcalc(1, 1, 0) + [hstore(1, 1, 0)] + hcalc(1, 1, 1) + [hstore(1, 1, 1)], D0 + 1, D0 + 10)
    if not nox:
        fill[C9 + 26].append(publish(1, ["hsR"]))
        fill[C9 + 38].append(poll_issue(1)); fill[C9 + 48].append(poll_check(1))
        spread(sum([hload(j) for j in range(10)], []), C9 + 49, D0 - P.get("h10", 20))
        spread(sum([hload(j) for j in range(12, 15)], []), D0 + P.get("hb0", 14), D0 + P.get("hb0", 14) + 12)
        spread(sum([hload(j) for j in range(15, 18)], []), D0 + P.get("hb1", 44), D0 + P.get("hb1", 44) + 12)
    sw = [("wait", "h9")] if not nox else []
    for j in (8, 9): sw += [f"v_swap_b32 v{XR+8*j+2+e}, v{XR+8*j+4+e}" for e in range(2)]
    spread(sw, D0 + 12, D0 + 16)
    SUM = XR; XT = XR + 8; HR = 8
    ool2 = []
    def em(tag, text, track):
        if track: vq(tag, text)
        else: k(text)
    def maxchain(regs):
        o = [f"v_max_u32 v{vPL}, v{regs[0]}, v{regs[1]}"]
        for i in range(2, len(regs), 2): o.append(f"v_max3_u32 v{vPL}, v{regs[i]}, v{regs[i+1]}, v{vPL}")
        return o
    def scheck(regs, loader):
        def f():
            ls = k.label("retry"); lb = k.label("ok")
            k(f"v_cmp_eq_u32 vcc, -1, v{vPL}"); k(f"s_cbranch_vccnz {ls}"); k.put(lb)
            ool2.append((ls, lb, regs, loader))
        return maxchain(regs) + [("call", f)]
    def xrl(s):
        def f(track=False):
            for so, (_, _, tx) in xload(s, 'sc1'): k(so); k(tx)
        return f
    def xcheck(s): return [("wait", f"x{s}")] + scheck(list(range(XR+8*s, XR+8*s+8)), xrl(s))
    CW = P.get("cw", 3)
    for s in range(1, 18):
        g = 8*s if s < 16 else 128 - (17 - s)*CW
        spread(xcheck(s), g - CW, g)
    B8 = blk(8)
    def sqred():
        l = k.label("nq"); k(f"s_cmp_lg_u32 s36, {P.get('sqw', 0)}"); k(f"s_cbranch_scc1 {l}")
        k(f"v_lshlrev_b32 v0, 2, v2"); k(f"v_add_u32 v0, {SQo}, v0")
        for j in range(4): k(f"ds_read2st64_b32 v[{B8+2*j}:{B8+2*j+1}], v0 offset0:{2*j} offset1:{2*j+1}")
        k("s_waitcnt lgkmcnt(0)")
        for st in (4, 2, 1):
            for j in range(st): k(f"v_add_f32 v{B8+j}, v{B8+j}, v{B8+j+st}")
        k(f"v_mov_b32 v{B8+1}, v{B8}"); k(f"v_permlane32_swap_b32 v{B8}, v{B8+1}"); k(f"v_add_f32 v{B8}, v{B8}, v{B8+1}")
        k("s_mov_b32 exec_hi, 0")
        k(f"buffer_store_dword v{B8}, v{vST}, s[12:15], s59 offen sc1")
        k("s_mov_b32 exec_hi, -1")
        k.put(l)
    fill[ab("C3") + 1].append(("call", sqred))
    def mload(track=True):
        k("s_lshl_b32 s9, s39, 7"); k(f"s_add_u32 s9, s9, {Z_MN:#x}")
        em("mn", f"buffer_load_dword v{T}, v11, s[12:15], s9 offen sc1", track)
        k("s_lshl_b32 s9, s39, 9"); k(f"s_add_u32 s9, s9, {Z_SQ:#x}"); k("v_lshlrev_b32 v0, 2, v11")
        em("mn", f"buffer_load_dwordx4 v[{B8}:{B8+3}], v0, s[12:15], s9 offen sc1", track)
    fill[RP + 2].append(("call", mload))
    a_, b_ = B8, B8+1
    stt = [[("wait", "mn")] + scheck([T, T, B8, B8+1, B8+2, B8+3], mload), f"v_add_f32 v{a_}, v{a_}, v{b_}", f"v_add_f32 v{B8+2}, v{B8+2}, v{B8+3}",
           f"v_add_f32 v{a_}, v{a_}, v{B8+2}", f"v_mov_b32 v{b_}, {fx(1e-5)}", f"v_fmac_f32 v{b_}, {fx(1.0/576)}, v{a_}", f"v_rcp_f32 v{vR2}, v{b_}",
           f"v_mul_f32 v{T}, v{T}, v{b_}", f"v_mov_b32 v{vR2+1}, v{vR2}", f"v_mov_b32 v{T+1}, v{T}",
           f"v_permlane32_swap_b32 v{vR2}, v{vR2+1}", f"v_permlane32_swap_b32 v{T}, v{T+1}"]
    spread(stt, C9 + 50, C9 + 64)
    spread([f"v_mul_f32 v{blk(8,tt)+e}, s58, v{T+tt}" for tt in range(2) for e in range(4)], C9 + 66, C9 + 76)
    spread([f"v_mov_b32 v{blk(0,tt)+e}, v{T+tt}" for tt in range(2) for e in range(4)], D0 - 9, D0 - 2)
    def hbl(j0):
        def f(track=False):
            for j in range(j0, j0+3):
                for so, (_, _, tx) in hload(j): k(so); k(tx)
        return f
    if not nox:
        for j0 in (12, 15):
            gu = at("B8") + j0 - KA
            ck = scheck(list(range(XR+8*j0, XR+8*j0+24)), hbl(j0))
            if j0 == 12: fill[gu - 3].append([("call", lambda: xm("k0a")), ("wait", f"h{j0+2}"), ("call", lambda: xm("k0b"))] + ck + [("call", lambda: xm("k0c"))])
            else: fill[gu - 1].append([("call", lambda: xm("k1a")), ("wait", f"h{j0+2}"), ("call", lambda: xm("k1b"))] + ck + [("call", lambda: xm("k1c"))])
    def prload(p):
        def f(track=True):
            k(f"s_xor_b32 s9, s48, {(p << 21) | ((8-p) << 13):#x}" if ptre else f"s_add_u32 s9, s55, {p << PP_:#x}")
            em(f"pr{p}", f"buffer_load_dwordx4 v[{blk(p,1)}:{blk(p,1)+3}], v{vST}, s[12:15], s9 offen sc1", track)
        return f
    def pradd(p):
        r = blk(p, 1); o = [[("wait", f"pr{p}")] + scheck([r+e for e in range(4)], prload(p))]
        for e in range(4):
            if p == 7: o += [f"v_lshlrev_b32 v{SUM+2*e}, 16, v{r+e}", f"v_and_b32 v{SUM+2*e+1}, 0xffff0000, v{r+e}"]
            else: o += [[f"v_lshlrev_b32 v{e%2}, 16, v{r+e}", f"v_and_b32 v{r+e}, 0xffff0000, v{r+e}", f"v_add_f32 v{SUM+2*e}, v{SUM+2*e}, v{e%2}"], f"v_add_f32 v{SUM+2*e+1}, v{SUM+2*e+1}, v{r+e}"]
        return o
    fill[at("B8") - 4] += [
                       "v_and_b32 v0, 15, v2", f"v_mul_u32_u24 v{vOUT}, 1152, v0", "v_lshrrev_b32 v1, 4, v2", f"v_lshl_add_u32 v{vOUT}, v1, 3, v{vOUT}",
                       f"v_and_b32 v{vXL}, 0x3ff, v{vXL}", "v_lshrrev_b32 v1, 5, v2", f"v_lshl_add_u32 v{vXL}, v1, 3, v{vXL}"]
    nm = [f"B{p}" for p in range(8, 0, -1)] + ["G"]
    for n, p in enumerate(range(8, 0, -1)): spread(psend(p), at(nm[n+1]) + 1, at(nm[n+1]) + 4)
    LDL = P.get("ldl", 20); ADL = P.get("adl", 10)
    tail = []
    if not nox:
        for p in range(7, 0, -1):
            gs = at(nm[8-p+1]) + 4
            gl = min(gs + LDL, N - P.get("lastld", 8) + (0 if p > 1 else 0))
            fill[gl].append(("call", prload(p)))
            ga = gl + ADL
            if ga + 6 <= N: spread(pradd(p), ga, ga + 6)
            else: tail += pradd(p)
    def hres(rt):
        def f():
            if rt: k("s_add_u32 s9, s38, 32")
            else: k("s_lshl_b32 s9, s38, 3"); k("s_add_u32 s9, s9, s37")
            k("s_lshl_b32 s3, s9, 5"); k("s_add_u32 s3, s3, s46")
            k("s_lshl_b32 s9, s9, 10"); k("s_add_u32 s9, s9, s46"); k(f"s_add_u32 s9, s9, {Z_HC:#x}")
            for tt in range(2): em("hr", f"buffer_load_dwordx2 v[{HR+2*tt}:{HR+2*tt+1}], v{vXL}, s[12:15], s9 offen offset:{tt*256} sc1", not rt)
        return f
    def fin(src, tt, so):
        o = []
        for e in range(2):
            h = HR + 2*tt + e
            o += [f"v_lshlrev_b32 v0, 16, v{h}", f"v_and_b32 v1, 0xffff0000, v{h}",
                  f"v_fma_f32 v{src+2*e}, v{src+2*e}, v{vR2+tt}, v0", f"v_fma_f32 v{src+2*e+1}, v{src+2*e+1}, v{vR2+tt}, v1",
                  f"v_cvt_pk_bf16_f32 v{h}, v{src+2*e}, v{src+2*e+1}"]
        if tt: o.append(f"s_add_u32 {so}, {so}, {16*1152}")
        o.append(f"buffer_store_dwordx2 v[{HR+2*tt}:{HR+2*tt+1}], v{vOUT}, s[32:35], {so} offen")
        return o
    RB = [blk(8), blk(8, 1), blk(7), blk(6), blk(5), blk(4), XT, XT+4]
    def rloads(track=False):
        for g in range(8):
            k(f"s_xor_b32 s9, s48, {g << 21:#x}" if ptre else f"s_add_u32 s9, s51, {g << PG:#x}"); k(f"buffer_load_dwordx4 v[{RB[g]}:{RB[g]+3}], v{vST}, s[12:15], s9 offen sc1")
    def rblock1():
        l = k.label("nr"); k("s_cmp_lg_u32 s36, s37"); k(f"s_cbranch_scc1 {l}")
        hres(True)(); k("s_mov_b32 s6, s3"); rloads(); k.put(l)
        vq("rmark", f"buffer_load_dword v{T+3}, v{vFL}, s[12:15], s49 offen")
    def rblock2():
        l = k.label("nr"); k("s_cmp_lg_u32 s36, s37"); k(f"s_cbranch_scc1 {l}")
        vq.wait("rmark")
        emit(scheck([r+e for r in RB for e in range(4)], rloads))
        for tt in range(2):
            for g in range(8):
                for e in range(2):
                    r = RB[g] + 2*tt + e
                    if g == 0: k(f"v_lshlrev_b32 v{T+2*e}, 16, v{r}"); k(f"v_and_b32 v{T+2*e+1}, 0xffff0000, v{r}")
                    else:
                        k(f"v_lshlrev_b32 v{e}, 16, v{r}"); k(f"v_and_b32 v{r}, 0xffff0000, v{r}")
                        k(f"v_add_f32 v{T+2*e}, v{T+2*e}, v{e}"); k(f"v_add_f32 v{T+2*e+1}, v{T+2*e+1}, v{r}")
            for x in fin(T, tt, "s6"): k(x)
        k.put(l)
    if not nox:
        fill[at("B3") + 5].append(("call", rblock1))
        fill[at("B1") + 0].append(("call", rblock2))
    fill[at("B1") + 6].append(("call", hres(False)))
    for x in nm: fill[at(x)].append(("call", (lambda x=x: xm("s" + x))))
    st_ = dict(rp=0, half=0, readable=0); waited = set()
    def barrier(c):
        mk = stamp and (marks is None or c in marks)
        if bars[c]: k(f"s_waitcnt vmcnt({min(vq.n(t) for t in bars[c])})")
        if mk: k("s_waitcnt lgkmcnt(0)"); lq.clear()
        if c != "C0": k("s_barrier")
        nxt = [x for x in order[order.index(c)+1:] if x in bars or x == "END"][0]
        st_["readable"] = cs_[nxt]
        if mk: tl.mark(c, True)
    def issue_read(g, maxn):
        n = 0
        while st_["rp"] < N and st_["rp"] <= g + DEPTH and st_["rp"] < st_["readable"] and n < maxn:
            rp = st_["rp"]; m = fr[rp]; fb = FR + 4*(rp % NB)
            if True:
                e = st_["half"]; v, o = m["rd"][e]
                k(f"ds_read_b64_tr_b16 v[{fb+2*e}:{fb+2*e+1}], v{v} offset:{o}"); lq.append(rp)
                st_["half"] ^= 1
                if e: st_["rp"] += 1
            n += 1
    barrier("C0")
    issue_read(-1, 2*DEPTH)
    emit(xcheck(0))
    if prio is not None:
        l = k.label("pr"); k("s_cmp_lt_u32 s36, 4"); k(f"s_cbranch_scc1 {l}"); k(f"s_setprio {prio}"); k.put(l)
    for g in range(N):
        m = fr[g]; w = []
        nd = m.get("need")
        if nd and nox and nd[0] == "h": nd = None
        if nd and nd not in waited: w.append(f"vmcnt({vq.n(nd)})"); waited.add(nd)
        assert st_["rp"] > g, (g, st_)
        if g in lq:
            idx = max(i for i, t in enumerate(lq) if t == g)
            w.append(f"lgkmcnt({min(15, len(lq) - 1 - idx)})"); del lq[:idx+1]
        if w: k("s_waitcnt " + " ".join(w))
        fb = FR + 4*(g % NB); fl = fill[g]; nmm = len(m["mm"])
        for n, (acc, Bop, first) in enumerate(m["mm"]):
            C = "0" if first else f"v[{acc}:{acc+3}]"
            k(f"v_mfma_f32_16x16x32_bf16 v[{acc}:{acc+3}], v[{fb}:{fb+3}], {Bop}, {C}")
            if n == nmm - 1 and g in bar_at:
                c = bar_at[g]
                assert st_["rp"] >= cs_[c], (c, g, st_)
                barrier(c)
            lag = 2*(min(g + DEPTH + 1, st_["readable"]) - st_["rp"]) - st_["half"]
            issue_read(g, 1 if (n == 0 and lag <= 2) else (lag+1)//2 if n == 0 else lag)
            for it in fl[(n*len(fl))//nmm:((n+1)*len(fl))//nmm]: emit(it)
    if stamp: tl.mark("mf")
    emit(tail)
    vq.wait("hr")
    for tt in range(2):
        a = blk(0, tt)
        if not nox:
            for e in range(4): k(f"v_add_f32 v{a+e}, v{a+e}, v{SUM+4*tt+e}")
        for x in fin(a, tt, "s3"): k(x)
    if stamp:
        k("s_bitcmp1_b32 s36, 0"); k(f"s_cbranch_scc1 {end}"); k("s_lshr_b32 s36, s36, 1")
        tl.finish(36, 10, 14, 16)
    k.put(end)
    k("s_endpgm")
    for (ls, lb, stage) in ool:
        k.put(ls)
        k(f"s_mov_b32 s7, {RETRY}")
        lp = k.label("lp"); k.put(lp)
        k("s_sleep 1")
        k(f"buffer_load_dword v{vPL}, v{vFL}, s[12:15], {'s68' if spoll else 's49'} offen sc1")
        k("s_sub_u32 s7, s7, 1"); k(f"s_cbranch_scc1 {lb}")
        k("s_waitcnt vmcnt(0)")
        ptest(stage, lp)
        k(f"s_branch {lb}")
    for (ls, lb, regs, loader) in ool2:
        k.put(ls)
        k(f"s_mov_b32 s7, {RETRY}")
        lp = k.label("lp"); k.put(lp)
        loader(False)
        k("s_waitcnt vmcnt(0)")
        k("s_sub_u32 s7, s7, 1"); k(f"s_cbranch_scc1 {lb}")
        for x in maxchain(regs): k(x)
        k(f"v_cmp_eq_u32 vcc, -1, v{vPL}")
        k(f"s_cbranch_vccnz {lp}")
        k(f"s_branch {lb}")
    for (ln, lb, t) in aool:
        k.put(ln)
        for r in range(16): k(f"v_mov_b32 v{S_(t)+r}, {fx(-1e30)}")
        k(f"s_branch {lb}")
    return k, (name, 256, 512, 160*1024)
```

```python
from common import *
import math
def gen_k1(name="qkv_kernel", stamp=False, DEPTH=6, zflags=True, pf=0, helper=None, mx=False):
    k = Kern(name); end = f"{name}_end"
    sp = Stamper(k, stamp, trace=0)
    NWG = 224
    k(f"s_cmp_ge_u32 s2, {NWG}"); k(f"s_cbranch_scc1 {name}_pf" if pf else f"s_cbranch_scc1 {end}")
    k("s_load_dwordx4 s[4:7], s[0:1], 0")
    k("s_load_dwordx2 s[10:11], s[0:1], 72")
    sp.start()
    k("v_lshrrev_b32 v1, 6, v0"); k("v_and_b32 v2, 63, v0")
    k("v_readfirstlane_b32 s36, v1")
    k("s_and_b32 s37, s2, 7"); k("s_lshl_b32 s37, s37, 2"); k("s_bfe_u32 s42, s2, 0x20003"); k("s_or_b32 s37, s37, s42")
    k("s_lshr_b32 s38, s2, 5")
    k("s_and_b32 s39, s36, 1")
    k("s_lshr_b32 s40, s36, 1")
    k("s_lshl_b32 s41, s38, 9"); k("s_lshl_b32 s42, s36, 7"); k("s_add_u32 s41, s41, s42")
    k("s_lshl_b32 s43, s36, 13")
    k("s_lshl_b32 s44, s37, 6"); k("s_lshl_b32 s42, s36, 4"); k("s_add_u32 s44, s44, s42"); k("s_mul_i32 s44, s44, 1152")
    k("s_mul_i32 s45, s36, 18432")
    vDW, vDX0, vDX1, vA, vXR, vSTQ, vSTV = 3, 4, 5, 6, 8, 12, 13
    vRd = [14, 15]
    vT = 16
    k("v_and_b32 v16, 3, v2"); k("v_lshlrev_b32 v16, 4, v16")
    k("v_bfe_u32 v17, v2, 2, 3")
    k("v_lshrrev_b32 v18, 5, v2")
    k("v_lshl_add_u32 v16, v18, 6, v16")
    k(f"v_mul_u32_u24 v{vDW}, 3456, v17"); k(f"v_add_u32 v{vDW}, v{vDW}, v16")
    k("v_lshrrev_b32 v16, 3, v2"); k("v_and_b32 v17, 7, v2"); k("v_lshrrev_b32 v19, 1, v16"); k("v_xor_b32 v17, v17, v19")
    k("v_mul_u32_u24 v16, 1152, v16")
    k(f"v_lshl_add_u32 v{vDX0}, v17, 4, v16")
    k("v_xor_b32 v17, 4, v17")
    k(f"v_lshl_add_u32 v{vDX1}, v17, 4, v16")
    k("v_bfe_u32 v16, v2, 2, 2"); k("v_lshlrev_b32 v16, 6, v16")
    k("v_bfe_u32 v17, v2, 4, 1"); k("v_lshl_add_u32 v16, v17, 5, v16")
    k("v_and_b32 v17, 3, v2"); k("v_lshl_add_u32 v16, v17, 3, v16")
    k("v_lshl_add_u32 v16, v18, 10, v16")
    k("s_lshl_b32 s42, s40, 14")
    k(f"v_add_u32 v{vA}, s42, v16")
    k("v_and_b32 v16, 31, v2"); k("v_lshrrev_b32 v17, 3, v16"); k("v_mul_u32_u24 v17, 9216, v17")
    k("v_and_b32 v19, 7, v16"); k("v_lshl_add_u32 v17, v19, 7, v17")
    k("s_mul_i32 s42, s39, 36864"); k("v_add_u32 v17, s42, v17")
    k("v_bfe_u32 v19, v16, 1, 3"); k("v_xor_b32 v19, v19, v18")
    for q in range(4):
        k(f"v_xor_b32 v20, {2*q}, v19"); k(f"v_lshl_add_u32 v{vXR+q}, v20, 4, v17")
    k(f"v_lshlrev_b32 v{vSTQ}, 3, v16"); k(f"v_lshl_add_u32 v{vSTQ}, v18, 8, v{vSTQ}")
    k(f"v_mul_u32_u24 v{vSTV}, 9216, v18"); k(f"v_lshl_add_u32 v{vSTV}, v16, 4, v{vSTV}")
    k("s_waitcnt lgkmcnt(0)")
    srd(k, 16, 4, S*D*2); srd(k, 20, 6, D*3*D*2)
    srd(k, 24, 10, QK_BYTES, off=WS_QK); srd(k, 28, 10, V_BYTES, off=WS_V)
    vq = VQ(k)
    if zflags:
        lz = k.label("nz")
        k(f"s_cmp_ge_u32 s2, {64 if zflags == 2 else 8}"); k(f"s_cbranch_scc1 {lz}")
        if zflags == 2: srd(k, 32, 10, 65536, off=0x2800000)
        else: srd(k, 32, 10, 8192, off=WS_FLAG)
        k("s_lshl_b32 s46, s2, 10"); k("v_lshlrev_b32 v20, 2, v0"); k("v_mov_b32 v21, 0")
        k("buffer_store_dword v21, v20, s[32:35], s46 offen sc1")
        k("s_waitcnt vmcnt(0)")
        k.put(lz)
    SLOT = [73728, 73728+32768, 0, 32768]
    SPARE = 73728 + 65536
    def dma_w(c):
        out = []
        for rg in range(8):
            out.append([f"s_add_u32 m0, s43, {SLOT[c%4] + rg*1024}", f"s_add_u32 s46, s41, {(64*c + 8*rg)*3456}",
                        ("vm", f"w{c}", f"buffer_load_dwordx4 v{vDW}, s[20:23], s46 offen lds")])
        return out
    for par in range(2):
        for sg in range(9):
            k(f"s_add_u32 m0, s45, {(par*9 + sg)*1024}"); k(f"s_add_u32 s46, s44, {par*8*1152 + sg*128}")
            vq("x", f"buffer_load_dwordx4 v{vDX0 if par == 0 else vDX1}, s[16:19], s46 offen lds")
    for c in range(2): vq.emit(dma_w(c))
    XR = 64; ACC = 208
    accs = [32, 48, 208, 224]
    k("s_mov_b32 s54, 0x3f803f80"); k("s_mov_b32 s55, 0x00003f80"); k("s_mov_b32 s56, 0x3f800000")
    for i in range(8): k(f"v_mov_b32 v{vT+i}, 0")
    vq.wait("x"); k("s_barrier")
    sp.st()
    for s in range(36):
        k(f"ds_read_b128 v[{XR+4*s}:{XR+4*s+3}], v{vXR + (s&3)} offset:{(s>>2)*1024}")
        if s >= 8:
            k("s_waitcnt lgkmcnt(8)")
            for i in range(4): k(f"v_dot2c_f32_bf16 v{vT+i}, s54, v{XR+4*(s-8)+i}")
    for s in range(28, 36):
        k(f"s_waitcnt lgkmcnt({35-s})")
        for i in range(4): k(f"v_dot2c_f32_bf16 v{vT+i}, s54, v{XR+4*s+i}")
    vq.wait("w0")
    k("s_barrier")
    for c in (2, 3): vq.emit(dma_w(c))
    k(f"v_add_f32 v{vT}, v{vT}, v{vT+1}"); k(f"v_add_f32 v{vT+2}, v{vT+2}, v{vT+3}"); k(f"v_add_f32 v{vT}, v{vT}, v{vT+2}")
    k(f"v_mov_b32 v{vT+1}, v{vT}")
    k(f"v_permlane32_swap_b32 v{vT}, v{vT+1}")
    k(f"v_add_f32 v{vT}, v{vT}, v{vT+1}")
    k(f"v_mul_f32 v{vT}, {fx(-1.0/576)}, v{vT}")
    sp.st()
    def center(s):
        out = []
        for i in range(4):
            r = XR + 4*s + i; a = vT + 8 + 2*i
            out += [f"v_dot2_f32_bf16 v{a}, v{r}, s55, v{vT}", f"v_dot2_f32_bf16 v{a+1}, v{r}, s56, v{vT}"]
        for i in range(4):
            r = XR + 4*s + i; a = vT + 8 + 2*i
            out += [f"v_cvt_pk_bf16_f32 v{r}, v{a}, v{a+1}"]
        for i in range(4):
            r = XR + 4*s + i
            out += [f"v_dot2c_f32_bf16 v{vT+4+i}, v{r}, v{r}"]
        return out
    k("s_lshl_b32 s47, s38, 1"); k("s_add_u32 s47, s47, s40")
    lv = k.label("v")
    k("s_cmp_ge_u32 s47, 9"); k(f"s_cbranch_scc1 {lv}")
    vq0 = list(vq.q)
    for isv in (0, 1):
        if isv: k.put(lv)
        vq.q = list(vq0)
        NB = 8
        mf = []
        for s in range(36):
            c = s // 4; sl = s % 4
            for i in range(4):
                o = (i >> 1)*8192 + sl*2048 + (i & 1)*512
                mf.append(dict(c=c, o=[o, o+256], s=s, acc=accs[i]))
        N = len(mf)
        fill = [[] for _ in range(N+1)]
        def spread(items, g0, g1):
            n = len(items); w = g1 - g0
            for i, it in enumerate(items): fill[g0 + (i*w)//n].append(it)
        for it in center(0): k(it)
        for s in range(35): spread(center(s+1), 4*s, 4*s+4)
        BA = 4
        bar_at = {16*c - BA - 1: c for c in range(1, 9)}
        for c in range(1, 6):
            spread(dma_w(c+3), 16*c - BA, 16*c - BA + 12)
        lq = []; st_ = dict(rp=0, readable=1)
        k(f"v_add_u32 v{vRd[0]}, {SLOT[0]}, v{vA}")
        def issue_reads(g, maxn):
            n = 0
            while st_["rp"] < N and st_["rp"] <= g + DEPTH and mf[st_["rp"]]["c"] < st_["readable"] and n < maxn:
                rp = st_["rp"]; m = mf[rp]; fb = 4*(rp % NB)
                for e in range(2):
                    k(f"ds_read_b64_tr_b16 a[{fb+2*e}:{fb+2*e+1}], v{vRd[m['c']%2]} offset:{m['o'][e]}"); lq.append(rp)
                st_["rp"] += 1; n += 1
        issue_reads(-1, DEPTH)
        for g in range(N):
            m = mf[g]
            if g in lq:
                idx = max(i for i, t in enumerate(lq) if t == g)
                k(f"s_waitcnt lgkmcnt({len(lq)-1-idx})"); del lq[:idx+1]
            fb = 4*(g % NB); acc = m["acc"]; xs = XR + 4*m["s"]
            C = "0" if m["s"] == 0 else f"v[{acc}:{acc+15}]"
            A_, B_ = f"a[{fb}:{fb+3}]", f"v[{xs}:{xs+3}]"
            if isv: A_, B_ = B_, A_
            k(f"v_mfma_f32_32x32x16_bf16 v[{acc}:{acc+15}], {A_}, {B_}, {C}")
            if g in bar_at:
                c = bar_at[g]
                vq.wait(f"w{c}", " lgkmcnt(0)"); lq.clear()
                k("s_barrier")
                k(f"v_add_u32 v{vRd[c%2]}, {SLOT[c%4]}, v{vA}")
                st_["readable"] = c + 1
            issue_reads(g, 2)
            for it in fill[g]: vq.emit(it)
        sp.st()
        V = vT + 4
        k(f"v_add_f32 v{V}, v{V}, v{V+1}"); k(f"v_add_f32 v{V+2}, v{V+2}, v{V+3}"); k(f"v_add_f32 v{V}, v{V}, v{V+2}")
        k(f"v_mov_b32 v{V+1}, v{V}")
        k(f"v_permlane32_swap_b32 v{V}, v{V+1}")
        k(f"v_add_f32 v{V}, v{V}, v{V+1}")
        k(f"v_mov_b32 v{V+1}, {fx(1e-5)}")
        k(f"v_fmac_f32 v{V+1}, {fx(1.0/576)}, v{V}")
        k(f"v_rsq_f32 v{V}, v{V+1}")
        k("s_lshl_b32 s48, s37, 1"); k("s_add_u32 s48, s48, s39")
        if not isv and mx:
            lm = k.label("nm")
            k("s_cmp_lg_u32 s47, 0"); k(f"s_cbranch_scc1 {lm}")
            srd(k, 32, 10, 8192, off=Z_MX)
            k("s_lshl_b32 s49, s48, 7"); k("v_and_b32 v26, 31, v2"); k("v_lshlrev_b32 v26, 2, v26"); k(f"v_mul_f32 v27, -1.0, v{vT}")
            k("buffer_store_dword v27, v26, s[32:35], s49 offen")
            k.put(lm)
        if not isv:
            k("s_mul_i32 s49, s48, 73728"); k("s_lshl_b32 s50, s47, 13"); k("s_add_u32 s49, s49, s50")
            qs = (18 ** -0.5) * math.log2(math.e)
            k(f"v_mul_f32 v{V+1}, {fx(qs)}, v{V}")
            for i in range(4):
                k("s_lshl_b32 s50, s47, 2"); k(f"s_add_u32 s50, s50, {i}"); k("s_cmp_lt_u32 s50, 18")
                k("s_cselect_b64 vcc, -1, 0")
                k(f"v_cndmask_b32 v{V+2}, v{V}, v{V+1}, vcc")
                a = accs[i]
                for r in range(16): k(f"v_mul_f32 v{a+r}, v{V+2}, v{a+r}")
                for j in range(8): k(f"v_cvt_pk_bf16_f32 v{XR+8*i+j}, v{a+2*j}, v{a+2*j+1}")
                for q in range(4):
                    k(f"buffer_store_dwordx2 v[{XR+8*i+2*q}:{XR+8*i+2*q+1}], v{vSTQ}, s[24:27], s49 offen offset:{2*q*256}")
                if i < 3: k("s_add_u32 s49, s49, 2048")
        else:
            k("v_and_b32 v26, 31, v2"); k("v_lshlrev_b32 v26, 2, v26"); k("s_lshl_b32 s50, s36, 7"); k(f"s_add_u32 s50, s50, {SPARE}")
            k("v_add_u32 v26, s50, v26")
            k(f"ds_write_b32 v26, v{V}")
            k("v_lshrrev_b32 v27, 5, v2"); k("v_lshlrev_b32 v27, 4, v27"); k("v_add_u32 v27, s50, v27")
            k("s_waitcnt lgkmcnt(0)")
            RS = XR + 64
            for q in range(4): k(f"ds_read_b128 v[{RS+4*q}:{RS+4*q+3}], v27 offset:{32*q}")
            k("s_mul_i32 s49, s48, 36864"); k("s_sub_u32 s50, s47, 9"); k("s_lshl_b32 s50, s50, 11"); k("s_add_u32 s49, s49, s50")
            k("s_add_u32 s51, s49, 18432")
            k("s_waitcnt lgkmcnt(0)")
            for i in range(4):
                if i == 2:
                    k("s_cmp_eq_u32 s47, 13"); k(f"s_cbranch_scc1 {name}_vdone")
                a = accs[i]
                for r in range(16): k(f"v_mul_f32 v{a+r}, v{RS+r}, v{a+r}")
                for j in range(8): k(f"v_cvt_pk_bf16_f32 v{XR+8*i+j}, v{a+2*j}, v{a+2*j+1}")
                k(f"buffer_store_dwordx4 v[{XR+8*i}:{XR+8*i+3}], v{vSTV}, s[28:31], s49 offen offset:{i*512}")
                k(f"buffer_store_dwordx4 v[{XR+8*i+4}:{XR+8*i+7}], v{vSTV}, s[28:31], s51 offen offset:{i*512}")
            k.put(f"{name}_vdone")
        n_save = sp.n
        sp.finish(end, 36, 2, 30, 31)
        if isv == 0:
            k("s_endpgm")
            sp.n = n_save - 1
    k.put(end); k("s_endpgm")
    if pf:
        k.put(f"{name}_pf")
        k(f"s_cmp_ge_u32 s2, 256"); k(f"s_cbranch_scc1 {end}")
        if helper: helper(k, name, end)
        else: touch_code(k, NWG, 32, pf)
    return k, (name, 256 if pf else NWG, 256, 73728 + 65536 + 1024)
```

```python
from common import *
from k1v2 import worow
import k1 as K1

def helper_z(k, name, end, fmod="", touch=(32, 40), tlate=True, xfill=0):
    k("s_load_dwordx2 s[4:5], s[0:1], 16")
    k("s_load_dwordx4 s[40:43], s[0:1], 32")
    k("s_load_dwordx2 s[44:45], s[0:1], 48")
    k("s_load_dwordx2 s[10:11], s[0:1], 72")
    k("v_lshrrev_b32 v1, 6, v0"); k("v_and_b32 v2, 63, v0")
    k("v_readfirstlane_b32 s36, v1")
    k("s_sub_u32 s37, s2, 224"); k("s_lshl_b32 s37, s37, 2"); k("s_add_u32 s37, s37, s36")
    k("v_lshlrev_b32 v3, 4, v2")
    k("s_waitcnt lgkmcnt(0)")
    srd(k, 16, 4, D*D*2); srd(k, 12, 10, 724*1024, off=Z_WO); srd(k, 20, 10, 32*55296, off=WS_WL)
    vq = VQ(k)
    FR = 16
    k("v_lshrrev_b32 v11, 5, v2"); k("v_lshlrev_b32 v11, 3, v11")
    for j in range(6):
        k(f"s_add_u32 s38, s37, {128*j}")
        k("s_mul_i32 s39, s38, 1821"); k("s_lshr_b32 s39, s39, 16")
        k("s_mul_i32 s46, s39, 36"); k("s_sub_u32 s46, s38, s46")
        k("s_mul_i32 s50, s46, 57"); k("s_lshr_b32 s50, s50, 5"); k("s_and_b32 s50, s50, 16")
        k("s_lshl_b32 s39, s39, 6")
        if j >= 4:
            k("s_sub_u32 s47, s38, 576"); k("s_mul_i32 s48, s47, 1772"); k("s_lshr_b32 s48, s48, 16")
            k("s_mul_i32 s49, s48, 37"); k("s_sub_u32 s49, s47, s49")
            k("s_lshl_b32 s48, s48, 5"); k("s_add_u32 s48, s48, 1024")
            k("s_cmp_eq_u32 s49, 36"); k("s_cselect_b32 s48, 0x10000000, s48"); k("s_cselect_b32 s49, 0, s49"); k(f"s_cselect_b32 s{54+j}, -1, 0xffff")
            k("s_cmp_lt_u32 s38, 576")
            k("s_cselect_b32 s46, s46, s49"); k("s_cselect_b32 s39, s39, s48"); k("s_cselect_b32 s48, 31, 15"); k("s_cselect_b32 s50, s50, 0"); k(f"s_cselect_b32 s{54+j}, -1, s{54+j}")
            k("s_cmp_lt_u32 s38, 724"); k("s_cselect_b32 s46, s46, 0"); k("s_cselect_b32 s39, s39, 0")
        else: k("s_mov_b32 s48, 31")
        k("s_lshl_b32 s46, s46, 4"); k("v_add_u32 v4, s46, v11")
        worow(k, 5, 4, 6, 7)
        k("v_and_b32 v6, s48, v2"); k("v_xor_b32 v6, s50, v6"); k("v_lshlrev_b32 v6, 1, v6"); k("v_mul_u32_u24 v5, 1152, v5"); k("v_add_u32 v5, v5, v6")
        for q, (a, b) in enumerate(((2, 18), (8, 36), (10, 54))):
            k(f"v_mov_b32 v6, {a*1152}"); k(f"v_mov_b32 v7, {b*1152}"); k("v_cndmask_b32 v6, v6, v7, vcc"); k(f"v_add_u32 v{8+q}, v5, v6")
        for q in range(4):
            va = 5 if q == 0 else 7 + q
            vq(f"wo{j}", f"buffer_load_ushort v{FR+8*j+2*q}, v{va}, s[16:19], s39 offen")
            vq(f"wo{j}", f"buffer_load_ushort v{FR+8*j+2*q+1}, v{va}, s[16:19], s39 offen offset:1152")
    RL = 64
    k("s_sub_u32 s38, s37, 32"); k("s_lshr_b32 s38, s38, 2"); k("s_and_b32 s39, s38, 7"); k("s_lshr_b32 s38, s38, 3")
    k(f"s_mul_i32 s46, s36, {144*9216}"); k("s_mul_i32 s47, s39, 1152"); k("s_add_u32 s46, s46, s47")
    k(f"s_mul_i32 s47, s39, {576*1152}"); k(f"s_mul_i32 s48, s36, {144*1152}"); k("s_add_u32 s47, s47, s48")
    k(f"s_mul_i32 s51, s39, {4*55296}"); k("s_mul_i32 s48, s38, 18432"); k("s_add_u32 s51, s51, s48"); k("s_mul_i32 s48, s36, 4608"); k("s_add_u32 s51, s51, s48")
    k("s_cmp_eq_u32 s38, 1"); k("s_cselect_b32 s24, s42, s40"); k("s_cselect_b32 s25, s43, s41")
    k("s_cmp_eq_u32 s38, 2")
    k("s_cselect_b32 s24, s44, s24"); k("s_cselect_b32 s25, s45, s25"); k("s_cselect_b32 s46, s47, s46")
    k("s_mov_b32 s52, 9216"); k("s_cselect_b32 s52, 1152, s52")
    k("s_cmp_ge_u32 s37, 32")
    k(f"s_cselect_b32 s26, {D*F*2:#x}, 0"); k("s_mov_b32 s27, 0x00020000"); k(f"s_cselect_b32 s22, s22, 0")
    k("s_cselect_b32 s46, s46, 0"); k("s_cselect_b32 s51, s51, 0")
    k("v_lshrrev_b32 v4, 3, v2"); k("v_mul_lo_u32 v12, s52, v4"); k("v_and_b32 v5, 7, v2"); k("v_lshl_add_u32 v12, v5, 4, v12")
    k("v_bfe_u32 v5, v2, 1, 2"); k("v_mul_u32_u24 v13, 55296, v5"); k("v_lshl_add_u32 v13, v4, 5, v13"); k("v_and_b32 v5, 1, v2"); k("v_lshl_add_u32 v13, v5, 4, v13")
    k("s_lshl_b32 s52, s52, 3")
    def wofin(j):
        vq.wait(f"wo{j}")
        for q in range(4): k(f"v_lshl_or_b32 v{FR+8*j+q}, v{FR+8*j+2*q+1}, 16, v{FR+8*j+2*q}")
        k(f"s_add_u32 s38, s37, {128*j}"); k("s_lshl_b32 s38, s38, 10")
        if j >= 4: k(f"s_mov_b32 exec_lo, s{54+j}"); k(f"s_mov_b32 exec_hi, s{54+j}")
        vq("wos", f"buffer_store_dwordx4 v[{FR+8*j}:{FR+8*j+3}], v3, s[12:15], s38 offen {fmod}")
        if j >= 4: k("s_mov_b64 exec, -1")
    for n in range(12):
        vq(f"rl{n}", f"buffer_load_dwordx4 v[{RL+4*n}:{RL+4*n+3}], v12, s[24:27], s46 offen offset:1024"); k("s_add_u32 s46, s46, s52")
    srd(k, 28, 10, Z_FILL_BYTES, off=Z_O)
    NEG = 140
    for i in range(4): k(f"v_mov_b32 v{NEG+i}, -1")
    for i in range(4): k(f"v_mov_b32 v{NEG+4+i}, 0")
    def touches():
        k("v_lshlrev_b32 v14, 7, v2")
        for ka in touch:
            srd(k, 32, 40 + (ka-32)//4, D*F*2)
            k("s_lshl_b32 s38, s37, 13")
            for j in range(6):
                vq("tch", "buffer_load_dword v15, v14, s[32:35], s38 offen")
                if j < 5: k(f"s_add_u32 s38, s38, {128*8192}")
    wofin(0); wofin(1)
    for n in range(12, 18):
        vq(f"rl{n}", f"buffer_load_dwordx4 v[{RL+4*n}:{RL+4*n+3}], v12, s[24:27], s46 offen offset:1024"); k("s_add_u32 s46, s46, s52")
    for j in range(2, 6): wofin(j)
    touches()
    for n in range(18):
        vq.wait(f"rl{n}")
        if n == 16: k("s_add_u32 s51, s51, 4096")
        vq("rls", f"buffer_store_dwordx4 v[{RL+4*n}:{RL+4*n+3}], v13, s[20:23], s51 offen offset:{256*(n%16)} {fmod}")
    BWR = 64
    lnb = k.label("nb")
    k("s_cmp_ge_u32 s37, 36"); k(f"s_cbranch_scc1 {lnb}")
    k("s_lshl_b32 s38, s37, 4"); k("v_lshrrev_b32 v4, 2, v2"); k("v_add_u32 v4, s38, v4")
    worow(k, 5, 4, 6, 7)
    k("v_mul_u32_u24 v5, 1152, v5"); k("v_and_b32 v6, 3, v2"); k("v_lshl_add_u32 v5, v6, 4, v5")
    k("s_waitcnt vmcnt(0)")
    for j in range(18): k(f"buffer_load_dwordx4 v[{BWR+4*j}:{BWR+4*j+3}], v5, s[16:19], 0 offen offset:{64*j}")
    k("s_mov_b32 s38, 0x3f803f80")
    for i in range(4): k(f"v_mov_b32 v{8+i}, 0")
    for j in range(18):
        k(f"s_waitcnt vmcnt({17-j})")
        for i in range(4): k(f"v_dot2c_f32_bf16 v{8+i}, s38, v{BWR+4*j+i}")
    k("v_add_f32 v8, v8, v9"); k("v_add_f32 v10, v10, v11"); k("v_add_f32 v8, v8, v10")
    k("v_add_f32_dpp v8, v8, v8 quad_perm:[1,0,3,2] row_mask:0xf bank_mask:0xf")
    k("v_add_f32_dpp v8, v8, v8 quad_perm:[2,3,0,1] row_mask:0xf bank_mask:0xf")
    k(f"v_mul_f32 v8, {fx(1.0/576)}, v8"); k("v_cvt_pk_bf16_f32 v8, v8, v8")
    k("v_and_b32 v6, 3, v2"); k("v_mul_u32_u24 v6, 37888, v6"); k("v_lshrrev_b32 v7, 5, v2"); k("v_lshl_add_u32 v6, v7, 9, v6")
    k("v_bfe_u32 v7, v2, 2, 3"); k("v_lshl_add_u32 v6, v7, 1, v6")
    k("s_lshl_b32 s38, s37, 10"); k(f"s_add_u32 s38, s38, {576*1024}")
    k("buffer_store_short v8, v6, s[12:15], s38 offen offset:256")
    k.put(lnb)
    k("s_lshl_b32 s38, s37, 12")
    for j in range(10):
        for i in range(4 if j < 9 else 1):
            if j == 9: k("s_lshl_b32 s38, s37, 10"); k(f"s_add_u32 s38, s38, {Z_MN - Z_O}")
            k(f"buffer_store_dwordx4 v[{NEG}:{NEG+3}], v3, s[28:31], s38 offen offset:{i*1024} {fmod}")
        if j < 8: k(f"s_add_u32 s38, s38, {128*4096}")
    srd(k, 28, 10, 98304, off=Z_FLAG)
    k("s_lshl_b32 s38, s37, 10")
    k(f"buffer_store_dwordx4 v[{NEG+4}:{NEG+7}], v3, s[28:31], s38 offen {fmod}")
    k("s_endpgm")

def gen_k1f(stamp=False, mt=None, mtm="", dly=0, mf_=None, **kw):
    return K1.gen_k1(mf_=mf_, dly=dly, mt=mt, mtm=mtm, stamp=stamp, zflags=False, pf=1, helper=lambda k, name, end: helper_z(k, name, end, **kw), mx=True)
```

```python
from common import *
import math
def worow(k, d, p, t0, t1):
    k(f"v_lshrrev_b32 v{t0}, 4, v{p}"); k(f"v_mul_u32_u24 v{d}, 18, v{t0}")
    k(f"v_bfe_u32 v{t0}, v{p}, 2, 1"); k(f"v_lshl_add_u32 v{d}, v{t0}, 3, v{d}")
    k(f"v_bfe_u32 v{t0}, v{p}, 3, 1"); k(f"v_lshl_add_u32 v{d}, v{t0}, 2, v{d}")
    k(f"v_and_b32 v{t0}, 3, v{p}"); k(f"v_add_u32 v{d}, v{d}, v{t0}")
    k(f"v_subrev_u32 v{t0}, 512, v{p}"); k(f"v_lshrrev_b32 v{t0}, 1, v{t0}"); k(f"v_mul_u32_u24 v{t0}, 18, v{t0}")
    k(f"v_and_b32 v{t1}, 1, v{p}"); k(f"v_add3_u32 v{t0}, v{t0}, v{t1}, 16")
    k(f"v_cmp_lt_u32 vcc, 511, v{p}"); k(f"v_cndmask_b32 v{d}, v{d}, v{t0}, vcc")

def helper_code(k, name, end, sp):
    k("s_load_dwordx2 s[4:5], s[0:1], 16")
    k("s_load_dwordx4 s[40:43], s[0:1], 32")
    k("s_load_dwordx2 s[44:45], s[0:1], 48")
    k("s_load_dwordx2 s[10:11], s[0:1], 72")
    sp.start()
    k("v_lshrrev_b32 v1, 6, v0"); k("v_and_b32 v2, 63, v0")
    k("v_readfirstlane_b32 s36, v1")
    k("s_sub_u32 s37, s2, 224"); k("s_lshl_b32 s37, s37, 2"); k("s_add_u32 s37, s37, s36")
    k("v_lshlrev_b32 v3, 4, v2")
    k("s_waitcnt lgkmcnt(0)")
    srd(k, 16, 4, D*D*2); srd(k, 12, 10, WO_BYTES, off=N_WO); srd(k, 20, 10, WS_WD2 - WS_WL + 18*294912, off=WS_WL)
    vq = VQ(k)
    FR = 16
    for j in range(6):
        k(f"s_add_u32 s38, s37, {128*j}")
        k("s_mul_i32 s39, s38, 1821"); k("s_lshr_b32 s39, s39, 16")
        k("s_mul_i32 s46, s39, 36"); k("s_sub_u32 s46, s38, s46")
        k("s_sub_u32 s47, s38, 576"); k("s_mul_i32 s48, s47, 3641"); k("s_lshr_b32 s48, s48, 16")
        k("s_mul_i32 s49, s48, 18"); k("s_sub_u32 s49, s47, s49")
        k("s_lshl_b32 s46, s46, 4"); k("s_lshl_b32 s39, s39, 6")
        k("s_lshl_b32 s49, s49, 5"); k("s_lshl_b32 s48, s48, 5"); k("s_add_u32 s48, s48, 1024")
        k("s_cmp_lt_u32 s38, 576")
        k("s_cselect_b32 s46, s46, s49"); k("s_cselect_b32 s39, s39, s48"); k("s_cselect_b32 s47, 5, 4"); k("s_cselect_b32 s48, 31, 15")
        k("s_cmp_lt_u32 s38, 648"); k("s_cselect_b32 s46, s46, 0"); k("s_cselect_b32 s39, s39, 0")
        k("v_lshrrev_b32 v4, s47, v2"); k("v_lshlrev_b32 v4, 3, v4"); k("v_add_u32 v4, s46, v4")
        worow(k, 5, 4, 6, 7)
        k("v_and_b32 v6, s48, v2"); k("v_lshlrev_b32 v6, 1, v6"); k("v_mul_u32_u24 v5, 1152, v5"); k("v_add_u32 v5, v5, v6")
        for q, (a, b) in enumerate(((2, 18), (8, 36), (10, 54))):
            k(f"v_mov_b32 v6, {a*1152}"); k(f"v_mov_b32 v7, {b*1152}"); k("v_cndmask_b32 v6, v6, v7, vcc"); k(f"v_add_u32 v{8+q}, v5, v6")
        for q in range(4):
            va = 5 if q == 0 else 7 + q
            vq(f"wo{j}", f"buffer_load_short_d16 v{FR+4*j+q}, v{va}, s[16:19], s39 offen")
            vq(f"wo{j}", f"buffer_load_short_d16_hi v{FR+4*j+q}, v{va}, s[16:19], s39 offen offset:1152")
    BWR = 48
    lnb = k.label("nb")
    k("s_cmp_ge_u32 s37, 36"); k(f"s_cbranch_scc1 {lnb}")
    k("s_lshl_b32 s38, s37, 4"); k("v_lshrrev_b32 v4, 2, v2"); k("v_add_u32 v4, s38, v4")
    worow(k, 5, 4, 6, 7)
    k("v_mul_u32_u24 v5, 1152, v5"); k("v_and_b32 v6, 3, v2"); k("v_lshl_add_u32 v5, v6, 4, v5")
    for j in range(18): k(f"buffer_load_dwordx4 v[{BWR+4*j}:{BWR+4*j+3}], v5, s[16:19], 0 offen offset:{64*j}")
    k("s_mov_b32 s38, 0x3f803f80")
    for i in range(4): k(f"v_mov_b32 v{8+i}, 0")
    for j in range(18):
        k(f"s_waitcnt vmcnt({17-j})")
        for i in range(4): k(f"v_dot2c_f32_bf16 v{8+i}, s38, v{BWR+4*j+i}")
    k("v_add_f32 v8, v8, v9"); k("v_add_f32 v10, v10, v11"); k("v_add_f32 v8, v8, v10")
    k("v_add_f32_dpp v8, v8, v8 quad_perm:[1,0,3,2] row_mask:0xf bank_mask:0xf")
    k("v_add_f32_dpp v8, v8, v8 quad_perm:[2,3,0,1] row_mask:0xf bank_mask:0xf")
    k(f"v_mul_f32 v8, {fx(1.0/576)}, v8"); k("v_cvt_pk_bf16_f32 v8, v8, v8")
    srd(k, 24, 10, 1152, off=N_BW)
    k("v_lshlrev_b32 v4, 1, v4")
    k("buffer_store_short v8, v4, s[24:27], 0 offen")
    k.put(lnb)
    RL = 48
    ll = k.label("lone")
    k("v_lshrrev_b32 v4, 3, v2"); k("v_and_b32 v5, 7, v2"); k("v_bfe_u32 v6, v2, 2, 1"); k("v_and_b32 v7, 3, v2")
    k("v_lshlrev_b32 v9, 6, v4"); k("v_lshl_add_u32 v9, v7, 4, v9")
    def wostore(extra):
        for j in range(6):
            k(f"s_waitcnt vmcnt({min(63, vq.n(f'wo{j}') + extra + j)})")
            k(f"s_add_u32 s38, s37, {128*j}"); k("s_lshl_b32 s38, s38, 10")
            k(f"buffer_store_dwordx4 v[{FR+4*j}:{FR+4*j+3}], v3, s[12:15], s38 offen")
    k("s_cmp_ge_u32 s37, 96"); k(f"s_cbranch_scc1 {ll}")
    srd(k, 24, 44, D*F*2)
    k("v_mul_u32_u24 v8, 1152, v4"); k("v_lshl_add_u32 v8, v5, 4, v8")
    k("v_mul_u32_u24 v6, 294912, v6"); k("v_add_u32 v9, v9, v6")
    k("s_cmp_ge_u32 s37, 48"); k("s_cselect_b32 s46, 128, 0"); k(f"s_cselect_b32 s47, {2*294912}, 0")
    k(f"s_mul_i32 s38, s37, {48*1152}"); k("s_add_u32 s46, s46, s38")
    k(f"s_mul_i32 s39, s37, {48*64}"); k(f"s_add_u32 s48, s39, {WS_WD2-WS_WL:#x}"); k("s_add_u32 s47, s47, s48")
    for rb in range(6):
        for c in range(5):
            n = rb*5 + c
            if c in (0, 4): k(f"s_add_u32 s49, {'s46' if c == 0 else 's38'}, {rb*9216}")
            k(f"buffer_load_dwordx4 v[{RL+4*n}:{RL+4*n+3}], v8, s[24:27], s49 offen offset:{256*c}")
    wostore(30)
    for rb in range(6):
        for c in range(5):
            n = rb*5 + c
            k(f"s_waitcnt vmcnt({29-n + 6 + n})")
            k(f"s_add_u32 s49, {'s47' if c < 4 else 's48'}, {c*4*294912}")
            k(f"buffer_store_dwordx4 v[{RL+4*n}:{RL+4*n+3}], v9, s[20:23], s49 offen offset:{512*rb}")
    n_save = sp.n
    sp.finish(end, 36, 2, 30, 31)
    k("s_endpgm")
    sp.n = n_save
    k.put(ll)
    k("s_sub_u32 s46, s37, 96")
    k("s_bitcmp1_b32 s46, 3"); k("s_cselect_b32 s40, s42, s40"); k("s_cselect_b32 s41, s43, s41")
    srd(k, 24, 40, D*F*2)
    k("v_mul_u32_u24 v8, 9216, v4"); k("v_lshl_add_u32 v8, v5, 4, v8")
    k("v_mul_u32_u24 v6, 36864, v6"); k("v_add_u32 v9, v9, v6")
    k("s_lshr_b32 s47, s46, 4"); k("s_and_b32 s48, s46, 7")
    k(f"s_mul_i32 s38, s47, {288*9216}"); k("s_mul_i32 s48, s48, 1152"); k("s_add_u32 s38, s38, s48"); k("s_add_u32 s39, s38, 512")
    k("s_and_b32 s48, s46, 15"); k(f"s_mul_i32 s48, s48, {2*36864}"); k(f"s_mul_i32 s47, s47, {288*64}"); k("s_add_u32 s47, s47, s48")
    for n in range(36):
        k(f"s_add_u32 s49, s39, {n*8*9216}")
        k(f"buffer_load_dwordx4 v[{RL+4*n}:{RL+4*n+3}], v8, s[24:27], s49 offen")
    wostore(36)
    for n in range(36):
        k(f"s_waitcnt vmcnt({35 + 6})")
        if n % 8 == 0: k(f"s_add_u32 s49, s47, {n*512}")
        k(f"buffer_store_dwordx4 v[{RL+4*n}:{RL+4*n+3}], v9, s[20:23], s49 offen offset:{512*(n%8)}")
    sp.finish(end, 36, 2, 30, 31)
    k("s_endpgm")

def gen_k1v2(name="qkv_kernel", stamp=False, LEAD=2, NS=4, fmod="", fpos=0, ntouch=2, tpos=7, DEPTH=2, pre=0):
    k = Kern(name); end = f"{name}_end"
    sp = Stamper(k, stamp, trace=0)
    NWG = 224
    k(f"s_cmp_ge_u32 s2, {NWG}"); k(f"s_cbranch_scc1 {name}_hp")
    k("s_load_dwordx4 s[4:7], s[0:1], 0")
    k("s_load_dwordx4 s[52:55], s[0:1], 32")
    k("s_load_dwordx2 s[10:11], s[0:1], 72")
    sp.start()
    k("v_lshrrev_b32 v1, 6, v0"); k("v_and_b32 v2, 63, v0")
    k("v_readfirstlane_b32 s36, v1")
    k("s_and_b32 s37, s2, 3"); k("s_lshl_b32 s37, s37, 2"); k("s_bfe_u32 s8, s2, 0x20003"); k("s_or_b32 s37, s37, s8")
    k("s_bfe_u32 s38, s2, 0x10002"); k("s_mul_i32 s38, s38, 7"); k("s_lshr_b32 s8, s2, 5"); k("s_add_u32 s38, s38, s8")
    k("s_and_b32 s39, s36, 1"); k("s_lshr_b32 s40, s36, 1")
    k("s_lshl_b32 s41, s37, 2"); k("s_add_u32 s41, s41, s36"); k("s_mul_i32 s41, s41, 36864")
    k("s_lshl_b32 s42, s38, 8"); k("s_lshl_b32 s8, s40, 7"); k("s_add_u32 s42, s42, s8")
    k(f"s_mul_i32 s8, s39, {32*3456}"); k("s_add_u32 s42, s42, s8")
    k("s_lshl_b32 s43, s36, 12")
    vDW, vDX0, vDX1 = 3, 4, 5
    k("v_and_b32 v16, 3, v2"); k("v_lshlrev_b32 v16, 4, v16"); k("v_bfe_u32 v17, v2, 2, 3"); k("v_lshrrev_b32 v18, 5, v2")
    k("v_lshl_add_u32 v16, v18, 6, v16")
    k(f"v_mul_u32_u24 v{vDW}, 3456, v17"); k(f"v_add_u32 v{vDW}, v{vDW}, v16")
    k("v_lshrrev_b32 v16, 3, v2"); k("v_and_b32 v17, 7, v2"); k("v_lshrrev_b32 v19, 1, v16"); k("v_xor_b32 v17, v17, v19")
    k("v_mul_u32_u24 v16, 1152, v16")
    k(f"v_lshl_add_u32 v{vDX0}, v17, 4, v16"); k("v_xor_b32 v17, 4, v17"); k(f"v_lshl_add_u32 v{vDX1}, v17, 4, v16")
    k("s_waitcnt lgkmcnt(0)")
    srd(k, 16, 4, S*D*2); srd(k, 20, 6, D*3*D*2)
    vq = VQ(k)
    SL = 32768
    def dma(c):
        out = []
        for b in range(4):
            out.append([f"s_add_u32 m0, s43, {(c%NS)*SL + b*1024}", f"s_add_u32 s46, s41, {b*9216 + c*128}",
                        ("vm", f"d{c}", f"buffer_load_dwordx4 v{vDX0 if b % 2 == 0 else vDX1}, s[16:19], s46 offen lds")])
            out.append([f"s_add_u32 m0, s43, {(c%NS)*SL + 16384 + b*1024}", f"s_add_u32 s46, s42, {(64*c + 8*b)*3456}",
                        ("vm", f"d{c}", f"buffer_load_dwordx4 v{vDW}, s[20:23], s46 offen lds")])
        return out
    def pretouch():
        k("s_lshr_b32 s8, s2, 5"); k("s_lshl_b32 s8, s8, 7"); k("s_add_u32 s8, s8, s41"); k("s_add_u32 s8, s8, 256")
        k("v_mul_u32_u24 v20, 1152, v2")
        k("s_mov_b32 exec_hi, 0")
        vq("pt", "buffer_load_dword v22, v20, s[16:19], s8 offen")
        k("s_mov_b32 exec_hi, 0xffffff")
        k("s_bfe_u32 s8, s2, 0x20003"); k("s_lshl_b32 s8, s8, 2"); k("s_add_u32 s8, s8, s36"); k(f"s_mul_i32 s8, s8, {28*3456}")
        k("s_lshl_b32 s9, s38, 8"); k("s_add_u32 s8, s8, s9"); k(f"s_add_u32 s8, s8, {128*3456}")
        k("v_lshrrev_b32 v20, 1, v2"); k("v_mul_u32_u24 v20, 3456, v20"); k("v_and_b32 v21, 1, v2"); k("v_lshl_add_u32 v20, v21, 7, v20")
        vq("pt", "buffer_load_dword v23, v20, s[20:23], s8 offen")
        k("s_mov_b32 exec_hi, -1")
    for c in range(LEAD):
        if pre == c + 1: pretouch()
        vq.emit(dma(c))
    if pre == LEAD + 1: pretouch()
    srd(k, 24, 10, QKV_BYTES, off=N_QKV); srd(k, 28, 10, N_FILL_BYTES, off=N_O)
    vL16 = 6; vXR = 112; vAR = 128; SEL = 8; ACC = [32, 48, 64, 80]; SUM = 96; CSA = 100; SQ = 104; FR = 136; NEG = 12
    k(f"v_lshlrev_b32 v{vL16}, 4, v2")
    for i in range(4): k(f"v_mov_b32 v{NEG+i}, -1")
    k("s_lshl_b32 s47, s2, 2"); k("s_add_u32 s47, s47, s36")
    k("s_mul_i32 s48, s47, 6144")
    fills = [("vm", "fill", f"buffer_store_dwordx4 v[{NEG}:{NEG+3}], v{vL16}, s[28:31], s48 offen offset:{i*1024} {fmod}") for i in range(4)]
    fills += [["s_add_u32 s48, s48, 4096", fills[0]], fills[1]]
    if fpos == 0: vq.emit(fills)
    lz = k.label("nz")
    k("s_cmp_ge_u32 s2, 8"); k(f"s_cbranch_scc1 {lz}")
    srd(k, 32, 10, 8192, off=N_FLAG)
    k("s_lshl_b32 s46, s2, 10"); k("v_lshlrev_b32 v20, 2, v0"); k("v_mov_b32 v21, 0")
    k("buffer_store_dword v21, v20, s[32:35], s46 offen")
    k.put(lz)
    k("v_bfe_u32 v16, v2, 2, 2"); k("v_lshlrev_b32 v16, 6, v16")
    k("v_bfe_u32 v17, v2, 4, 1"); k("v_lshl_add_u32 v16, v17, 5, v16")
    k("v_and_b32 v17, 3, v2"); k("v_lshl_add_u32 v16, v17, 3, v16")
    k("v_lshl_add_u32 v16, v18, 10, v16")
    k("s_lshl_b32 s8, s40, 13"); k("s_lshl_b32 s9, s39, 9"); k("s_add_u32 s8, s8, s9"); k("s_add_u32 s8, s8, 16384")
    k(f"v_add_u32 v{vAR}, s8, v16"); k(f"v_xor_b32 v{vAR+1}, 512, v{vAR}")
    k(f"v_add_u32 v{vAR+2}, 0x10000, v{vAR}"); k(f"v_add_u32 v{vAR+3}, 0x10000, v{vAR+1}")
    k("v_and_b32 v16, 31, v2"); k("v_lshlrev_b32 v17, 7, v16")
    k("s_lshl_b32 s8, s39, 1"); k("s_add_u32 s8, s8, s40"); k("s_lshl_b32 s8, s8, 12"); k("v_add_u32 v17, s8, v17")
    k("v_bfe_u32 v19, v16, 1, 3"); k("v_xor_b32 v19, v19, v18")
    for sl in range(4):
        k(f"v_xor_b32 v20, {2*sl}, v19"); k(f"v_lshl_add_u32 v{vXR+sl}, v20, 4, v17"); k(f"v_xor_b32 v{vXR+4+sl}, 4096, v{vXR+sl}")
        k(f"v_add_u32 v{vXR+8+sl}, 0x10000, v{vXR+sl}"); k(f"v_add_u32 v{vXR+12+sl}, 0x10000, v{vXR+4+sl}")
    k("v_bfe_u32 v19, v2, 4, 1"); k("v_bfe_u32 v20, v2, 2, 1"); k("v_cmp_eq_u32 vcc, v19, v20")
    k("v_mov_b32 v19, 0x3f803f80")
    for i in range(4): k(f"v_cndmask_b32 v{SEL+i}, 0, v19, vcc")
    for i in range(4): k(f"v_mov_b32 v{SQ+i}, 0")
    k("s_cmp_ge_u32 s47, 448"); k("s_cselect_b32 s52, s54, s52"); k("s_cselect_b32 s53, s55, s53"); k("s_cselect_b32 s8, 448, 0")
    k("s_sub_u32 s49, s47, s8"); k("s_lshl_b32 s49, s49, 13"); k(f"s_mov_b32 s54, {D*F*2:#x}"); k("s_mov_b32 s55, 0x00020000")
    k("v_lshlrev_b32 v7, 7, v2")
    touches = [("vm", "tch", "buffer_load_dword v22, v7, s[52:55], s49 offen"), [f"s_add_u32 s49, s49, {448*8192}", ("vm", "tch", "buffer_load_dword v23, v7, s[52:55], s49 offen")]][:ntouch]
    k("s_lshl_b32 s50, s38, 1"); k("s_add_u32 s50, s50, s40")
    lv = k.label("v")
    k("s_cmp_ge_u32 s38, 9"); k(f"s_cbranch_scc1 {lv}")
    vq0 = list(vq.q)
    NB = DEPTH + 1
    for isv in (0, 1):
        if isv: k.put(lv)
        vq.q = list(vq0)
        lq = []
        def reads(s):
            c = s // 4; sl = s % 4; f = FR + 16*(s % NB); hi = (c % NS) >= 2; off = (c % 2)*SL
            o = []
            for j in range(2):
                o.append(f"ds_read_b128 v[{f+8+4*j}:{f+11+4*j}], v{vXR+8*hi+4*j+sl} offset:{off}")
                for e in range(2):
                    o.append(f"ds_read_b64_tr_b16 v[{f+4*j+2*e}:{f+4*j+2*e+1}], v{vAR+2*hi+j} offset:{off + sl*2048 + e*256}")
            return o
        def barrier(c):
            vq.wait(f"d{c}"); k("s_barrier")
        barrier(0)
        sp.st()
        rp = 0
        pend = []
        for s in range(DEPTH):
            for x in reads(s): k(x); lq.append(s)
        rp = DEPTH
        for s in range(36):
            c = s // 4; sl = s % 4; f = FR + 16*(s % NB)
            fl = [[] for _ in range(6)]
            vm = []
            if c + LEAD < 9: vm += dma(c + LEAD)[2*sl:2*sl+2]
            if fpos and c == fpos and sl < 3: vm += fills[2*sl:2*sl+2]
            if c == tpos and sl < len(touches): vm.append(touches[sl])
            for n, x in enumerate(vm): fl[(1 + 2*n) % 6].append(x)
            nr = s + DEPTH
            rd = reads(nr) if nr < 36 else []
            ops = []
            for (ft, tt) in ((0, 0), (1, 0), (0, 1), (1, 1)):
                a = ACC[2*ft+tt]; C = "0" if s == 0 else f"v[{a}:{a+15}]"
                A_, B_ = f"v[{f+4*ft}:{f+4*ft+3}]", f"v[{f+8+4*tt}:{f+11+4*tt}]"
                if isv: A_, B_ = B_, A_
                ops.append(f"v_mfma_f32_32x32x16_bf16 v[{a}:{a+15}], {A_}, {B_}, {C}")
            ops.insert(1, f"v_mfma_f32_16x16x32_bf16 v[{SUM}:{SUM+3}], v[{SEL}:{SEL+3}], v[{f+8}:{f+11}], " + ("0" if s == 0 else f"v[{SUM}:{SUM+3}]"))
            ops.insert(3, f"v_mfma_f32_16x16x32_bf16 v[{CSA}:{CSA+3}], v[{SEL}:{SEL+3}], v[{f}:{f+3}], " + ("0" if s == 0 else f"v[{CSA}:{CSA+3}]"))
            for i in range(4): fl[(0, 2, 4, 5)[i]].append(f"v_dot2c_f32_bf16 v{SQ+i}, v{f+8+i}, v{f+8+i}")
            idx = max(i for i, t in enumerate(lq) if t == s)
            k(f"s_waitcnt lgkmcnt({len(lq)-1-idx})"); del lq[:idx+1]
            for n, op in enumerate(ops):
                k(op)
                if n == 0 and nr < 36 and nr % 4 == 0: barrier(nr // 4)
                if n < 6 and rd: k(rd[n]); lq.append(nr)
                for x in fl[n]: vq.emit(x)
        sp.st()
        EX = NS*SL
        k(f"v_add_f32 v{SQ}, v{SQ}, v{SQ+1}"); k(f"v_add_f32 v{SQ+2}, v{SQ+2}, v{SQ+3}"); k(f"v_add_f32 v{SQ}, v{SQ}, v{SQ+2}")
        k(f"v_mov_b32 v{SQ+1}, v{SQ}")
        k("v_lshlrev_b32 v17, 2, v16")
        k(f"v_permlane32_swap_b32 v{SQ}, v{SQ+1}")
        k("s_lshl_b32 s8, s39, 1"); k("s_add_u32 s8, s8, s40"); k("s_lshl_b32 s8, s8, 7"); k(f"s_add_u32 s8, s8, {EX}")
        k("s_lshl_b32 s9, s40, 1"); k("s_add_u32 s9, s9, s39"); k("s_lshl_b32 s9, s9, 7"); k(f"s_add_u32 s9, s9, {EX+1024}")
        k("v_add_u32 v19, s8, v17"); k("v_add_u32 v20, s9, v17")
        k(f"v_add_f32 v{SQ}, v{SQ}, v{SQ+1}")
        k(f"v_mul_f32 v{SUM}, {fx(1.0/576)}, v{SUM}")
        k(f"ds_write_b32 v20, v{CSA}")
        k(f"v_mul_f32 v{SQ}, {fx(1.0/576)}, v{SQ}")
        k(f"v_fma_f32 v{SQ}, -v{SUM}, v{SUM}, v{SQ}"); k(f"v_max_f32 v{SQ}, 0, v{SQ}"); k(f"v_add_f32 v{SQ}, {fx(1e-5)}, v{SQ}")
        k(f"v_rsq_f32 v{SQ}, v{SQ}")
        k(f"v_mul_f32 v{SQ+1}, -v{SUM}, v{SQ}")
        k(f"ds_write_b32 v19, v{SQ}"); k(f"ds_write_b32 v19, v{SQ+1} offset:512")
        if not isv:
            lm = k.label("nm")
            k("s_cmp_lg_u32 s38, 0"); k(f"s_cbranch_scc1 {lm}")
            srd(k, 32, 10, 8192, off=N_MX)
            k(f"s_sub_u32 s46, s8, {EX}"); k("s_lshl_b32 s51, s37, 9"); k("s_add_u32 s46, s46, s51")
            k(f"buffer_store_dword v{SUM}, v17, s[32:35], s46 offen")
            k.put(lm)
        k("s_lshl_b32 s51, s37, 2"); k("s_lshl_b32 s46, s39, 1"); k("s_add_u32 s51, s51, s46")
        k("s_add_u32 s56, s51, s40"); k("s_mul_i32 s56, s56, 2304")
        k("s_xor_b32 s46, s40, 1"); k("s_add_u32 s57, s51, s46"); k("s_mul_i32 s57, s57, 2304")
        k("v_xor_b32 v21, 128, v19"); k("v_xor_b32 v24, 128, v20")
        PR = FR
        OUT = FR + 64
        if not isv:
            k("v_lshlrev_b32 v25, 4, v18"); k("v_add_u32 v25, s9, v25"); k("v_xor_b32 v26, 128, v25")
            AD = 112
            k("v_lshlrev_b32 v27, 3, v16")
            for j in range(2):
                k(f"s_xor_b32 s46, s39, {j}"); k("s_lshl_b32 s58, s50, 1"); k("s_add_u32 s46, s46, s58"); k("s_lshl_b32 s46, s46, 3")
                for q in range(4):
                    k(f"s_add_u32 s58, s46, {2*q}"); k("v_add_u32 v28, s58, v18")
                    k("v_mul_u32_u24 v29, 57, v28"); k("v_lshrrev_b32 v29, 9, v29"); k("v_lshl_add_u32 v28, v28, 8, v27")
                    k(f"v_mad_u32_u24 v{AD+4*j+q}, v29, v30, v28") if False else None
                    k(f"v_mul_u32_u24 v29, {QKV_SLOT-2304}, v29"); k(f"v_add_u32 v{AD+4*j+q}, v29, v28")
            qs = (18 ** -0.5) * math.log2(math.e)
            k("s_cmp_lt_u32 s50, 9"); k(f"s_cselect_b32 s58, {fx(qs)}, 1.0")
            k("s_waitcnt lgkmcnt(0)"); k("s_barrier")
            k(f"ds_read_b32 v{SQ+2}, v21"); k(f"ds_read_b32 v{SQ+3}, v21 offset:512")
            for j in range(2):
                for q in range(4): k(f"ds_read_b128 v[{PR+16*j+4*q}:{PR+16*j+4*q+3}], v{25+j} offset:{32*q}")
            k(f"v_mul_f32 v{SQ}, s58, v{SQ}"); k(f"v_mul_f32 v{SQ+1}, s58, v{SQ+1}")
            for r in range(16): k(f"v_mul_f32 v{ACC[0]+r}, v{SQ}, v{ACC[0]+r}")
            k("s_waitcnt lgkmcnt(4)")
            k(f"v_mul_f32 v{SQ+2}, s58, v{SQ+2}"); k(f"v_mul_f32 v{SQ+3}, s58, v{SQ+3}")
            for n, (ft, tt) in enumerate(((0, 0), (0, 1), (1, 0), (1, 1))):
                a = ACC[2*ft+tt]; o = OUT + 8*n
                if n == 2: k("s_waitcnt lgkmcnt(0)")
                for q in range(4):
                    for r in range(4*q, 4*q+4):
                        if n: k(f"v_mul_f32 v{a+r}, v{SQ+2*tt}, v{a+r}")
                        k(f"v_fmac_f32 v{a+r}, v{PR+16*ft+r}, v{SQ+2*tt+1}")
                    for j in range(2): k(f"v_cvt_pk_bf16_f32 v{o+2*q+j}, v{a+4*q+2*j}, v{a+4*q+2*j+1}")
                    k(f"buffer_store_dwordx2 v[{o+2*q}:{o+2*q+1}], v{AD+4*ft+q}, s[24:27], s{56+tt} offen")
        else:
            k("v_lshlrev_b32 v25, 4, v18"); k("v_add_u32 v25, s8, v25"); k("v_xor_b32 v26, 128, v25")
            AD = 112
            k("v_mul_u32_u24 v27, 576, v18")
            for j in range(2):
                k(f"s_xor_b32 s46, s39, {j}"); k("s_lshl_b32 s58, s50, 1"); k("s_add_u32 s46, s46, s58"); k("s_sub_u32 s46, s46, 36"); k("s_lshl_b32 s46, s46, 5")
                k("v_add_u32 v28, s46, v16"); k("v_mul_u32_u24 v29, 1821, v28"); k("v_lshrrev_b32 v29, 16, v29")
                k("v_lshl_add_u32 v28, v28, 4, v27"); k(f"v_mul_u32_u24 v29, {QKV_SLOT-576}, v29"); k(f"v_add_u32 v{AD+j}, v29, v28")
            k(f"s_add_u32 s56, s56, {32*QKV_SLOT}"); k(f"s_add_u32 s57, s57, {32*QKV_SLOT}")
            k("s_waitcnt lgkmcnt(0)"); k("s_barrier")
            k("s_cmp_eq_u32 s50, 27"); k(f"s_cbranch_scc1 {name}_vdone")
            k(f"ds_read_b32 v{CSA+1}, v24")
            for j in range(2):
                for h in range(2):
                    for q in range(4): k(f"ds_read_b128 v[{PR+32*j+16*h+4*q}:{PR+32*j+16*h+4*q+3}], v{25+j} offset:{32*q+512*h}")
            for n, (ft, tt) in enumerate(((0, 0), (1, 0), (0, 1), (1, 1))):
                a = ACC[2*ft+tt]; o = OUT + 8*n
                if n == 0: k("s_waitcnt lgkmcnt(8)")
                if n == 2: k("s_waitcnt lgkmcnt(0)")
                for u in range(2):
                    for r in range(8*u, 8*u+8):
                        k(f"v_mul_f32 v{a+r}, v{PR+32*tt+r}, v{a+r}")
                        k(f"v_fmac_f32 v{a+r}, v{CSA+ft}, v{PR+32*tt+16+r}")
                    for j in range(4): k(f"v_cvt_pk_bf16_f32 v{o+4*u+j}, v{a+8*u+2*j}, v{a+8*u+2*j+1}")
                    k(f"buffer_store_dwordx4 v[{o+4*u}:{o+4*u+3}], v{AD+ft}, s[24:27], s{56+tt} offen offset:{1152*u}")
            k.put(f"{name}_vdone")
        if tpos == 99: vq.emit(touches)
        if fpos == 99: vq.emit(fills)
        n_save = sp.n
        sp.finish(end, 36, 2, 30, 31)
        if isv == 0:
            k("s_endpgm")
            sp.n = n_save - 2
    k.put(end); k("s_endpgm")
    k.put(f"{name}_hp")
    k(f"s_cmp_ge_u32 s2, 256"); k(f"s_cbranch_scc1 {end}")
    sp.n = 0
    helper_code(k, name, end, sp)
    return k, (name, 256, 256, NS*SL + 2048)
```

```python
from common import *
def gen_k2(name="attn_kernel", stamp=False, pf=0, fill=0, rl=None, rlm='', rl8=None):
    k = Kern(name); end = f"{name}_end"
    sp = Stamper(k, stamp, base=84, trace=1)
    NWG = 512
    KB = 12288; VB = KB + 13*256 + 768
    assert VB == 16384
    LDS = VB + 24*1024
    k(f"s_cmp_ge_u32 s2, {NWG}"); k(f"s_cbranch_scc1 {end}")
    k("s_load_dwordx2 s[10:11], s[0:1], 72")
    if pf:
        for n, (ka, nb) in enumerate(pf): k(f"s_load_dwordx2 s[{40+2*n}:{41+2*n}], s[0:1], {ka}")
    if rl is not None or rl8 is not None:
        k("s_load_dwordx4 s[52:55], s[0:1], 32"); k("s_load_dwordx2 s[56:57], s[0:1], 48")
    sp.start()
    k("v_lshrrev_b32 v1, 6, v0"); k("v_and_b32 v2, 63, v0")
    k("v_readfirstlane_b32 s36, v1")
    k("s_and_b32 s37, s2, 7"); k("s_lshl_b32 s37, s37, 1"); k("s_bfe_u32 s4, s2, 0x10003"); k("s_or_b32 s37, s37, s4")
    k("s_lshr_b32 s38, s2, 4")
    k("s_lshl_b32 s39, s37, 2"); k("s_sub_u32 s5, s39, 8"); k("s_add_u32 s39, s39, s36")
    k("s_mul_i32 s4, s36, 3"); k("s_add_u32 s5, s5, s4")
    k("s_mul_i32 s6, s38, 9"); k("s_lshr_b32 s6, s6, 1"); k("s_lshl_b32 s6, s6, 8")
    k("s_mul_i32 s7, s39, 73728"); k("s_add_u32 s7, s7, s6")
    k(f"s_add_u32 s6, s6, {144*256}")
    vL16, vKB, vVD, vKr, vKr2, vVr, vQm = 3, 4, 5, 6, 7, 8, 9
    Q = 10
    MP = 16
    T = 24
    FR = 32
    O = 64
    SB = 80
    k(f"v_lshlrev_b32 v{vL16}, 4, v2")
    k("v_lshrrev_b32 v24, 4, v2"); k("v_add_u32 v24, s5, v24"); k("v_max_i32 v24, 0, v24"); k("v_mul_u32_u24 v24, 73728, v24")
    k("v_and_b32 v25, 15, v2"); k(f"v_lshl_add_u32 v{vKB}, v25, 4, v24")
    k("v_lshrrev_b32 v26, 5, v2"); k("v_and_b32 v27, 31, v2")
    k("s_mul_i32 s4, s38, 288")
    k("v_mul_u32_u24 v24, 9216, v26"); k("v_lshl_add_u32 v24, v27, 4, v24"); k(f"v_add_u32 v{vVD}, s4, v24")
    k("v_lshlrev_b32 v24, 3, v27"); k("v_lshl_add_u32 v25, v26, 8, v24")
    k("s_waitcnt lgkmcnt(0)")
    srd(k, 16, 10, QK_BYTES, off=WS_QK); srd(k, 20, 10, V_BYTES, off=WS_V); srd(k, 24, 10, O_BYTES, off=WS_O)
    k("s_mul_i32 s8, s36, 3072");
    for i in range(3):
        k(f"s_add_i32 s{28+i}, s5, {i}"); k(f"s_max_i32 s{28+i}, s{28+i}, 0")
        k(f"s_mul_i32 s9, s{28+i}, 73728"); k("s_add_u32 s9, s9, s6")
        k(f"s_add_u32 m0, s8, {i*1024}")
        k(f"buffer_load_dwordx4 v{vL16}, s[16:19], s9 offen lds")
    k("s_mul_i32 s9, s36, 768"); k(f"s_add_u32 m0, s9, {KB - 1024}")
    k(f"buffer_load_dwordx4 v{vKB}, s[16:19], s6 offen offset:1024 lds")
    for i in range(3):
        k(f"buffer_load_dwordx2 v[{Q+2*i}:{Q+2*i+1}], v25, s[16:19], s7 offen offset:{512*i}")
    k("s_mov_b32 s32, 0x3ffff"); k("s_mov_b32 s33, 0x3ffff"); k("s_mov_b64 exec, s[32:33]")
    k("s_mul_i32 s8, s36, 6144"); k(f"s_add_u32 s8, s8, {VB}")
    for i in range(3):
        k(f"s_mul_i32 s9, s{28+i}, 36864")
        for u in range(2):
            k(f"s_add_u32 m0, s8, {(2*i+u)*1024}")
            if u: k("s_add_u32 s9, s9, 18432")
            k(f"buffer_load_dwordx4 v{vVD}, s[20:23], s9 offen lds")
    if pf:
        k("s_mov_b64 exec, -1")
        k("s_lshl_b32 s48, s36, 9"); k("s_add_u32 s48, s48, s2")
        k(f"s_mov_b32 s14, {pf[0][1]}")
        acc_ = 0
        k("s_mov_b32 s49, 0")
        for j in range(1, len(pf)):
            acc_ += pf[j-1][1] // 8192
            k(f"s_cmp_ge_u32 s48, {acc_}")
            k(f"s_cselect_b32 s40, s{40+2*j}, s40"); k(f"s_cselect_b32 s41, s{41+2*j}, s41")
            k(f"s_cselect_b32 s14, {pf[j][1]}, s14")
            k(f"s_cselect_b32 s49, {acc_}, s49")
        k("s_sub_u32 s48, s48, s49")
        k("s_mov_b32 s12, s40"); k("s_mov_b32 s13, s41"); k("s_mov_b32 s15, 0x00020000")
        k("s_lshl_b32 s48, s48, 13"); k("v_lshlrev_b32 v28, 7, v2")
        k("buffer_load_dword v224, v28, s[12:15], s48 offen")
        k("s_mov_b64 exec, s[32:33]")
    if rl is not None:
        k("s_mov_b64 exec, -1")
        k("s_lshl_b32 s58, s36, 9"); k("s_add_u32 s58, s58, s2")
        k("s_mul_i32 s59, s58, 52429"); k("s_lshr_b32 s59, s59, 18")
        k("s_mul_i32 s60, s59, 5"); k("s_sub_u32 s60, s58, s60")
        k("s_lshl_b32 s60, s60, 1"); k("s_cmp_ge_u32 s59, 144"); k("s_addc_u32 s60, s60, 0"); k("s_min_u32 s60, s60, 8")
        k(f"s_mul_i32 s61, s59, {16*1152}"); k("s_lshl_b32 s62, s60, 7"); k("s_add_u32 s61, s61, s62")
        k(f"s_mul_i32 s100, s60, {2*294912}"); k("s_lshl_b32 s62, s59, 10"); k("s_add_u32 s100, s100, s62"); k(f"s_add_u32 s100, s100, {WS_WD2-WS_WL:#x}")
        k("s_sub_u32 s59, s58, 1440"); k("s_and_b32 s60, s59, 7"); k("s_lshr_b32 s62, s59, 4")
        k(f"s_mul_i32 s63, s62, {16*9216}"); k("s_mul_i32 s64, s60, 1152"); k("s_add_u32 s63, s63, s64"); k("s_add_u32 s63, s63, 512")
        k("s_and_b32 s64, s59, 15"); k(f"s_mul_i32 s64, s64, {2*36864}"); k("s_lshl_b32 s62, s62, 10"); k("s_add_u32 s64, s64, s62")
        k("s_bitcmp1_b32 s59, 3"); k("s_cselect_b32 s52, s54, s52"); k("s_cselect_b32 s53, s55, s53")
        k("s_cmp_lt_u32 s58, 1440")
        k("s_cselect_b32 s12, s56, s52"); k("s_cselect_b32 s13, s57, s53"); k("s_cselect_b32 s61, s61, s63"); k("s_cselect_b32 s100, s100, s64")
        k("s_mov_b32 s62, 9216"); k("s_cselect_b32 s62, 1152, s62"); k("s_mov_b32 s63, 36864"); k("s_cselect_b32 s63, 294912, s63")
        k("s_cmp_lt_u32 s58, 2016")
        k(f"s_cselect_b32 s14, {D*F*2:#x}, 0"); k("s_mov_b32 s15, 0x00020000")
        k(f"s_cselect_b32 s98, {WS_WD2-WS_WL+18*294912:#x}, 0"); k("s_mov_b32 s99, 0x00020000")
        k(f"s_add_u32 s96, s10, {WS_WL:#x}"); k("s_addc_u32 s97, s11, 0")
        k("v_lshrrev_b32 v28, 3, v2"); k("v_mul_lo_u32 v226, s62, v28"); k("v_and_b32 v29, 7, v2"); k("v_lshl_add_u32 v226, v29, 4, v226")
        k("buffer_load_dwordx4 v[228:231], v226, s[12:15], s61 offen")
        k("s_lshl_b32 s62, s62, 3"); k("s_add_u32 s61, s61, s62")
        k("buffer_load_dwordx4 v[232:235], v226, s[12:15], s61 offen")
        k("v_bfe_u32 v29, v2, 2, 1"); k("v_mul_lo_u32 v227, s63, v29"); k("v_lshl_add_u32 v227, v28, 6, v227"); k("v_and_b32 v29, 3, v2"); k("v_lshl_add_u32 v227, v29, 4, v227")
        k("s_mov_b64 exec, s[32:33]")
        fill += 2
    if rl8 is not None:
        k("s_mov_b64 exec, -1")
        k("s_lshl_b32 s58, s36, 9"); k("s_add_u32 s58, s58, s2")
        k("s_mul_i32 s59, s58, 3641"); k("s_lshr_b32 s59, s59, 18")
        k("s_mul_i32 s60, s59, 72"); k("s_sub_u32 s60, s58, s60")
        k("s_and_b32 s61, s59, 7"); k("s_lshr_b32 s59, s59, 3")
        k(f"s_mul_i32 s62, s60, {8*9216}"); k("s_mul_i32 s63, s61, 1152"); k("s_add_u32 s62, s62, s63")
        k(f"s_mul_i32 s63, s61, {576*1152}"); k(f"s_mul_i32 s64, s60, {8*1152}"); k("s_add_u32 s63, s63, s64")
        k(f"s_mul_i32 s100, s61, {4*55296}"); k("s_mul_i32 s64, s59, 18432"); k("s_add_u32 s100, s100, s64"); k("s_lshl_b32 s64, s60, 8"); k("s_add_u32 s100, s100, s64")
        k("s_cmp_eq_u32 s59, 1"); k("s_cselect_b32 s52, s54, s52"); k("s_cselect_b32 s53, s55, s53")
        k("s_cmp_ge_u32 s59, 2")
        k("s_cselect_b32 s12, s56, s52"); k("s_cselect_b32 s13, s57, s53"); k("s_cselect_b32 s61, s63, s62")
        k("s_mov_b32 s62, 9216"); k("s_cselect_b32 s62, 1152, s62")
        k("s_cmp_lt_u32 s58, 1728")
        k(f"s_cselect_b32 s14, {D*F*2:#x}, 0"); k("s_mov_b32 s15, 0x00020000")
        k(f"s_cselect_b32 s98, {32*55296:#x}, 0"); k("s_mov_b32 s99, 0x00020000")
        k(f"s_add_u32 s96, s10, {WS_WL:#x}"); k("s_addc_u32 s97, s11, 0")
        k("v_lshrrev_b32 v28, 3, v2"); k("v_mul_lo_u32 v226, s62, v28"); k("v_and_b32 v29, 7, v2"); k("v_lshl_add_u32 v226, v29, 4, v226")
        k("buffer_load_dwordx4 v[228:231], v226, s[12:15], s61 offen offset:1024")
        k("v_bfe_u32 v29, v2, 1, 2"); k("v_mul_u32_u24 v227, 55296, v29"); k("v_lshl_add_u32 v227, v28, 5, v227"); k("v_and_b32 v29, 1, v2"); k("v_lshl_add_u32 v227, v29, 4, v227")
        k("s_mov_b64 exec, s[32:33]")
        fill_extra = 1
    else: fill_extra = 0
    k("s_not_b64 exec, exec")
    for i in range(4): k(f"v_mov_b32 v{FR+i}, 0x3f803f80")
    k(f"v_add_u32 v{vVr}, s8, v{vL16}")
    for i in range(6): k(f"ds_write_b128 v{vVr}, v[{FR}:{FR+3}] offset:{i*1024}")
    k("s_mov_b64 exec, -1")
    if fill == 16:
        for i in range(4): k(f"v_mov_b32 v{O+i}, -1")
        for base in (0x4000000, 0x1000000):
            srd(k, 12, 10, 0x1000000, off=base)
            k("s_lshl_b32 s48, s2, 2"); k("s_add_u32 s48, s48, s36"); k(f"s_lshl_b32 s48, s48, 13")
            for i in range(8):
                if i == 4: k("s_add_u32 s48, s48, 4096")
                k(f"buffer_store_dwordx4 v[{O}:{O+3}], v{vL16}, s[12:15], s48 offen offset:{(i%4)*1024}")
    elif fill == 8:
        srd(k, 12, 10, 0x1000000, off=0x4000000)
        for i in range(4): k(f"v_mov_b32 v{O+i}, -1")
        k("s_lshl_b32 s48, s2, 2"); k("s_add_u32 s48, s48, s36"); k(f"s_lshl_b32 s48, s48, 13")
        for i in range(8):
            if i == 4: k("s_add_u32 s48, s48, 4096")
            k(f"buffer_store_dwordx4 v[{O}:{O+3}], v{vL16}, s[12:15], s48 offen offset:{(i%4)*1024}")
    elif fill >= 5:
        srd(k, 12, 10, 64*80*2048, off=WS_PT)
        for i in range(4): k(f"v_mov_b32 v{O+i}, -1")
        k("s_lshl_b32 s48, s2, 2"); k("s_add_u32 s48, s48, s36"); k(f"s_mul_i32 s48, s48, {5*1024}")
        for i in range(5):
            if i == 4: k("s_add_u32 s48, s48, 4096")
            k(f"buffer_store_dwordx4 v[{O}:{O+3}], v{vL16}, s[12:15], s48 offen offset:{(i%4)*1024} sc1")
    fill += fill_extra
    k("s_lshl_b32 s4, s36, 10"); k(f"v_add_u32 v{vKr}, s4, v25")
    k("s_lshl_b32 s4, s36, 8"); k(f"s_add_u32 s4, s4, {KB}"); k(f"v_add_u32 v{vKr2}, s4, v24")
    k("s_lshl_b32 s4, s36, 11"); k(f"s_add_u32 s4, s4, {VB}"); k(f"v_add_u32 v{vVr}, s4, v{vL16}")
    k(f"v_lshlrev_b32 v26, 2, v26"); k(f"v_sub_u32 v{vQm}, v27, v26")
    MS = 40
    for r in range(16):
        k(f"v_cmp_le_i32 s[{MS+2*r}:{MS+2*r+1}], {8*(r>>2)+(r&3)}, v{vQm}")
    k("v_mov_b32 v24, 0xffff")
    for j in range(8):
        k(f"v_cndmask_b32 v{MP+j}, 0, v24, s[{MS+4*j}:{MS+4*j+1}]")
        k(f"v_cndmask_b32 v{MP+j}, v{MP+j}, -1, s[{MS+4*j+2}:{MS+4*j+3}]")
    k("s_bitcmp1_b32 s38, 0")
    k("s_cselect_b32 s32, 0, -1"); k("s_mov_b32 s33, -1")
    k("s_cselect_b32 s34, -1, 0"); k("s_mov_b32 s35, 0")
    k("s_mov_b32 s12, -1"); k("s_mov_b32 s13, 0")
    k("s_sub_i32 s14, 8, s39")
    k(f"s_waitcnt vmcnt({6+(1 if pf else 0)+fill})")
    k(f"v_cndmask_b32 v{Q}, 0, v{Q}, s[32:33]")
    k(f"v_cndmask_b32 v{Q+4}, 0, v{Q+4}, s[12:13]")
    k(f"v_cndmask_b32 v{Q+5}, 0, v{Q+5}, s[34:35]")
    k("s_barrier")
    sp.st()
    order = [8, 0, 1, 2, 3, 4, 5, 6, 7]
    def S(t): return SB + 16*t
    def kread(i):
        t = order[i]; f = FR + 8*(i % 4)
        k(f"ds_read_b64 v[{f}:{f+1}], v{vKr} offset:{t*1024}")
        k(f"ds_read_b64 v[{f+2}:{f+3}], v{vKr} offset:{t*1024+512}")
        k(f"ds_read_b64 v[{f+4}:{f+5}], v{vKr2} offset:{t*256}")
    for i in range(3): kread(i)
    ool = []
    work = []
    for r in range(16): work.append((2, f"v_cndmask_b32 v{S(8)+r}, v{S(0)+r}, v{S(8)+r}, s[{MS+2*r}:{MS+2*r+1}]"))
    MX = [T, T+1, T+2, T+3]
    first = [True]*4
    for i, t in enumerate(order):
        if t == 0: continue
        for j in range(8):
            c = j % 4; a = S(t) + 2*j
            if first[c]: work.append((max(i, 1)+1, f"v_max_f32 v{MX[c]}, v{a}, v{a+1}")); first[c] = False
            else: work.append((max(i, 1)+1, f"v_max3_f32 v{MX[c]}, v{a}, v{a+1}, v{MX[c]}"))
    wp = 0
    for i, t in enumerate(order):
        f = FR + 8*(i % 4)
        nlater = min(2, 8 - i) * 3
        k(f"s_waitcnt lgkmcnt({nlater})")
        if t < 8:
            ln = k.label("neg"); lb = k.label("back")
            k(f"s_cmp_gt_i32 s14, {t}"); k(f"s_cbranch_scc1 {ln}")
            ool.append((ln, lb, t))
        k(f"v_mfma_f32_32x32x16_bf16 v[{S(t)}:{S(t)+15}], v[{f}:{f+3}], v[{Q}:{Q+3}], 0")
        k(f"v_mfma_f32_32x32x8_bf16 v[{S(t)}:{S(t)+15}], v[{f+4}:{f+5}], v[{Q+4}:{Q+5}], v[{S(t)}:{S(t)+15}]")
        if t < 8: k.put(lb)
        if i + 3 < 9: kread(i + 3)
        n = 0
        while wp < len(work) and work[wp][0] <= i and n < 12:
            k(work[wp][1]); wp += 1; n += 1
    k(f"s_waitcnt vmcnt({(1 if pf else 0)+fill})")
    k("s_barrier")
    pv = [(1, S(1)), (2, S(2)), (3, S(3)), (4, S(4)), (5, S(5)), (6, S(6)), (7, S(7)), (8, S(8)), (0, S(0))]
    def vread(i):
        t = pv[i][0]; f = FR + 8*(i % 4)
        for u in range(2): k(f"ds_read_b128 v[{f+4*u}:{f+4*u+3}], v{vVr} offset:{(2*t+u)*1024}")
    for i in range(3): vread(i)
    while wp < len(work): k(work[wp][1]); wp += 1
    k(f"v_max_f32 v{T}, v{T}, v{T+1}"); k(f"v_max3_f32 v{T}, v{T+2}, v{T+3}, v{T}")
    k(f"v_mov_b32 v{T+1}, v{T}")
    k(f"v_permlane32_swap_b32 v{T}, v{T+1}")
    k(f"v_max_f32 v{T}, v{T}, v{T+1}")
    sp.st()
    def soft(t, half):
        out = []; b = S(t) + 8*half
        for r in range(8): out.append(f"v_sub_f32 v{b+r}, v{b+r}, v{T}")
        for r in range(8): out.append(f"v_exp_f32 v{b+r}, v{b+r}")
        for j in range(4):
            d = S(t) + 4*half + j
            out.append(f"v_cvt_pk_bf16_f32 v{d}, v{b+2*j}, v{b+2*j+1}")
        if t == 8:
            for j in range(4):
                d = S(t) + 4*half + j; e = S(0) + 4*half + j
                out.append(f"v_bfi_b32 v{e}, v{MP+4*half+j}, 0, v{d}")
                out.append(f"v_and_b32 v{d}, v{MP+4*half+j}, v{d}")
        return out
    steps = [(i, u) for i in range(9) for u in range(2)]
    for x in soft(1, 0): k(x)
    for n, (i, u) in enumerate(steps):
        t, P = pv[i]; f = FR + 8*(i % 4)
        if u == 0:
            k(f"s_waitcnt lgkmcnt({min(2, 8-i)*2})")
        nxt = steps[n+1] if n + 1 < len(steps) else None
        if nxt is not None and pv[nxt[0]][0] != 0:
            w = soft(pv[nxt[0]][0], nxt[1])
        else: w = []
        for x in w[:2]: k(x)
        C = "0" if n == 0 else f"v[{O}:{O+15}]"
        k(f"v_mfma_f32_32x32x16_bf16 v[{O}:{O+15}], v[{f+4*u}:{f+4*u+3}], v[{P+4*u}:{P+4*u+3}], {C}")
        if u == 1 and i + 3 < 9: vread(i + 3)
        for x in w[2:]: k(x)
        if n == rl8:
            k("s_waitcnt vmcnt(0)")
            k(f"buffer_store_dwordx4 v[228:231], v227, s[96:99], s100 offen")
        if n == rl:
            k("s_waitcnt vmcnt(0)")
            k(f"buffer_store_dwordx4 v[228:231], v227, s[96:99], s100 offen {rlm}")
            k(f"buffer_store_dwordx4 v[232:235], v227, s[96:99], s100 offen offset:512 {rlm}")
    k("s_mul_i32 s4, s39, 36864"); k("s_lshl_b32 s5, s38, 10"); k("s_add_u32 s5, s5, s4")
    k("s_lshr_b32 s6, s38, 2"); k("s_lshl_b32 s6, s6, 9"); k("s_and_b32 s7, s38, 3"); k("s_lshl_b32 s7, s7, 2")
    k("s_add_u32 s6, s6, s7"); k("s_add_u32 s6, s6, s4"); k("s_add_u32 s6, s6, 32768")
    k(f"v_rcp_f32 v{T}, v{O+10}")
    for r in range(10): k(f"v_mul_f32 v{O+r}, v{O+r}, v{T}")
    for j in range(5): k(f"v_cvt_pk_bf16_f32 v{FR+j}, v{O+2*j}, v{O+2*j+1}")
    k(f"buffer_store_dwordx4 v[{FR}:{FR+3}], v{vL16}, s[24:27], s5 offen")
    k("s_mov_b64 exec, s[12:13]")
    k(f"buffer_store_dword v{FR+4}, v{vL16}, s[24:27], s6 offen")
    k("s_mov_b64 exec, -1")
    sp.finish(end, 36, 2, 30, 31)
    k.put(end); k("s_endpgm")
    for (ln, lb, t) in ool:
        k.put(ln)
        for r in range(16): k(f"v_mov_b32 v{S(t)+r}, {fx(-1e30)}")
        k(f"s_branch {lb}")
    return k, (name, NWG, 256, LDS)
```

```python
from mkall import *
from k1f import *
from fz import *
def bz(fn, stamp=True, k1kw=None, **kw):
    ks = [gen_k1f(stamp=False, **dict(dict(touch=()), **(k1kw or {}))), gen_fz(stamp=stamp, **kw)]
    open(fn, "w").write(emit_file([k for k, l in ks], [l for k, l in ks], header=hdr))
MK = ["kq", "mx", "at", "oa", "pm", "hs", "ha", "hv", "C3", "C6", "RP", "C9", "C12", "C15", "D0", "D1", "B8", "sB2", "sB1", "sG"]
if __name__ == "__main__":
    bz("y0.s", stamp=False)
    bz("y1.s", marks=MK)
```

```python
from common import *
import math
def gen_k1(name="qkv_kernel", stamp=False, DEPTH=6, zflags=True, pf=0, helper=None, mx=False, mt=None, mtm=''):
    k = Kern(name); end = f"{name}_end"
    sp = Stamper(k, stamp, trace=0)
    NWG = 224
    k(f"s_cmp_ge_u32 s2, {NWG}"); k(f"s_cbranch_scc1 {name}_pf" if pf else f"s_cbranch_scc1 {end}")
    k("s_load_dwordx4 s[4:7], s[0:1], 0")
    k("s_load_dwordx2 s[10:11], s[0:1], 72")
    if mt is not None:
        k("s_load_dwordx4 s[72:75], s[0:1], 32"); k("s_load_dwordx2 s[76:77], s[0:1], 48")
    sp.start()
    k("v_lshrrev_b32 v1, 6, v0"); k("v_and_b32 v2, 63, v0")
    k("v_readfirstlane_b32 s36, v1")
    k("s_and_b32 s37, s2, 7"); k("s_lshl_b32 s37, s37, 2"); k("s_bfe_u32 s42, s2, 0x20003"); k("s_or_b32 s37, s37, s42")
    k("s_lshr_b32 s38, s2, 5")
    k("s_and_b32 s39, s36, 1")
    k("s_lshr_b32 s40, s36, 1")
    k("s_lshl_b32 s41, s38, 9"); k("s_lshl_b32 s42, s36, 7"); k("s_add_u32 s41, s41, s42")
    k("s_lshl_b32 s43, s36, 13")
    k("s_lshl_b32 s44, s37, 6"); k("s_lshl_b32 s42, s36, 4"); k("s_add_u32 s44, s44, s42"); k("s_mul_i32 s44, s44, 1152")
    k("s_mul_i32 s45, s36, 18432")
    vDW, vDX0, vDX1, vA, vXR, vSTQ, vSTV = 3, 4, 5, 6, 8, 12, 13
    vRd = [14, 15]
    vT = 16
    k("v_and_b32 v16, 3, v2"); k("v_lshlrev_b32 v16, 4, v16")
    k("v_bfe_u32 v17, v2, 2, 3")
    k("v_lshrrev_b32 v18, 5, v2")
    k("v_lshl_add_u32 v16, v18, 6, v16")
    k(f"v_mul_u32_u24 v{vDW}, 3456, v17"); k(f"v_add_u32 v{vDW}, v{vDW}, v16")
    k("v_lshrrev_b32 v16, 3, v2"); k("v_and_b32 v17, 7, v2"); k("v_lshrrev_b32 v19, 1, v16"); k("v_xor_b32 v17, v17, v19")
    k("v_mul_u32_u24 v16, 1152, v16")
    k(f"v_lshl_add_u32 v{vDX0}, v17, 4, v16")
    k("v_xor_b32 v17, 4, v17")
    k(f"v_lshl_add_u32 v{vDX1}, v17, 4, v16")
    k("v_bfe_u32 v16, v2, 2, 2"); k("v_lshlrev_b32 v16, 6, v16")
    k("v_bfe_u32 v17, v2, 4, 1"); k("v_lshl_add_u32 v16, v17, 5, v16")
    k("v_and_b32 v17, 3, v2"); k("v_lshl_add_u32 v16, v17, 3, v16")
    k("v_lshl_add_u32 v16, v18, 10, v16")
    k("s_lshl_b32 s42, s40, 14")
    k(f"v_add_u32 v{vA}, s42, v16")
    k("v_and_b32 v16, 31, v2"); k("v_lshrrev_b32 v17, 3, v16"); k("v_mul_u32_u24 v17, 9216, v17")
    k("v_and_b32 v19, 7, v16"); k("v_lshl_add_u32 v17, v19, 7, v17")
    k("s_mul_i32 s42, s39, 36864"); k("v_add_u32 v17, s42, v17")
    k("v_bfe_u32 v19, v16, 1, 3"); k("v_xor_b32 v19, v19, v18")
    for q in range(4):
        k(f"v_xor_b32 v20, {2*q}, v19"); k(f"v_lshl_add_u32 v{vXR+q}, v20, 4, v17")
    k(f"v_lshlrev_b32 v{vSTQ}, 3, v16"); k(f"v_lshl_add_u32 v{vSTQ}, v18, 8, v{vSTQ}")
    k(f"v_mul_u32_u24 v{vSTV}, 9216, v18"); k(f"v_lshl_add_u32 v{vSTV}, v16, 4, v{vSTV}")
    k("s_waitcnt lgkmcnt(0)")
    srd(k, 16, 4, S*D*2); srd(k, 20, 6, D*3*D*2)
    srd(k, 24, 10, QK_BYTES, off=WS_QK); srd(k, 28, 10, V_BYTES, off=WS_V)
    vq = VQ(k)
    if zflags:
        lz = k.label("nz")
        k(f"s_cmp_ge_u32 s2, {64 if zflags == 2 else 8}"); k(f"s_cbranch_scc1 {lz}")
        if zflags == 2: srd(k, 32, 10, 65536, off=0x2800000)
        else: srd(k, 32, 10, 8192, off=WS_FLAG)
        k("s_lshl_b32 s46, s2, 10"); k("v_lshlrev_b32 v20, 2, v0"); k("v_mov_b32 v21, 0")
        k("buffer_store_dword v21, v20, s[32:35], s46 offen sc1")
        k("s_waitcnt vmcnt(0)")
        k.put(lz)
    SLOT = [73728, 73728+32768, 0, 32768]
    SPARE = 73728 + 65536
    def dma_w(c):
        out = []
        for rg in range(8):
            out.append([f"s_add_u32 m0, s43, {SLOT[c%4] + rg*1024}", f"s_add_u32 s46, s41, {(64*c + 8*rg)*3456}",
                        ("vm", f"w{c}", f"buffer_load_dwordx4 v{vDW}, s[20:23], s46 offen lds")])
        return out
    for par in range(2):
        for sg in range(9):
            k(f"s_add_u32 m0, s45, {(par*9 + sg)*1024}"); k(f"s_add_u32 s46, s44, {par*8*1152 + sg*128}")
            vq("x", f"buffer_load_dwordx4 v{vDX0 if par == 0 else vDX1}, s[16:19], s46 offen lds")
    for c in range(2): vq.emit(dma_w(c))
    if mt is not None:
        for j in range(3): srd(k, 60+4*j, 72+2*j, D*F*2)
        k("s_lshr_b32 s46, s2, 3"); k("s_lshl_b32 s46, s46, 8"); k("v_add_u32 v16, s46, v0")
        k("v_mul_u32_u24 v17, 7282, v16"); k("v_lshrrev_b32 v17, 16, v17")
        k(f"v_mul_u32_u24 v17, {9216 - 1152}, v17"); k("v_lshlrev_b32 v5, 7, v16"); k("v_add_u32 v4, v5, v17")
        k("v_cmp_gt_u32 vcc, 5184, v16"); k("v_cndmask_b32 v4, -1, v4, vcc"); k("v_cndmask_b32 v5, -1, v5, vcc")
        k("v_lshrrev_b32 v4, 0, v4")
        k("s_and_b32 s57, s2, 7"); k("s_mul_i32 s57, s57, 1152"); k("s_mul_i32 s58, s57, 576")
    if isinstance(mtm, str): mtm = [mtm]*3
    tch = [[("vm", "tch", f"buffer_load_dword v7, v{4 + j//2}, s[{60+4*j}:{63+4*j}], s{57 + j//2} offen {m}") for m in mtm[j].split("|")] for j in range(3)]
    XR = 64; ACC = 208
    accs = [32, 48, 208, 224]
    k("s_mov_b32 s54, 0x3f803f80"); k("s_mov_b32 s55, 0x00003f80"); k("s_mov_b32 s56, 0x3f800000")
    for i in range(8): k(f"v_mov_b32 v{vT+i}, 0")
    vq.wait("x"); k("s_barrier")
    sp.st()
    for s in range(36):
        k(f"ds_read_b128 v[{XR+4*s}:{XR+4*s+3}], v{vXR + (s&3)} offset:{(s>>2)*1024}")
        if s >= 8:
            k("s_waitcnt lgkmcnt(8)")
            for i in range(4): k(f"v_dot2c_f32_bf16 v{vT+i}, s54, v{XR+4*(s-8)+i}")
    for s in range(28, 36):
        k(f"s_waitcnt lgkmcnt({35-s})")
        for i in range(4): k(f"v_dot2c_f32_bf16 v{vT+i}, s54, v{XR+4*s+i}")
    vq.wait("w0")
    k("s_barrier")
    for c in (2, 3): vq.emit(dma_w(c))
    k(f"v_add_f32 v{vT}, v{vT}, v{vT+1}"); k(f"v_add_f32 v{vT+2}, v{vT+2}, v{vT+3}"); k(f"v_add_f32 v{vT}, v{vT}, v{vT+2}")
    k(f"v_mov_b32 v{vT+1}, v{vT}")
    k(f"v_permlane32_swap_b32 v{vT}, v{vT+1}")
    k(f"v_add_f32 v{vT}, v{vT}, v{vT+1}")
    k(f"v_mul_f32 v{vT}, {fx(-1.0/576)}, v{vT}")
    sp.st()
    def center(s):
        out = []
        for i in range(4):
            r = XR + 4*s + i; a = vT + 8 + 2*i
            out += [f"v_dot2_f32_bf16 v{a}, v{r}, s55, v{vT}", f"v_dot2_f32_bf16 v{a+1}, v{r}, s56, v{vT}"]
        for i in range(4):
            r = XR + 4*s + i; a = vT + 8 + 2*i
            out += [f"v_cvt_pk_bf16_f32 v{r}, v{a}, v{a+1}"]
        for i in range(4):
            r = XR + 4*s + i
            out += [f"v_dot2c_f32_bf16 v{vT+4+i}, v{r}, v{r}"]
        return out
    k("s_lshl_b32 s47, s38, 1"); k("s_add_u32 s47, s47, s40")
    lv = k.label("v")
    k("s_cmp_ge_u32 s47, 9"); k(f"s_cbranch_scc1 {lv}")
    vq0 = list(vq.q)
    for isv in (0, 1):
        if isv: k.put(lv)
        vq.q = list(vq0)
        NB = 8
        mf = []
        for s in range(36):
            c = s // 4; sl = s % 4
            for i in range(4):
                o = (i >> 1)*8192 + sl*2048 + (i & 1)*512
                mf.append(dict(c=c, o=[o, o+256], s=s, acc=accs[i]))
        N = len(mf)
        fill = [[] for _ in range(N+1)]
        def spread(items, g0, g1):
            n = len(items); w = g1 - g0
            for i, it in enumerate(items): fill[g0 + (i*w)//n].append(it)
        for it in center(0): k(it)
        for s in range(35): spread(center(s+1), 4*s, 4*s+4)
        BA = 4
        bar_at = {16*c - BA - 1: c for c in range(1, 9)}
        for c in range(1, 6):
            spread(dma_w(c+3), 16*c - BA, 16*c - BA + 12)
        if mt is not None:
            for j in range(3): fill[mt[j]].append(tch[j])
        lq = []; st_ = dict(rp=0, readable=1)
        k(f"v_add_u32 v{vRd[0]}, {SLOT[0]}, v{vA}")
        def issue_reads(g, maxn):
            n = 0
            while st_["rp"] < N and st_["rp"] <= g + DEPTH and mf[st_["rp"]]["c"] < st_["readable"] and n < maxn:
                rp = st_["rp"]; m = mf[rp]; fb = 4*(rp % NB)
                for e in range(2):
                    k(f"ds_read_b64_tr_b16 a[{fb+2*e}:{fb+2*e+1}], v{vRd[m['c']%2]} offset:{m['o'][e]}"); lq.append(rp)
                st_["rp"] += 1; n += 1
        issue_reads(-1, DEPTH)
        for g in range(N):
            m = mf[g]
            if g in lq:
                idx = max(i for i, t in enumerate(lq) if t == g)
                k(f"s_waitcnt lgkmcnt({len(lq)-1-idx})"); del lq[:idx+1]
            fb = 4*(g % NB); acc = m["acc"]; xs = XR + 4*m["s"]
            C = "0" if m["s"] == 0 else f"v[{acc}:{acc+15}]"
            A_, B_ = f"a[{fb}:{fb+3}]", f"v[{xs}:{xs+3}]"
            if isv: A_, B_ = B_, A_
            k(f"v_mfma_f32_32x32x16_bf16 v[{acc}:{acc+15}], {A_}, {B_}, {C}")
            if g in bar_at:
                c = bar_at[g]
                vq.wait(f"w{c}", " lgkmcnt(0)"); lq.clear()
                k("s_barrier")
                k(f"v_add_u32 v{vRd[c%2]}, {SLOT[c%4]}, v{vA}")
                st_["readable"] = c + 1
            issue_reads(g, 2)
            for it in fill[g]: vq.emit(it)
        sp.st()
        V = vT + 4
        k(f"v_add_f32 v{V}, v{V}, v{V+1}"); k(f"v_add_f32 v{V+2}, v{V+2}, v{V+3}"); k(f"v_add_f32 v{V}, v{V}, v{V+2}")
        k(f"v_mov_b32 v{V+1}, v{V}")
        k(f"v_permlane32_swap_b32 v{V}, v{V+1}")
        k(f"v_add_f32 v{V}, v{V}, v{V+1}")
        k(f"v_mov_b32 v{V+1}, {fx(1e-5)}")
        k(f"v_fmac_f32 v{V+1}, {fx(1.0/576)}, v{V}")
        k(f"v_rsq_f32 v{V}, v{V+1}")
        k("s_lshl_b32 s48, s37, 1"); k("s_add_u32 s48, s48, s39")
        if not isv and mx:
            lm = k.label("nm")
            k("s_cmp_lg_u32 s47, 0"); k(f"s_cbranch_scc1 {lm}")
            srd(k, 32, 10, 8192, off=Z_MX)
            k("s_lshl_b32 s49, s48, 7"); k("v_and_b32 v26, 31, v2"); k("v_lshlrev_b32 v26, 2, v26"); k(f"v_mul_f32 v27, -1.0, v{vT}")
            k("buffer_store_dword v27, v26, s[32:35], s49 offen")
            k.put(lm)
        if not isv:
            k("s_mul_i32 s49, s48, 73728"); k("s_lshl_b32 s50, s47, 13"); k("s_add_u32 s49, s49, s50")
            qs = (18 ** -0.5) * math.log2(math.e)
            k(f"v_mul_f32 v{V+1}, {fx(qs)}, v{V}")
            for i in range(4):
                k("s_lshl_b32 s50, s47, 2"); k(f"s_add_u32 s50, s50, {i}"); k("s_cmp_lt_u32 s50, 18")
                k("s_cselect_b64 vcc, -1, 0")
                k(f"v_cndmask_b32 v{V+2}, v{V}, v{V+1}, vcc")
                a = accs[i]
                for r in range(16): k(f"v_mul_f32 v{a+r}, v{V+2}, v{a+r}")
                for j in range(8): k(f"v_cvt_pk_bf16_f32 v{XR+8*i+j}, v{a+2*j}, v{a+2*j+1}")
                for q in range(4):
                    k(f"buffer_store_dwordx2 v[{XR+8*i+2*q}:{XR+8*i+2*q+1}], v{vSTQ}, s[24:27], s49 offen offset:{2*q*256}")
                if i < 3: k("s_add_u32 s49, s49, 2048")
        else:
            k("v_and_b32 v26, 31, v2"); k("v_lshlrev_b32 v26, 2, v26"); k("s_lshl_b32 s50, s36, 7"); k(f"s_add_u32 s50, s50, {SPARE}")
            k("v_add_u32 v26, s50, v26")
            k(f"ds_write_b32 v26, v{V}")
            k("v_lshrrev_b32 v27, 5, v2"); k("v_lshlrev_b32 v27, 4, v27"); k("v_add_u32 v27, s50, v27")
            k("s_waitcnt lgkmcnt(0)")
            RS = XR + 64
            for q in range(4): k(f"ds_read_b128 v[{RS+4*q}:{RS+4*q+3}], v27 offset:{32*q}")
            k("s_mul_i32 s49, s48, 36864"); k("s_sub_u32 s50, s47, 9"); k("s_lshl_b32 s50, s50, 11"); k("s_add_u32 s49, s49, s50")
            k("s_add_u32 s51, s49, 18432")
            k("s_waitcnt lgkmcnt(0)")
            for i in range(4):
                if i == 2:
                    k("s_cmp_eq_u32 s47, 13"); k(f"s_cbranch_scc1 {name}_vdone")
                a = accs[i]
                for r in range(16): k(f"v_mul_f32 v{a+r}, v{RS+r}, v{a+r}")
                for j in range(8): k(f"v_cvt_pk_bf16_f32 v{XR+8*i+j}, v{a+2*j}, v{a+2*j+1}")
                k(f"buffer_store_dwordx4 v[{XR+8*i}:{XR+8*i+3}], v{vSTV}, s[28:31], s49 offen offset:{i*512}")
                k(f"buffer_store_dwordx4 v[{XR+8*i+4}:{XR+8*i+7}], v{vSTV}, s[28:31], s51 offen offset:{i*512}")
            k.put(f"{name}_vdone")
        n_save = sp.n
        sp.finish(end, 36, 2, 30, 31)
        if isv == 0:
            k("s_endpgm")
            sp.n = n_save - 1
    k.put(end); k("s_endpgm")
    if pf:
        k.put(f"{name}_pf")
        k(f"s_cmp_ge_u32 s2, 256"); k(f"s_cbranch_scc1 {end}")
        if helper: helper(k, name, end)
        else: touch_code(k, NWG, 32, pf)
    return k, (name, 256 if pf else NWG, 256, 73728 + 65536 + 1024)
```

```python
from common import *
SL = 16384
RW1 = 6*SL
CSO = RW1 + 36864
RWD = 160*1024 - 18432
W8_HX = 0x1000000
W8_HR = 0x2000000
W8_PT = 0x4000000

KAo = RW1; KBo = RW1 + 16384; VBo = RW1 + 21504
EXo = RW1; RXo = RW1 + 49152; MXo = RW1 + 57344; SQo = RW1 + 58368
RETRY = 0x1000

def gen_fz(name="fz_kernel", stamp=False, B_=2, nox=False, nodma=False, P=None, marks=None, prio=None, KA=8, hld='sc1', hst='sc1', touch=True, fillm='sc1', nofill=False, xld='sc1', ptre=False, dmam='', tchm=''):
    PG, PP_ = 16, 13
    selfill = False; spoll = False; xfill = None
    P = dict(dict(), **(P or {}))
    k = Kern(name); end = f"{name}_end"
    tl = TL2(k, stamp, 18, 100, 3)
    k(f"s_cmp_ge_u32 s2, 256"); k(f"s_cbranch_scc1 {end}")
    k("s_load_dwordx2 s[10:11], s[0:1], 72")
    k("s_load_dwordx4 s[4:7], s[0:1], 32")
    k("s_load_dwordx4 s[28:31], s[0:1], 48")
    k("s_load_dwordx2 s[96:97], s[0:1], 0")
    tl.start()
    k("v_lshrrev_b32 v1, 6, v0"); k("v_and_b32 v2, 63, v0")
    k("v_readfirstlane_b32 s36, v1")
    k("s_and_b32 s37, s2, 7")
    k("s_bfe_u32 s38, s2, 0x20003")
    k("s_lshr_b32 s3, s2, 5"); k("s_lshl_b32 s3, s3, 3"); k("s_add_u32 s39, s3, s36")
    k("s_lshl_b32 s40, s37, 2"); k("s_add_u32 s40, s40, s38")
    k("s_lshl_b32 s41, s36, 10")
    vE = [3, 5]; vO = [4, 6]; vRR = 7; vD1, vD2, vDR1, vST, vXL, vFL, vPL, vR2, vOUT, T = 8, 9, 10, 12, 13, 14, 15, 16, 19, 20
    ACC = 24; XR = 96; FR = 240; NB = 4; DEPTH = 3
    blk = lambda b, tt=0: ACC + 8*b + 4*tt
    vq = VQ(k); lq = []
    def xm(nm):
        if stamp and marks and nm in marks:
            k("s_waitcnt lgkmcnt(0)"); lq.clear(); tl.mark(nm, True)
    vKr, vKr2, vVr, vQm = 3, 4, 5, 6
    Q = 224; MP = 232; AT = 24; AF = 32; O = 64; SB = 80; XM = 28; XRS = 230; MXR = 231
    S_ = lambda t: SB + 16*t
    k("s_add_u32 s44, s39, s36"); k("s_sub_u32 s44, s44, 8")
    k("s_mul_i32 s49, s40, 9"); k("s_lshr_b32 s49, s49, 1"); k("s_lshl_b32 s49, s49, 8")
    k("s_mul_i32 s47, s39, 73728"); k("s_add_u32 s47, s47, s49")
    k(f"s_add_u32 s49, s49, {144*256}")
    k("s_max_i32 s60, s44, 0"); k("s_add_i32 s61, s44, 1"); k("s_max_i32 s61, s61, 0")
    k(f"v_lshlrev_b32 v{vST}, 4, v2")
    k("v_lshrrev_b32 v24, 4, v2"); k("v_add_u32 v24, s44, v24"); k("v_max_i32 v24, 0, v24"); k("v_mul_u32_u24 v24, 73728, v24")
    k("v_and_b32 v25, 15, v2"); k(f"v_lshl_add_u32 v30, v25, 4, v24")
    k("v_lshrrev_b32 v26, 5, v2"); k("v_and_b32 v27, 31, v2")
    k("s_mul_i32 s8, s40, 288")
    k("v_mul_u32_u24 v24, 9216, v26"); k("v_lshl_add_u32 v24, v27, 4, v24"); k(f"v_add_u32 v31, s8, v24")
    k("v_lshlrev_b32 v24, 3, v27"); k("v_lshl_add_u32 v25, v26, 8, v24")
    k("s_lshl_b32 s45, s36, 11")
    k("s_mov_b32 s58, -1"); k("s_mov_b32 s59, 0")
    k("s_waitcnt lgkmcnt(0)")
    tl.mark("t0", True)
    srd(k, 12, 10, WS_BYTES)
    for i in range(2):
        k(f"s_mul_i32 s9, s{60+i}, 73728"); k("s_add_u32 s9, s9, s49"); k(f"s_add_u32 m0, s45, {KAo + i*1024}")
        vq("k", f"buffer_load_dwordx4 v{vST}, s[12:15], s9 offen lds")
    k("s_lshl_b32 s9, s36, 9"); k(f"s_add_u32 m0, s9, {KBo}"); k("s_add_u32 s9, s49, 1024"); k("s_mov_b64 exec, s[58:59]")
    vq("k", f"buffer_load_dwordx4 v30, s[12:15], s9 offen lds")
    k("s_mov_b64 exec, -1")
    for i in range(3): vq("q", f"buffer_load_dwordx2 v[{Q+2*i}:{Q+2*i+1}], v25, s[12:15], s47 offen offset:{512*i}")
    k("s_mov_b32 s52, 0x3ffff"); k("s_mov_b32 s53, 0x3ffff"); k("s_mov_b64 exec, s[52:53]")
    k("s_lshl_b32 s8, s36, 12"); k(f"s_add_u32 s8, s8, {VBo}")
    for i in range(2):
        k(f"s_mul_i32 s9, s{60+i}, 36864"); k(f"s_add_u32 s9, s9, {WS_V:#x}")
        for u in range(2):
            k(f"s_add_u32 m0, s8, {(2*i+u)*1024}")
            if u: k("s_add_u32 s9, s9, 18432")
            vq("v", f"buffer_load_dwordx4 v31, s[12:15], s9 offen lds")
    k("s_not_b64 exec, exec")
    for i in range(4): k(f"v_mov_b32 v{AF+i}, 0x3f803f80")
    k(f"v_add_u32 v{vVr}, s8, v{vST}")
    for i in range(4): k(f"ds_write_b128 v{vVr}, v[{AF}:{AF+3}] offset:{i*1024}")
    k("s_mov_b64 exec, -1")
    srd(k, 16, 4, D*F*2); srd(k, 20, 6, D*F*2); srd(k, 24, 28, D*F*2); srd(k, 32, 30, S*D*2)
    k(f"s_mov_b32 s98, {S*D*2:#x}"); k("s_mov_b32 s99, 0x00020000")
    if touch:
        k("s_lshr_b32 s8, s2, 3"); k("s_lshl_b32 s8, s8, 3"); k("s_add_u32 s8, s8, s36")
        k("s_mul_i32 s9, s8, 911"); k("s_lshr_b32 s9, s9, 16"); k("s_mul_i32 s62, s9, 72"); k("s_sub_u32 s8, s8, s62")
        k(f"s_mul_i32 s62, s8, {8*9216}"); k("s_mul_i32 s63, s37, 1152"); k("s_add_u32 s62, s62, s63")
        k("s_mov_b32 s50, 9216"); k(f"s_mov_b32 s30, {D*F*2:#x}"); k("s_mov_b32 s31, 0x00020000")
        k("s_mul_i32 s63, s63, 576"); k(f"s_mul_i32 s54, s8, {8*1152}"); k("s_add_u32 s63, s63, s54")
        k("s_cmp_eq_u32 s9, 2"); k("s_cselect_b32 s62, s63, s62"); k("s_cselect_b32 s50, 1152, s50")
        k("s_cmp_eq_u32 s9, 0"); k("s_cselect_b32 s28, s4, s28"); k("s_cselect_b32 s29, s5, s29")
        k("s_cmp_eq_u32 s9, 1"); k("s_cselect_b32 s28, s6, s28"); k("s_cselect_b32 s29, s7, s29")
        k("s_min_u32 s8, s8, 26"); k("s_lshl_b32 s8, s8, 13"); k(f"s_mul_i32 s63, s37, {4*55296}"); k("s_add_u32 s63, s63, s8"); k(f"s_add_u32 s63, s63, {WS_WL:#x}")
        k("s_cmp_eq_u32 s9, 3"); k("s_cselect_b32 s28, s10, s28"); k("s_cselect_b32 s29, s11, s29"); k("s_cselect_b32 s62, s63, s62"); k("s_cselect_b32 s50, 1024, s50")
        k(f"s_cselect_b32 s30, {WS_BYTES:#x}, s30")
        k("v_lshrrev_b32 v30, 3, v2"); k("v_mul_lo_u32 v30, s50, v30"); k("v_and_b32 v31, 7, v2"); k("v_lshl_add_u32 v7, v31, 7, v30")
    tch = [[("vm", "tch", f"buffer_load_dword v17, v7, s[28:31], s62 offen {m}") for m in tchm.split("|")]] if touch else []
    k(f"s_add_u32 s8, s41, {KAo}"); k(f"v_add_u32 v{vKr}, s8, v25")
    k("s_lshl_b32 s8, s36, 8"); k(f"s_add_u32 s8, s8, {KBo}"); k(f"v_add_u32 v{vKr2}, s8, v24")
    k(f"s_add_u32 s8, s45, {VBo}"); k(f"v_add_u32 v{vVr}, s8, v{vST}")
    k(f"v_lshlrev_b32 v30, 2, v26"); k(f"v_sub_u32 v{vQm}, v27, v30")
    MS = 64
    for r in range(16): k(f"v_cmp_le_i32 s[{MS+2*r}:{MS+2*r+1}], {8*(r>>2)+(r&3)}, v{vQm}")
    k("v_mov_b32 v24, 0xffff")
    for j in range(8):
        k(f"v_cndmask_b32 v{MP+j}, 0, v24, s[{MS+4*j}:{MS+4*j+1}]")
        k(f"v_cndmask_b32 v{MP+j}, v{MP+j}, -1, s[{MS+4*j+2}:{MS+4*j+3}]")
    k("s_bitcmp1_b32 s40, 0")
    k("s_cselect_b32 s52, 0, -1"); k("s_mov_b32 s53, -1")
    k("s_cselect_b32 s56, -1, 0"); k("s_mov_b32 s57, 0")
    k("s_sub_i32 s54, 8, s39")
    k("s_and_b32 s8, s36, 1"); k("s_lshl_b32 s8, s8, 1"); k("s_bfe_u32 s9, s36, 0x10001"); k("s_or_b32 s8, s8, s9"); k("s_and_b32 s9, s36, 4"); k("s_or_b32 s8, s8, s9")
    k("s_lshl_b32 s42, s8, 10")
    k("s_mul_i32 s43, s36, 73728"); k("s_mul_i32 s8, s37, 1152"); k("s_add_u32 s43, s43, s8"); k("s_lshl_b32 s9, s38, 8"); k("s_add_u32 s43, s43, s9")
    k("s_mul_i32 s46, s39, 36864")
    def dlane(d):
        k("v_bfe_u32 v20, v2, 2, 3"); k("v_bfe_u32 v21, v2, 4, 1"); k("v_lshlrev_b32 v21, 1, v21"); k("v_and_b32 v22, 3, v2"); k("v_xor_b32 v21, v21, v22")
        k("v_lshlrev_b32 v21, 4, v21"); k("v_lshrrev_b32 v23, 5, v2"); k("v_lshl_add_u32 v21, v23, 6, v21")
    dlane(0)
    k(f"v_mul_u32_u24 v{vD1}, 9216, v20"); k(f"v_add_u32 v{vD1}, v{vD1}, v21")
    k("s_lshl_b32 s8, s37, 3"); k("s_lshr_b32 s9, s2, 5"); k("s_add_u32 s8, s8, s9")
    k("s_lshl_b32 s48, s8, 2"); k("s_add_u32 s48, s48, s38"); k("s_lshl_b32 s48, s48, 16"); k("s_add_u32 s48, s48, s41"); k(f"s_add_u32 s48, s48, {W8_HX:#x}")
    k("s_lshr_b32 s8, s2, 3"); k(f"s_lshl_b32 s51, s8, 19"); k("s_add_u32 s51, s51, s41"); k(f"s_add_u32 s51, s51, {W8_PT:#x}")
    k(f"s_lshl_b32 s55, s37, {PG}"); k("s_add_u32 s55, s55, s51")
    for e in range(4): k(f"v_mov_b32 v{T+e}, -1")
    k("s_add_u32 s3, s3, s37"); k("s_mul_i32 s50, s3, 36864")
    k("s_and_b32 s8, s36, 3"); k("s_mul_i32 s63, s8, 9216")
    k("s_lshl_b32 s9, s38, 2"); k("s_lshr_b32 s60, s36, 1"); k("s_add_u32 s9, s9, s60")
    k("s_mul_i32 s60, s9, 36864"); k("s_xor_b32 s9, s9, 1"); k("s_mul_i32 s61, s9, 36864")
    k(f"s_add_u32 s9, s63, {Z_WO:#x}"); k("s_add_u32 s60, s60, s9"); k("s_add_u32 s61, s61, s9")
    k("s_mul_i32 s44, s38, 37888"); k("s_add_u32 s44, s44, s9"); k(f"s_add_u32 s44, s44, {576*1024}")
    k("s_add_u32 s63, s63, s50"); k(f"s_add_u32 s63, s63, {Z_O:#x}")
    k("s_cmp_lt_u32 s36, 4"); k("s_cselect_b32 s4, 0x1ffff, 0"); k("s_mov_b32 s5, s4")
    k("s_lshl_b32 s45, s38, 3"); k("s_add_u32 s45, s45, s36")
    k("v_mul_u32_u24 v30, 1152, v27"); k("v_lshl_add_u32 v30, v26, 3, v30"); k("v_lshlrev_b32 v31, 2, v27")
    k("s_lshl_b32 s6, s45, 5"); k("s_add_u32 s6, s6, s50")
    k("s_lshl_b32 s7, s38, 5"); k("s_add_u32 s7, s7, s50"); k("s_bfe_u32 s8, s36, 0x10001"); k("s_lshl_b32 s8, s8, 4"); k("s_add_u32 s7, s7, s8")
    k("s_and_b32 s8, s36, 1"); k("s_lshl_b32 s8, s8, 2"); k("s_add_u32 s7, s7, s8")
    k("s_lshl_b32 s8, s3, 7"); k(f"s_add_u32 s8, s8, {Z_MX:#x}")
    vq("xr", f"buffer_load_dword v{XRS}, v30, s[96:99], s7 offen offset:1024")
    vq("xr", f"buffer_load_dword v{MXR}, v31, s[12:15], s8 offen")
    vq("xr", f"buffer_load_dwordx2 v[{XM}:{XM+1}], v30, s[96:99], s6 offen")
    vq("xr", f"buffer_load_dwordx2 v[{XM+2}:{XM+3}], v30, s[96:99], s6 offen offset:16")
    DSL = [6, 7, 0, 1, 2, 3, 4, 5, 6]
    DX = [(0, 0), (1, 0), (2, 0), (3, 0), None, (0, 1), (1, 1), (2, 1), (3, 1)]
    KS = [(j//2, j % 2) for j in range(12)] + [(6, 0), (7, 0), (8, 0), (6, 1), (7, 1), (8, 1)]
    def dmaC(c):
        s = (c % 6)*SL
        return [[f"s_add_u32 s9, s43, {(c % 9)*64*9216 + (c//9)*128}", f"s_add_u32 m0, s42, {s}", ("vm", f"dC{c}", f"buffer_load_dwordx4 v{vD1}, s[16:19], s9 offen {dmam} lds")],
                [f"s_add_u32 s9, s43, {(c % 9)*64*9216 + (c//9)*128}", f"s_add_u32 m0, s42, {s+8192}", ("vm", f"dC{c}", f"buffer_load_dwordx4 v{vD1}, s[20:23], s9 offen {dmam} lds")]]
    def dmaD(c):
        if c == 4: so = lambda g: [f"s_add_u32 s9, s{44+g}, {512*1152}"]
        else: so = lambda g: [f"s_add_u32 s9, s{44+g}, s{60+DX[c][0]}"] + ([f"s_add_u32 s9, s9, {64*1152}"] if DX[c][1] else [])
        return [so(g) + [f"s_add_u32 m0, s41, {DSL[c]*SL + g*8192}", ("vm", f"dD{c}", f"buffer_load_dwordx4 v{vD2}, s[24:27], s9 offen {dmam} lds")] for g in range(2)]
    def dmaR(d):
        base = RWD if d else RW1; vo = vST if d else vDR1; nj = 2 if d else 4
        def f():
            l = k.label("r2")
            k(f"s_cmp_ge_u32 s36, {nj}"); k(f"s_cbranch_scc1 {l}")
            k(f"s_add_u32 s9, s53, {36864*d + 8192*nj}"); k(f"s_add_u32 m0, s41, {base + 8192*nj}"); k(f"buffer_load_dwordx4 v{vo}, s[12:15], s9 offen lds")
            k.put(l)
        so = (lambda j: [f"s_xor_b32 s9, s54, {j << 13}", "s_add_u32 s9, s9, s52"]) if d else (lambda j: [f"s_add_u32 s9, s53, {8192*j}"])
        return [("call", f)] + [so(j) + [f"s_add_u32 m0, s41, {base + 8192*j}", ("vm", f"dR{d}", f"buffer_load_dwordx4 v{vo}, s[12:15], s9 offen lds")] for j in range(nj)]
    xr = lambda s, tt: f"v[{XR+8*s+4*tt}:{XR+8*s+4*tt+3}]"
    def xload(s, m=None):
        if m is None: m = "sc1" if s < 2 else xld
        return [[f"s_add_u32 s9, s46, {Z_HC + (s//2)*4096:#x}", ("vm", f"x{s}", f"buffer_load_dwordx4 {xr(s,tt)}, v{vXL}, s[12:15], s9 offen offset:{(s%2)*2048 + tt*256} {m}")] for tt in range(2)]
    def hload(j):
        if nox: return [["s_nop 0"]]
        c, ks = KS[j]
        so = (lambda tt: f"s_add_u32 s9, s47, {(2*ks + tt) << 13}") if c == 4 else (lambda tt: f"s_xor_b32 s9, s48, {(8*DX[c][0] + 4*DX[c][1] + 2*ks + tt) << 13:#x}")
        return [[so(tt), ("vm", f"h{j}", f"buffer_load_dwordx4 {xr(j,tt)}, v{vST}, s[12:15], s9 offen {hld}")] for tt in range(2)]
    def emit(it):
        if isinstance(it, tuple) and it[0] == "wait": vq.wait(it[1])
        elif isinstance(it, tuple) and it[0] == "call": it[1]()
        elif isinstance(it, list):
            for x in it: emit(x)
        else: vq.emit(it)
    def paddr(p):
        if ptre: return [f"s_add_u32 s9, s48, {((8-p) << 13):#x}"]
        return [f"s_xor_b32 s9, s55, {((p&7) << PG) | ((p&7) << PP_):#x}"]
    sfl = [[f"s_add_u32 s9, s48, {(4+n) << 13:#x}", ("vm", "sf", f"buffer_store_dwordx4 v[{T}:{T+3}], v{vST}, s[12:15], s9 offen {fillm}")] for n in range(4)]
    sfl += [paddr(p) + [("vm", "sf", f"buffer_store_dwordx4 v[{T}:{T+3}], v{vST}, s[12:15], s9 offen {fillm}")] for p in range(1, 9)]
    if nofill: sfl = []
    AG = [240, 244, 248, 252, Q, S_(0)+8, S_(0)+12]
    for t in range(1, 6): AG += [S_(t)+8, S_(t)+12, S_(t), S_(t)+4]
    aorder = [(n, e) for n in range(9) for e in range(3)]
    AR = {ne: AG[x] for x, ne in enumerate(aorder)}
    def aload(x):
        n, e = aorder[x]; r = AG[x]
        ad = f"s_add_u32 s9, s{(60, 61, 44)[e]}, {(n//4)*4096}"
        ld = f"buffer_load_dwordx4 v[{r}:{r+3}], v{vST}, s[12:15], s9 offen offset:{(n%4)*1024}"
        if e == 2: return [ad, "s_mov_b64 exec, s[4:5]", ld, "s_mov_b64 exec, -1"]
        return [ad, ("vm", "wo", ld)]
    tpos = P.get("tpos", None)
    tat = {}
    if touch and tpos is not None:
        nb = len(tpos); lw = 64 // nb
        for j, st in enumerate(tpos):
            m = ((1 << lw) - 1) << (lw*j)
            tat.setdefault(st, []).append([f"s_mov_b32 exec_lo, {m & 0xffffffff:#x}", f"s_mov_b32 exec_hi, {m >> 32:#x}", tch[0], "s_mov_b64 exec, -1"])
        tch = []
    bg = tch + sum([dmaC(c) for c in range(6)], [])
    npre = P.get("npre", 3)
    for x in bg[:npre]: emit(x)
    bg = bg[npre:]
    vq.wait("q")
    k(f"v_cndmask_b32 v{Q}, 0, v{Q}, s[52:53]")
    k(f"v_cndmask_b32 v{Q+4}, 0, v{Q+4}, s[58:59]")
    k(f"v_cndmask_b32 v{Q+5}, 0, v{Q+5}, s[56:57]")
    k("s_barrier")
    xm("kq")
    order = [8, 0, 1, 2, 3, 4, 5, 6, 7]
    def kread(i):
        t = order[i]; f = AF + 8*(i % 4)
        k(f"ds_read_b64 v[{f}:{f+1}], v{vKr} offset:{t*1024}")
        k(f"ds_read_b64 v[{f+2}:{f+3}], v{vKr} offset:{t*1024+512}")
        k(f"ds_read_b64 v[{f+4}:{f+5}], v{vKr2} offset:{t*256}")
    for i in range(3): kread(i)
    aool = []
    work = []
    for r in range(16): work.append((2, f"v_cndmask_b32 v{S_(8)+r}, v{S_(0)+r}, v{S_(8)+r}, s[{MS+2*r}:{MS+2*r+1}]"))
    MX = [AT, AT+1, AT+2, AT+3]
    first = [True]*4
    for i, t in enumerate(order):
        if t == 0: continue
        for j in range(8):
            c = j % 4; a = S_(t) + 2*j
            if first[c]: work.append((max(i, 1)+1, f"v_max_f32 v{MX[c]}, v{a}, v{a+1}")); first[c] = False
            else: work.append((max(i, 1)+1, f"v_max3_f32 v{MX[c]}, v{a}, v{a+1}, v{MX[c]}"))
    wp = 0
    nq = P.get("nq", 1)
    for i, t in enumerate(order):
        f = AF + 8*(i % 4)
        k(f"s_waitcnt lgkmcnt({min(2, 8 - i) * 3})")
        if t < 8:
            ln = k.label("neg"); lb = k.label("back")
            k(f"s_cmp_gt_i32 s54, {t}"); k(f"s_cbranch_scc1 {ln}")
            aool.append((ln, lb, t))
        k(f"v_mfma_f32_32x32x16_bf16 v[{S_(t)}:{S_(t)+15}], v[{f}:{f+3}], v[{Q}:{Q+3}], 0")
        k(f"v_mfma_f32_32x32x8_bf16 v[{S_(t)}:{S_(t)+15}], v[{f+4}:{f+5}], v[{Q+4}:{Q+5}], v[{S_(t)}:{S_(t)+15}]")
        if t < 8: k.put(lb)
        if i + 3 < 9: kread(i + 3)
        for x in bg[:nq]: emit(x)
        bg = bg[nq:]
        n = 0
        while wp < len(work) and work[wp][0] <= i and n < 12:
            k(work[wp][1]); wp += 1; n += 1
    vq.wait("v")
    k("s_barrier")
    pv = [(1, S_(1)), (2, S_(2)), (3, S_(3)), (4, S_(4)), (5, S_(5)), (6, S_(6)), (7, S_(7)), (8, S_(8)), (0, S_(0))]
    def vread(i):
        t = pv[i][0]; f = AF + 8*(i % 4)
        for u in range(2): k(f"ds_read_b128 v[{f+4*u}:{f+4*u+3}], v{vVr} offset:{(2*t+u)*1024}")
    for i in range(3): vread(i)
    for x in bg: emit(x)
    while wp < len(work): k(work[wp][1]); wp += 1
    k(f"v_max_f32 v{AT}, v{AT}, v{AT+1}"); k(f"v_max3_f32 v{AT}, v{AT+2}, v{AT+3}, v{AT}")
    k(f"v_mov_b32 v{AT+1}, v{AT}")
    k(f"v_permlane32_swap_b32 v{AT}, v{AT+1}")
    k(f"v_max_f32 v{AT}, v{AT}, v{AT+1}")
    xm("mx")
    def soft(t, half):
        out = []; b = S_(t) + 8*half
        for r in range(8): out.append(f"v_sub_f32 v{b+r}, v{b+r}, v{AT}")
        for r in range(8): out.append(f"v_exp_f32 v{b+r}, v{b+r}")
        for j in range(4):
            d = S_(t) + 4*half + j
            out.append(f"v_cvt_pk_bf16_f32 v{d}, v{b+2*j}, v{b+2*j+1}")
        if t == 8:
            for j in range(4):
                d = S_(t) + 4*half + j; e = S_(0) + 4*half + j
                out.append(f"v_bfi_b32 v{e}, v{MP+4*half+j}, 0, v{d}")
                out.append(f"v_and_b32 v{d}, v{MP+4*half+j}, v{d}")
        return out
    steps = [(i, u) for i in range(9) for u in range(2)]
    for x in soft(1, 0): k(x)
    ap = 0; fp = 0
    for n, (i, u) in enumerate(steps):
        t, Pr = pv[i]; f = AF + 8*(i % 4)
        if u == 0: k(f"s_waitcnt lgkmcnt({min(2, 8-i)*2})")
        nxt = steps[n+1] if n + 1 < len(steps) else None
        w = soft(pv[nxt[0]][0], nxt[1]) if (nxt is not None and pv[nxt[0]][0] != 0) else []
        for x in w[:2]: k(x)
        C = "0" if n == 0 else f"v[{O}:{O+15}]"
        k(f"v_mfma_f32_32x32x16_bf16 v[{O}:{O+15}], v[{f+4*u}:{f+4*u+3}], v[{Pr+4*u}:{Pr+4*u+3}], {C}")
        if u == 1 and i + 3 < 9: vread(i + 3)
        avail = 7 + 2*n
        vm = []
        while ap < min(avail, 27) and len(vm) < P.get("apn", 2): vm.append(aload(ap)); ap += 1
        if fp < len(sfl): vm.append(sfl[fp]); fp += 1
        vm += tat.get(n, [])
        rest = w[2:]
        for j, x in enumerate(vm):
            lo = (j*len(rest))//len(vm); hi = ((j+1)*len(rest))//len(vm)
            emit(x)
            for y in rest[lo:hi]: k(y)
        if not vm:
            for y in rest: k(y)
    assert ap == 27 and fp == len(sfl)
    k("s_lshl_b32 s8, s40, 10"); k("s_add_u32 s8, s8, s46"); k(f"s_add_u32 s8, s8, {Z_O:#x}")
    k("s_lshr_b32 s6, s40, 2"); k("s_lshl_b32 s6, s6, 9"); k("s_and_b32 s7, s40, 3"); k("s_lshl_b32 s7, s7, 2")
    k("s_add_u32 s6, s6, s7"); k("s_add_u32 s6, s6, s46"); k(f"s_add_u32 s6, s6, {Z_O + 32768:#x}")
    k(f"v_rcp_f32 v{AT}, v{O+10}")
    for r in range(10): k(f"v_mul_f32 v{O+r}, v{O+r}, v{AT}")
    for j in range(5): k(f"v_cvt_pk_bf16_f32 v{AF+j}, v{O+2*j}, v{O+2*j+1}")
    vq("os", f"buffer_store_dwordx4 v[{AF}:{AF+3}], v{vST}, s[12:15], s8 offen sc1")
    k("s_mov_b64 exec, s[58:59]")
    vq("os", f"buffer_store_dword v{AF+4}, v{vST}, s[12:15], s6 offen sc1")
    k("s_mov_b64 exec, -1")
    xm("at")
    PA = S_(6); RA = S_(8); XC = O
    BG = [40, 44, 48, 52, 56, 60, 80, 84, 232]
    vq.wait("xr")
    for j in range(4):
        k(f"v_lshlrev_b32 v{XC+2*j}, 16, v{XM+j}"); k(f"v_and_b32 v{XC+2*j+1}, 0xffff0000, v{XM+j}")
    for j in range(8): k(f"v_mov_b32 v{XC+8+j}, 0")
    vEW = 24
    k("s_lshl_b32 s8, s36, 11"); k(f"s_add_u32 s8, s8, {EXo}"); k(f"v_add_u32 v{vEW}, s8, v{vST}")
    for p_ in range(1, 4): k(f"v_xor_b32 v{vEW+p_}, {p_*2048}, v{vEW}")
    k("v_and_b32 v29, 31, v2"); k("v_lshlrev_b32 v29, 4, v29"); k(f"v_add_u32 v29, {MXo}, v29")
    k("s_and_b32 s8, s36, 3"); k("s_lshl_b32 s9, s8, 2"); k("v_add_u32 v30, s9, v29")
    k("s_lshr_b32 s9, s8, 1"); k("s_lshl_b32 s9, s9, 10"); k("s_and_b32 s8, s8, 1"); k("s_lshl_b32 s8, s8, 3"); k("s_add_u32 s8, s8, s9"); k(f"s_add_u32 s8, s8, {RXo}")
    k(f"v_add_u32 v28, s8, v{vST}")
    dlane(0)
    k("s_and_b32 s8, s37, 3"); k("s_lshl_b32 s8, s8, 5"); k("v_xor_b32 v21, s8, v21")
    k(f"v_mul_u32_u24 v{vD2}, 1152, v20"); k(f"v_add_u32 v{vD2}, v{vD2}, v21")
    k("v_bfe_u32 v0, v2, 4, 1"); k("v_and_b32 v1, 15, v2")
    k("v_lshlrev_b32 v21, 4, v1"); k("v_lshl_add_u32 v21, v0, 9, v21"); k(f"v_lshl_add_u32 v{vDR1}, v23, 8, v21"); k(f"v_lshl_add_u32 v{vXL}, v23, 10, v21")
    k("v_lshlrev_b32 v22, 3, v22")
    k("v_lshl_add_u32 v21, v20, 6, v22"); k("v_lshl_add_u32 v21, v23, 10, v21"); k(f"v_lshl_add_u32 v{vE[0]}, v0, 5, v21"); k(f"v_xor_b32 v{vO[0]}, 32, v{vE[0]}")
    k(f"v_add_u32 v{vE[1]}, 0x10000, v{vE[0]}"); k(f"v_add_u32 v{vO[1]}, 0x10000, v{vO[0]}")
    k("v_lshl_add_u32 v21, v20, 5, v22"); k("v_lshl_add_u32 v21, v23, 8, v21"); k(f"v_add_u32 v{vRR}, {RW1}, v21")
    k(f"v_and_b32 v{vFL}, 3, v2"); k(f"v_lshlrev_b32 v{vFL}, 2, v{vFL}")
    k("v_lshl_add_u32 v11, v23, 4, v1"); k("v_lshlrev_b32 v11, 2, v11")
    k("v_and_b32 v19, 31, v2"); k("v_lshlrev_b32 v19, 10, v19")
    k("s_mul_i32 s53, s40, 55296"); k(f"s_add_u32 s53, s53, {WS_WL:#x}"); k("s_add_u32 s52, s53, 36864"); k("s_add_u32 s53, s53, s41")
    k("s_lshl_b32 s54, s38, 12"); k("s_xor_b32 s54, s54, s41")
    k("s_lshl_b32 s8, s37, 3"); k("s_lshr_b32 s9, s2, 5"); k("s_add_u32 s8, s8, s9")
    k("s_lshl_b32 s47, s8, 15"); k("s_add_u32 s47, s47, s41"); k(f"s_add_u32 s47, s47, {W8_HR:#x}")
    k("s_lshl_b32 s8, s37, 6"); k("s_add_u32 s8, s8, s39"); k(f"s_lshl_b32 s49, s8, 7"); k(f"s_add_u32 s49, s49, {Z_FLAG:#x}")
    k("s_mov_b32 s56, 15"); k("s_mov_b32 s57, 0")
    k("s_lshl_b32 s6, s45, 10"); k("s_add_u32 s6, s6, s50"); k(f"s_add_u32 s6, s6, {Z_HC:#x}")
    k(f"s_mov_b32 s7, {RETRY}")
    k("s_barrier")
    k("s_waitcnt vmcnt(0)")
    xm("oa")
    lcp1 = k.label("cp1"); lpj = k.label("pj")
    k("s_cmp_ge_u32 s36, 4"); k(f"s_cbranch_scc1 {lcp1}")
    for cp in range(2):
        if cp: k.put(lcp1)
        lr = k.label("pr"); lo = k.label("po"); k.put(lr)
        for n in range(9):
            if n % 4 == 0: k(f"s_add_u32 s9, s63, {(n//4)*4096}")
            k(f"buffer_load_dwordx4 v[{BG[n]}:{BG[n]+3}], v{vST}, s[12:15], s9 offen offset:{(n%4)*1024} sc1")
        for n in range(9):
            k(f"s_waitcnt vmcnt({8-n})")
            for e in range(3 - cp):
                d = (PA, PA+16, RA)[e]; a = AR[(n, e)]
                C = f"v[{d}:{d+15}]" if n else (f"v[{XC}:{XC+15}]" if e == 0 else "0")
                k(f"v_mfma_f32_32x32x16_bf16 v[{d}:{d+15}], v[{a}:{a+3}], v[{BG[n]}:{BG[n]+3}], {C}")
        for j in range(6): k(f"ds_write_b128 v{vEW}, v[{PA+8+4*j}:{PA+11+4*j}] offset:{(j//2)*16384 + (j%2)*1024}")
        k(f"v_cmp_u_f32 vcc, v{PA+8}, v{PA+8}")
        if cp == 0:
            for j in range(2): k(f"ds_write_b128 v{vEW}, v[{RA+4*j}:{RA+4*j+3}] offset:{RXo-EXo + j*1024}")
            k("s_mov_b64 exec, s[58:59]")
            k(f"ds_write_b32 v30, v{RA+8}")
            k("s_mov_b64 exec, -1")
        k(f"s_cbranch_vccz {lpj}")
        k("s_sub_u32 s7, s7, 1"); k(f"s_cbranch_scc0 {lr}")
        if cp == 0: k(f"s_branch {lpj}")
    k.put(lpj)
    xm("pm")
    k("s_waitcnt lgkmcnt(0)"); k("s_barrier")
    ER = 40
    k(f"ds_read_b128 v[{ER-4}:{ER-1}], v29")
    for j in range(6): k(f"ds_read_b128 v[{ER+4*j}:{ER+4*j+3}], v{vEW+1+j//2} offset:{(j//2)*16384 + (j%2)*1024}")
    k("s_waitcnt lgkmcnt(6)")
    k(f"v_add_f32 v{ER-4}, v{ER-4}, v{ER-3}"); k(f"v_add_f32 v{ER-2}, v{ER-2}, v{ER-1}"); k(f"v_add_f32 v{ER-4}, v{ER-4}, v{ER-2}"); k(f"v_add_f32 v{MXR}, v{MXR}, v{ER-4}")
    for e in range(8): k(f"v_sub_f32 v{PA+e}, v{PA+e}, v{MXR}")
    for j in range(6):
        k(f"s_waitcnt lgkmcnt({5-j})")
        for e in range(4): k(f"v_add_f32 v{PA+4*(j%2)+e}, v{PA+4*(j%2)+e}, v{ER+4*j+e}")
    for e in range(4): k(f"v_cvt_pk_bf16_f32 v{ER-4+e}, v{PA+2*e}, v{PA+2*e+1}")
    k(f"buffer_store_dwordx4 v[{ER-4}:{ER-1}], v{vST}, s[12:15], s6 offen sc1")
    k(f"v_mul_f32 v32, v{PA}, v{PA}"); k(f"v_mul_f32 v33, v{PA+1}, v{PA+1}")
    for e in range(2, 8): k(f"v_fmac_f32 v{32+e%2}, v{PA+e}, v{PA+e}")
    lnr = k.label("nr"); lnm = k.label("nm")
    k("s_cmp_lt_u32 s36, 4"); k(f"s_cbranch_scc1 {lnr}")
    for j in range(4): k(f"ds_read_b64 v[{ER+2*j}:{ER+2*j+1}], v28 offset:{j*2048}")
    k(f"v_lshlrev_b32 v0, 16, v{XRS}"); k(f"v_and_b32 v1, 0xffff0000, v{XRS}")
    k(f"v_sub_f32 v0, v0, v{MXR}"); k(f"v_sub_f32 v1, v1, v{MXR}")
    k("s_lshl_b32 s8, s38, 10"); k("s_add_u32 s8, s8, s50"); k("s_and_b32 s9, s36, 3"); k("s_lshl_b32 s9, s9, 2"); k("s_add_u32 s8, s8, s9"); k(f"s_add_u32 s8, s8, {Z_HC + 32768:#x}")
    for j in range(4):
        k(f"s_waitcnt lgkmcnt({3-j})")
        k(f"v_add_f32 v0, v0, v{ER+2*j}"); k(f"v_add_f32 v1, v1, v{ER+2*j+1}")
    k("v_cvt_pk_bf16_f32 v34, v0, v1")
    k(f"buffer_store_dword v34, v{vST}, s[12:15], s8 offen sc1")
    k("v_fmac_f32 v32, v0, v0"); k("v_fmac_f32 v33, v1, v1")
    k(f"s_branch {lnm}")
    k.put(lnr)
    k("s_cmp_lg_u32 s45, 0"); k(f"s_cbranch_scc1 {lnm}")
    k("s_lshl_b32 s8, s3, 7"); k(f"s_add_u32 s8, s8, {Z_MN:#x}"); k("v_and_b32 v0, 31, v2"); k("v_lshlrev_b32 v0, 2, v0"); k(f"v_mov_b32 v1, v{MXR}")
    k(f"buffer_store_dword v1, v0, s[12:15], s8 offen sc1")
    k.put(lnm)
    k("v_add_f32 v32, v32, v33"); k("s_lshl_b32 s8, s36, 8"); k(f"s_add_u32 s8, s8, {SQo}"); k("v_lshl_add_u32 v33, v2, 2, s8")
    k("ds_write_b32 v33, v32")
    k("s_lshl_b32 s59, s3, 9"); k("s_lshl_b32 s8, s38, 2"); k("s_add_u32 s59, s59, s8"); k(f"s_add_u32 s59, s59, {Z_SQ:#x}")
    xm("hs")
    k("s_mul_i32 s8, s37, 576"); k("s_lshl_b32 s9, s36, 3"); k("s_add_u32 s9, s9, s8"); k("s_mul_i32 s9, s9, 1152"); k("s_lshl_b32 s3, s38, 8"); k("s_add_u32 s9, s9, s3")
    k("s_lshr_b32 s3, s37, 2"); k("s_lshl_b32 s3, s3, 7"); k("s_add_u32 s44, s9, s3"); k("s_xor_b32 s3, s3, 128"); k("s_add_u32 s45, s9, s3")
    for x in range(4): k(f"s_xor_b32 s9, s38, {x}"); k(f"s_mul_i32 s{60+x}, s9, {128*1152}")
    k("s_lshl_b32 s8, s38, 2"); k("s_add_u32 s50, s49, s8")
    k("s_cmp_eq_u32 s36, s37"); k("s_cselect_b32 s58, 1.0, 0")
    k(f"s_add_u32 s8, s46, {Z_HC:#x}")
    k(f"s_mov_b32 s7, {RETRY}")
    k("s_waitcnt vmcnt(0)")
    xm("ha")
    vq.q = []
    lh = k.label("hint"); lho = k.label("hok"); k.put(lh)
    vq("hint", f"buffer_load_dword v{vPL}, v19, s[12:15], s8 offen offset:1020 sc1")
    emit(xload(0)); emit(xload(1))
    k("s_sub_u32 s7, s7, 1"); k(f"s_cbranch_scc1 {lho}")
    vq.wait("hint")
    k(f"v_cmp_eq_u32 vcc, -1, v{vPL}")
    k("s_nop 1")
    k(f"s_cbranch_vccnz {lh}")
    k.put(lho)
    xm("hv")
    NX0 = P.get("nx0", 3)
    for s in range(2, NX0): emit(xload(s))
    ool = []
    def publish(stage, tags, tn=None):
        def f():
            xm(f"p{stage}a")
            k(f"s_waitcnt vmcnt({min(vq.n(t) for t in tags)})")
            xm(f"p{stage}b")
            k(f"v_mov_b32 v1, {stage}")
            k("s_mov_b64 exec, 1")
            if spoll: k(f"s_add_u32 s9, s50, {stage << 16:#x}")
            vq("fl", f"buffer_store_dword v1, off, s[12:15], {'s9' if spoll else 's50'} sc1")
            k("s_mov_b64 exec, -1")
        return ("call", f)
    def poll_issue(n):
        if spoll: return [f"s_add_u32 s68, s49, {n << 16:#x}", "s_buffer_load_dwordx4 s[64:67], s[12:15], s68"]
        return ("vm", f"poll{n}", f"buffer_load_dword v{vPL}, v{vFL}, s[12:15], s49 offen sc1")
    def ptest(stage, lab):
        k(f"v_cmp_gt_u32 vcc, {stage}, v{vPL}"); k(f"s_and_b64 vcc, vcc, s[56:57]"); k(f"s_cbranch_scc1 {lab}")
        if stage == 3 and selfill:
            k(f"v_cmp_gt_u32 vcc, 2, v{vPL}"); k(f"s_and_b64 vcc, vcc, s[58:59]"); k(f"s_cbranch_scc1 {lab}")
    def poll_check(stage):
        def f():
            xm(f"c{stage}a")
            if spoll: k("s_waitcnt lgkmcnt(0)"); lq.clear()
            else: vq.wait(f"poll{stage}")
            xm(f"c{stage}b")
            ls = k.label("spin"); lb = k.label("go")
            if spoll:
                k("s_and_b64 s[64:65], s[64:65], s[66:67]"); k("s_and_b32 s64, s64, s65"); k(f"s_cbranch_scc0 {ls}")
            else: ptest(stage, ls)
            k.put(lb); ool.append((ls, lb, stage))
            xm(f"c{stage}c")
        return ("call", f)
    fr = []
    def ard(slot, grp, t, ks):
        o = slot*SL + grp*8192 + 4*ks*1024 + (t >> 1)*512
        v = (vO if t & 1 else vE)[o >> 16]
        return [(v, o & 0xffff), (v, (o & 0xffff) + 2048)]
    GRP = [[0, 1, 2], [3, 4, 5], [6, 7, 8], [9, 10, 11], [12, 13, 14], [15, 16, 17]]
    km = lambda cc: [(c, t, ks, m) for c in cc for ks in range(2) for t in range(4) for m in range(2)]
    pm = lambda cc, o=(0, 1): [(c, t, ks, m) for pr in o for c in cc for ks in range(2) for t in (2*pr, 2*pr+1) for m in range(2)]
    for G in GRP:
        seq = {6: km([6, 7]) + pm([8]), 9: pm([9], (1, 0)) + km([10, 11]), 15: pm(G)}.get(G[0], km(G))
        for c, t, ks, m in seq:
            q = c % 9
            s = 2*q + ks
            fr.append(dict(c=f"C{G[0]}", rd=ard(c % 6, m, t, ks), mm=[(blk(2*t+m, tt), xr(s, tt), s == 0) for tt in range(2)]))
        if G[0] == 6:
            for s in range(18):
                for m in range(2):
                    o = m*18432 + s*1024
                    fr.append(dict(c="RP", rd=[(vRR, o), (vRR, o+512)], mm=[(blk(2+m, tt), xr(s, tt), s == 0) for tt in range(2)]))
    def dfrag(p, j, cn):
        c, ks = KS[j]
        if p == 8:
            q = 16 + ks if c == 4 else 2*(2*DX[c][0] + DX[c][1]) + ks
            o = RWD - RW1 + q*1024; rd = [(vRR, o), (vRR, o+512)]
        else: rd = ard(DSL[c], p >> 2, p & 3, ks)
        fr.append(dict(c=cn, rd=rd, mm=[(blk(p, tt), xr(j, tt), j == 0 and p not in (0, 8)) for tt in range(2)], need=(f"h{j}" if c != 5 else None)))
    for ps in ((8, 0, 1, 2, 3), (4, 5, 6, 7)):
        for j in range(2):
            for p in ps: dfrag(p, j, "D0")
    for j in range(2, KA):
        for p in range(8, 0, -1): dfrag(p, j, "D1")
    for p in range(8, 0, -1):
        for j in range(KA, 18): dfrag(p, j, f"B{p}")
    for j in range(2, 18): dfrag(0, j, "G")
    N = len(fr)
    cs_ = {}; order = []
    for g, e in enumerate(fr):
        if e["c"] not in cs_: cs_[e["c"]] = g; order.append(e["c"])
    cs_["END"] = N; order.append("END")
    def at(c, frac=0.0):
        a = cs_[c]; b = cs_[order[order.index(c)+1]]
        return a + int(frac*(b - a))
    fill = [[] for _ in range(N + 1)]
    def spread(items, g0, g1):
        n = len(items); w = g1 - g0
        for i, it in enumerate(items): fill[g0 + (i*w)//n].append(it)
    bars = {f"C{G[0]}": ([f"dC{G[-1]}"] if G[0] >= 6 else []) for G in GRP}
    bars.update({"RP": ["dR0"], "D0": ["dD1", "dR1"], "D1": ["dD4"], "B8": ["dD8"]})
    bar_at = {cs_[c] - B_ - 1: c for c in bars if cs_[c] > 0}
    ab = lambda c: cs_[c] - B_
    def hdst(pr, n, tt): return blk(4*pr, tt) if n == 0 else XR + 8*(10+pr) + 4*tt
    def hcalc(pr, n, tt):
        ga, ua, gb, ub = blk(4*pr, tt), blk(4*pr+1, tt), blk(4*pr+2, tt), blk(4*pr+3, tt); d = hdst(pr, n, tt)
        out = [f"v_mul_f32 v{ua+e}, v{ua+e}, v{ga+e}" for e in range(4)] + [f"v_mul_f32 v{ub+e}, v{ub+e}, v{gb+e}" for e in range(4)]
        return out + [f"v_cvt_pk_bf16_f32 v{d+e}, v{(ua, ub)[e//2]+2*(e%2)}, v{(ua, ub)[e//2]+2*(e%2)+1}" for e in range(4)]
    def hstore(pr, n, tt):
        d = hdst(pr, n, tt)
        return [f"s_add_u32 s9, s48, {(n*4+pr*2+tt) << 13:#x}", ("vm", f"hs{n}{pr}", f"buffer_store_dwordx4 v[{d}:{d+3}], v{vST}, s[12:15], s9 offen {hst}")]
    def hcalcR():
        g, u = blk(2), blk(3)
        out = [f"v_mul_f32 v{u+e}, v{u+e}, v{g+e}" for e in range(8)] + [f"v_cvt_pk_bf16_f32 v{g+e}, v{u+2*e}, v{u+2*e+1}" for e in range(4)]
        out.append(["s_lshl_b32 s9, s38, 13", "s_add_u32 s9, s9, s47", ("vm", "hsR", f"buffer_store_dwordx4 v[{g}:{g+3}], v{vST}, s[12:15], s9 offen {hst}")])
        return out
    def psend(p):
        a = blk(p)
        return [f"v_cvt_pk_bf16_f32 v{a+e}, v{a+2*e}, v{a+2*e+1}" for e in range(4)] + \
               [paddr(p) + [("vm", f"ps{p}", f"buffer_store_dwordx4 v[{a}:{a+3}], v{vST}, s[12:15], s9 offen sc1")]]
    spread(sum([xload(s) for s in range(NX0, 18)], []), 0, P.get("xend", 100))
    if P.get("dsch", 1) == 0:
        spread(dmaC(6) + dmaC(7) + dmaC(8) + dmaR(0), ab("C3"), at("C3", .8))
        spread(dmaC(9) + dmaC(10) + dmaC(11), ab("C6"), at("C6", .6))
        spread(dmaC(12) + dmaC(13) + dmaC(14), ab("RP"), at("RP", .9))
        spread(dmaD(0) + dmaD(1) + dmaR(1), ab("C9"), at("C9", .8))
    else:
        spread(dmaC(6) + dmaC(7) + dmaC(8), ab("C3"), at("C3", P.get("d6", .6)))
        spread(dmaR(0), at("C6") + P.get("r0", -10), at("C6") + P.get("r0", -10) + 20)
        spread(dmaC(9) + dmaC(10) + dmaC(11), at("C6", .3), at("C6", .95))
        spread(dmaC(12) + dmaC(13) + dmaC(14), ab("RP"), at("RP", .9))
        spread(dmaD(0) + dmaD(1) + dmaR(1), ab("C9"), at("C9", .8))
    spread(dmaC(15) + dmaC(16) + dmaC(17), ab("C12"), at("C12", .6))
    spread(dmaD(2) + dmaD(3) + dmaD(4), ab("C15"), at("C15", .6))
    spread(dmaD(5) + dmaD(6) + dmaD(7), ab("D0") + 8, ab("D0") + 30)
    spread(dmaD(8), ab("D0") + 30, ab("D0") + 36)
    RP, C9, D0 = at("RP"), at("C9"), at("D0")
    spread(hcalc(0, 0, 0) + hcalc(0, 0, 1), RP - 7, RP)
    spread(hcalc(1, 0, 0) + hcalc(1, 0, 1), RP + 1, RP + 12)
    for n, (pr, tt) in enumerate(((0, 0), (0, 1), (1, 0), (1, 1))): fill[RP - 2 + 11*n].append(hstore(pr, 0, tt))
    spread(hcalcR(), C9 + 1, C9 + 8)
    spread(hcalc(0, 1, 0) + [hstore(0, 1, 0)] + hcalc(0, 1, 1), D0 - 25, D0 - 13); fill[D0 - 10].append(hstore(0, 1, 1))
    spread(hcalc(1, 1, 0) + [hstore(1, 1, 0)] + hcalc(1, 1, 1) + [hstore(1, 1, 1)], D0 + 1, D0 + 10)
    if not nox:
        fill[C9 + 26].append(publish(1, ["hsR"]))
        fill[C9 + 38].append(poll_issue(1)); fill[C9 + 48].append(poll_check(1))
        spread(sum([hload(j) for j in range(10)], []), C9 + 49, D0 - P.get("h10", 20))
        spread(sum([hload(j) for j in range(12, 15)], []), D0 + P.get("hb0", 14), D0 + P.get("hb0", 14) + 12)
        spread(sum([hload(j) for j in range(15, 18)], []), D0 + P.get("hb1", 44), D0 + P.get("hb1", 44) + 12)
    sw = [("wait", "h9")] if not nox else []
    for j in (8, 9): sw += [f"v_swap_b32 v{XR+8*j+2+e}, v{XR+8*j+4+e}" for e in range(2)]
    spread(sw, D0 + 12, D0 + 16)
    SUM = XR; XT = XR + 8; HR = 8
    ool2 = []
    def em(tag, text, track):
        if track: vq(tag, text)
        else: k(text)
    def maxchain(regs):
        o = [f"v_max_u32 v{vPL}, v{regs[0]}, v{regs[1]}"]
        for i in range(2, len(regs), 2): o.append(f"v_max3_u32 v{vPL}, v{regs[i]}, v{regs[i+1]}, v{vPL}")
        return o
    def scheck(regs, loader):
        def f():
            ls = k.label("retry"); lb = k.label("ok")
            k(f"v_cmp_eq_u32 vcc, -1, v{vPL}"); k(f"s_cbranch_vccnz {ls}"); k.put(lb)
            ool2.append((ls, lb, regs, loader))
        return maxchain(regs) + [("call", f)]
    def xrl(s):
        def f(track=False):
            for so, (_, _, tx) in xload(s, 'sc1'): k(so); k(tx)
        return f
    def xcheck(s): return [("wait", f"x{s}")] + scheck(list(range(XR+8*s, XR+8*s+8)), xrl(s))
    CW = P.get("cw", 3)
    for s in range(1, 18):
        g = 8*s if s < 16 else 128 - (17 - s)*CW
        spread(xcheck(s), g - CW, g)
    B8 = blk(8)
    def sqred():
        l = k.label("nq"); k(f"s_cmp_lg_u32 s36, {P.get('sqw', 0)}"); k(f"s_cbranch_scc1 {l}")
        k(f"v_lshlrev_b32 v0, 2, v2"); k(f"v_add_u32 v0, {SQo}, v0")
        for j in range(4): k(f"ds_read2st64_b32 v[{B8+2*j}:{B8+2*j+1}], v0 offset0:{2*j} offset1:{2*j+1}")
        k("s_waitcnt lgkmcnt(0)")
        for st in (4, 2, 1):
            for j in range(st): k(f"v_add_f32 v{B8+j}, v{B8+j}, v{B8+j+st}")
        k(f"v_mov_b32 v{B8+1}, v{B8}"); k(f"v_permlane32_swap_b32 v{B8}, v{B8+1}"); k(f"v_add_f32 v{B8}, v{B8}, v{B8+1}")
        k("s_mov_b32 exec_hi, 0")
        k(f"buffer_store_dword v{B8}, v{vST}, s[12:15], s59 offen sc1")
        k("s_mov_b32 exec_hi, -1")
        k.put(l)
    fill[ab("C3") + 1].append(("call", sqred))
    def mload(track=True):
        k("s_lshl_b32 s9, s39, 7"); k(f"s_add_u32 s9, s9, {Z_MN:#x}")
        em("mn", f"buffer_load_dword v{T}, v11, s[12:15], s9 offen sc1", track)
        k("s_lshl_b32 s9, s39, 9"); k(f"s_add_u32 s9, s9, {Z_SQ:#x}"); k("v_lshlrev_b32 v0, 2, v11")
        em("mn", f"buffer_load_dwordx4 v[{B8}:{B8+3}], v0, s[12:15], s9 offen sc1", track)
    fill[RP + 2].append(("call", mload))
    a_, b_ = B8, B8+1
    stt = [[("wait", "mn")] + scheck([T, T, B8, B8+1, B8+2, B8+3], mload), f"v_add_f32 v{a_}, v{a_}, v{b_}", f"v_add_f32 v{B8+2}, v{B8+2}, v{B8+3}",
           f"v_add_f32 v{a_}, v{a_}, v{B8+2}", f"v_mov_b32 v{b_}, {fx(1e-5)}", f"v_fmac_f32 v{b_}, {fx(1.0/576)}, v{a_}", f"v_rcp_f32 v{vR2}, v{b_}",
           f"v_mul_f32 v{T}, v{T}, v{b_}", f"v_mov_b32 v{vR2+1}, v{vR2}", f"v_mov_b32 v{T+1}, v{T}",
           f"v_permlane32_swap_b32 v{vR2}, v{vR2+1}", f"v_permlane32_swap_b32 v{T}, v{T+1}"]
    spread(stt, C9 + 50, C9 + 64)
    spread([f"v_mul_f32 v{blk(8,tt)+e}, s58, v{T+tt}" for tt in range(2) for e in range(4)], C9 + 66, C9 + 76)
    spread([f"v_mov_b32 v{blk(0,tt)+e}, v{T+tt}" for tt in range(2) for e in range(4)], D0 - 9, D0 - 2)
    def hbl(j0):
        def f(track=False):
            for j in range(j0, j0+3):
                for so, (_, _, tx) in hload(j): k(so); k(tx)
        return f
    if not nox:
        for j0 in (12, 15):
            gu = at("B8") + j0 - KA
            ck = scheck(list(range(XR+8*j0, XR+8*j0+24)), hbl(j0))
            if j0 == 12: fill[gu - 3].append([("call", lambda: xm("k0a")), ("wait", f"h{j0+2}"), ("call", lambda: xm("k0b"))] + ck + [("call", lambda: xm("k0c"))])
            else: fill[gu - 1].append([("call", lambda: xm("k1a")), ("wait", f"h{j0+2}"), ("call", lambda: xm("k1b"))] + ck + [("call", lambda: xm("k1c"))])
    def prload(p):
        def f(track=True):
            k(f"s_xor_b32 s9, s48, {(p << 21) | ((8-p) << 13):#x}" if ptre else f"s_add_u32 s9, s55, {p << PP_:#x}")
            em(f"pr{p}", f"buffer_load_dwordx4 v[{blk(p,1)}:{blk(p,1)+3}], v{vST}, s[12:15], s9 offen sc1", track)
        return f
    def pradd(p):
        r = blk(p, 1); o = [[("wait", f"pr{p}")] + scheck([r+e for e in range(4)], prload(p))]
        for e in range(4):
            if p == 7: o += [f"v_lshlrev_b32 v{SUM+2*e}, 16, v{r+e}", f"v_and_b32 v{SUM+2*e+1}, 0xffff0000, v{r+e}"]
            else: o += [[f"v_lshlrev_b32 v{e%2}, 16, v{r+e}", f"v_and_b32 v{r+e}, 0xffff0000, v{r+e}", f"v_add_f32 v{SUM+2*e}, v{SUM+2*e}, v{e%2}"], f"v_add_f32 v{SUM+2*e+1}, v{SUM+2*e+1}, v{r+e}"]
        return o
    fill[at("B8") - 4] += [
                       "v_and_b32 v0, 15, v2", f"v_mul_u32_u24 v{vOUT}, 1152, v0", "v_lshrrev_b32 v1, 4, v2", f"v_lshl_add_u32 v{vOUT}, v1, 3, v{vOUT}",
                       f"v_and_b32 v{vXL}, 0x3ff, v{vXL}", "v_lshrrev_b32 v1, 5, v2", f"v_lshl_add_u32 v{vXL}, v1, 3, v{vXL}"]
    nm = [f"B{p}" for p in range(8, 0, -1)] + ["G"]
    for n, p in enumerate(range(8, 0, -1)): spread(psend(p), at(nm[n+1]) + 1, at(nm[n+1]) + 4)
    LDL = P.get("ldl", 20); ADL = P.get("adl", 10)
    tail = []
    if not nox:
        for p in range(7, 0, -1):
            gs = at(nm[8-p+1]) + 4
            gl = min(gs + LDL, N - P.get("lastld", 8) + (0 if p > 1 else 0))
            fill[gl].append(("call", prload(p)))
            ga = gl + ADL
            if ga + 6 <= N: spread(pradd(p), ga, ga + 6)
            else: tail += pradd(p)
    def hres(rt):
        def f():
            if rt: k("s_add_u32 s9, s38, 32")
            else: k("s_lshl_b32 s9, s38, 3"); k("s_add_u32 s9, s9, s37")
            k("s_lshl_b32 s3, s9, 5"); k("s_add_u32 s3, s3, s46")
            k("s_lshl_b32 s9, s9, 10"); k("s_add_u32 s9, s9, s46"); k(f"s_add_u32 s9, s9, {Z_HC:#x}")
            for tt in range(2): em("hr", f"buffer_load_dwordx2 v[{HR+2*tt}:{HR+2*tt+1}], v{vXL}, s[12:15], s9 offen offset:{tt*256} sc1", not rt)
        return f
    def fin(src, tt, so):
        o = []
        for e in range(2):
            h = HR + 2*tt + e
            o += [f"v_lshlrev_b32 v0, 16, v{h}", f"v_and_b32 v1, 0xffff0000, v{h}",
                  f"v_fma_f32 v{src+2*e}, v{src+2*e}, v{vR2+tt}, v0", f"v_fma_f32 v{src+2*e+1}, v{src+2*e+1}, v{vR2+tt}, v1",
                  f"v_cvt_pk_bf16_f32 v{h}, v{src+2*e}, v{src+2*e+1}"]
        if tt: o.append(f"s_add_u32 {so}, {so}, {16*1152}")
        o.append(f"buffer_store_dwordx2 v[{HR+2*tt}:{HR+2*tt+1}], v{vOUT}, s[32:35], {so} offen")
        return o
    RB = [blk(8), blk(8, 1), blk(7), blk(6), blk(5), blk(4), XT, XT+4]
    def rloads(track=False):
        for g in range(8):
            k(f"s_xor_b32 s9, s48, {g << 21:#x}" if ptre else f"s_add_u32 s9, s51, {g << PG:#x}"); k(f"buffer_load_dwordx4 v[{RB[g]}:{RB[g]+3}], v{vST}, s[12:15], s9 offen sc1")
    def rblock1():
        l = k.label("nr"); k("s_cmp_lg_u32 s36, s37"); k(f"s_cbranch_scc1 {l}")
        hres(True)(); k("s_mov_b32 s6, s3"); rloads(); k.put(l)
        vq("rmark", f"buffer_load_dword v{T+3}, v{vFL}, s[12:15], s49 offen")
    def rblock2():
        l = k.label("nr"); k("s_cmp_lg_u32 s36, s37"); k(f"s_cbranch_scc1 {l}")
        vq.wait("rmark")
        emit(scheck([r+e for r in RB for e in range(4)], rloads))
        for tt in range(2):
            for g in range(8):
                for e in range(2):
                    r = RB[g] + 2*tt + e
                    if g == 0: k(f"v_lshlrev_b32 v{T+2*e}, 16, v{r}"); k(f"v_and_b32 v{T+2*e+1}, 0xffff0000, v{r}")
                    else:
                        k(f"v_lshlrev_b32 v{e}, 16, v{r}"); k(f"v_and_b32 v{r}, 0xffff0000, v{r}")
                        k(f"v_add_f32 v{T+2*e}, v{T+2*e}, v{e}"); k(f"v_add_f32 v{T+2*e+1}, v{T+2*e+1}, v{r}")
            for x in fin(T, tt, "s6"): k(x)
        k.put(l)
    if not nox:
        fill[at("B3") + 5].append(("call", rblock1))
        fill[at("B1") + 0].append(("call", rblock2))
    fill[at("B1") + 6].append(("call", hres(False)))
    for x in nm: fill[at(x)].append(("call", (lambda x=x: xm("s" + x))))
    st_ = dict(rp=0, half=0, readable=0); waited = set()
    def barrier(c):
        mk = stamp and (marks is None or c in marks)
        if bars[c]: k(f"s_waitcnt vmcnt({min(vq.n(t) for t in bars[c])})")
        if mk: k("s_waitcnt lgkmcnt(0)"); lq.clear()
        if c != "C0": k("s_barrier")
        nxt = [x for x in order[order.index(c)+1:] if x in bars or x == "END"][0]
        st_["readable"] = cs_[nxt]
        if mk: tl.mark(c, True)
    def issue_read(g, maxn):
        n = 0
        while st_["rp"] < N and st_["rp"] <= g + DEPTH and st_["rp"] < st_["readable"] and n < maxn:
            rp = st_["rp"]; m = fr[rp]; fb = FR + 4*(rp % NB)
            if True:
                e = st_["half"]; v, o = m["rd"][e]
                k(f"ds_read_b64_tr_b16 v[{fb+2*e}:{fb+2*e+1}], v{v} offset:{o}"); lq.append(rp)
                st_["half"] ^= 1
                if e: st_["rp"] += 1
            n += 1
    barrier("C0")
    issue_read(-1, 2*DEPTH)
    emit(xcheck(0))
    if prio is not None:
        l = k.label("pr"); k("s_cmp_lt_u32 s36, 4"); k(f"s_cbranch_scc1 {l}"); k(f"s_setprio {prio}"); k.put(l)
    for g in range(N):
        m = fr[g]; w = []
        nd = m.get("need")
        if nd and nox and nd[0] == "h": nd = None
        if nd and nd not in waited: w.append(f"vmcnt({vq.n(nd)})"); waited.add(nd)
        assert st_["rp"] > g, (g, st_)
        if g in lq:
            idx = max(i for i, t in enumerate(lq) if t == g)
            w.append(f"lgkmcnt({min(15, len(lq) - 1 - idx)})"); del lq[:idx+1]
        if w: k("s_waitcnt " + " ".join(w))
        fb = FR + 4*(g % NB); fl = fill[g]; nmm = len(m["mm"])
        for n, (acc, Bop, first) in enumerate(m["mm"]):
            C = "0" if first else f"v[{acc}:{acc+3}]"
            k(f"v_mfma_f32_16x16x32_bf16 v[{acc}:{acc+3}], v[{fb}:{fb+3}], {Bop}, {C}")
            if n == nmm - 1 and g in bar_at:
                c = bar_at[g]
                assert st_["rp"] >= cs_[c], (c, g, st_)
                barrier(c)
            lag = 2*(min(g + DEPTH + 1, st_["readable"]) - st_["rp"]) - st_["half"]
            issue_read(g, 1 if (n == 0 and lag <= 2) else (lag+1)//2 if n == 0 else lag)
            for it in fl[(n*len(fl))//nmm:((n+1)*len(fl))//nmm]: emit(it)
    if stamp: tl.mark("mf")
    emit(tail)
    vq.wait("hr")
    for tt in range(2):
        a = blk(0, tt)
        if not nox:
            for e in range(4): k(f"v_add_f32 v{a+e}, v{a+e}, v{SUM+4*tt+e}")
        for x in fin(a, tt, "s3"): k(x)
    if stamp:
        k("s_bitcmp1_b32 s36, 0"); k(f"s_cbranch_scc1 {end}"); k("s_lshr_b32 s36, s36, 1")
        tl.finish(36, 10, 14, 16)
    k.put(end)
    k("s_endpgm")
    for (ls, lb, stage) in ool:
        k.put(ls)
        k(f"s_mov_b32 s7, {RETRY}")
        lp = k.label("lp"); k.put(lp)
        k("s_sleep 1")
        k(f"buffer_load_dword v{vPL}, v{vFL}, s[12:15], {'s68' if spoll else 's49'} offen sc1")
        k("s_sub_u32 s7, s7, 1"); k(f"s_cbranch_scc1 {lb}")
        k("s_waitcnt vmcnt(0)")
        ptest(stage, lp)
        k(f"s_branch {lb}")
    for (ls, lb, regs, loader) in ool2:
        k.put(ls)
        k(f"s_mov_b32 s7, {RETRY}")
        lp = k.label("lp"); k.put(lp)
        loader(False)
        k("s_waitcnt vmcnt(0)")
        k("s_sub_u32 s7, s7, 1"); k(f"s_cbranch_scc1 {lb}")
        for x in maxchain(regs): k(x)
        k(f"v_cmp_eq_u32 vcc, -1, v{vPL}")
        k(f"s_cbranch_vccnz {lp}")
        k(f"s_branch {lb}")
    for (ln, lb, t) in aool:
        k.put(ln)
        for r in range(16): k(f"v_mov_b32 v{S_(t)+r}, {fx(-1e30)}")
        k(f"s_branch {lb}")
    return k, (name, 256, 512, 160*1024)
```

```python
from mkall import *
def gen(name, idx, mode, mb, stride=128, mod="", sh=0, base=0x4000000, nw=4):
    k = Kern(name); end = f"{name}_end"
    sp = Stamper(k, True, trace=idx)
    k("s_cmp_ge_u32 s2, 256"); k(f"s_cbranch_scc1 {end}")
    k("s_load_dwordx2 s[10:11], s[0:1], 72")
    sp.start()
    k("v_lshrrev_b32 v1, 6, v0"); k("v_and_b32 v2, 63, v0"); k("v_readfirstlane_b32 s36, v1")
    k("s_waitcnt lgkmcnt(0)")
    srd(k, 12, 10, WS_BYTES)
    if mode != "none":
        per = 64*stride if mode == "touch" else 1024
        n = int(mb*(1 << 20)) // per // (256*nw)
        k(f"v_mul_u32_u24 v3, {per//64}, v2")
        k(f"s_xor_b32 s20, s2, {sh}"); k(f"s_mul_i32 s20, s20, {nw}"); k("s_add_u32 s20, s20, s36");
        if n == 0:
            k(f"s_cmp_ge_u32 s20, {int(mb*(1<<20))//per}"); k(f"s_cbranch_scc1 {name}_fin"); n = 1
        k(f"s_mul_i32 s20, s20, {per}"); k(f"s_add_u32 s20, s20, {base:#x}")
        for i in range(4): k(f"v_mov_b32 v{8+i}, -1")
        for i in range(n):
            if mode == "touch":
                for m in mod.split("|"):
                    if m == "W": k("s_waitcnt vmcnt(0)")
                    else: k(f"buffer_load_dword v8, v3, s[12:15], s20 offen {m}")
            elif mode == "full": k(f"buffer_load_dwordx4 v[8:11], v3, s[12:15], s20 offen {mod}")
            else: k(f"buffer_store_dwordx4 v[8:11], v3, s[12:15], s20 offen {mod}")
            k(f"s_add_u32 s20, s20, {per*256*nw}")
        k("s_waitcnt vmcnt(0)")
        k.put(f"{name}_fin")
        k("s_barrier")
    sp.finish(end, 36, 2, 30, 31)
    k.put(end); k("s_endpgm")
    return k, (name, 256, 64*nw, 0)
import sys
P0 = ("touch", 32, 128, "", 0, 0x1000000)
PR = ("touch", 8, 128, "", 0, 0x6000000)
PR2 = ("store", 8, 128, "sc1", 0, 0x6000000)
T = ("touch", 16)
V = [(P0, ("touch", 16), PR, T),
     (P0, ("touch", 16, 128, "nt"), PR, T),
     (P0, ("touch", 16, 128, "nt|"), PR, T),
     (P0, ("touch", 16, 128, "nt|W|"), PR, T),
     (P0, ("touch", 16, 128, "nt|W|sc0"), PR, T),
     (P0, ("touch", 16, 128, "sc0 nt"), PR, T),
     (P0, ("touch", 16, 128, "nt"), ("none", 0), T),
     (P0, ("touch", 16, 128, "nt|W|"), ("none", 0), T),
     (P0, ("touch", 16, 128, "sc1 nt"), PR, T),
     ]
for n, v in enumerate(V if __name__ == "__main__" else []):
    ks = [gen("abcd"[i] + "_kernel", i, *a) for i, a in enumerate(v)]
    open(f"c{n}.s", "w").write(emit_file([k for k, l in ks], [l for k, l in ks], header=hdr))
```

```python
from mkz import *
import ub_cold as U
def bo(fn, pre):
    ks = [U.gen("pre_kernel", 0, *pre), gen_k1f(stamp=False, touch=()), gen_fz(stamp=False)]
    open(fn, "w").write(emit_file([k for k, l in ks], [l for k, l in ks], header=hdr))
bo("o1.s", ("none", 0))
bo("o2.s", ("touch", 64, 128, "", 0, 0xA000000))
bo("o3.s", ("touch", 64, 128, "nt", 0, 0xA000000))
bo("o4.s", ("store", 64, 128, "sc1", 0, 0xA000000))
bo("o5.s", ("store", 64, 128, "sc1 nt", 0, 0xA000000))
```

```python
from common import *
import math
def gen_k1(name="qkv_kernel", stamp=False, DEPTH=6, zflags=True, pf=0, helper=None, mx=False, mt=None, mtm='', dly=0):
    k = Kern(name); end = f"{name}_end"
    sp = Stamper(k, stamp, trace=0, base=88)
    NWG = 224
    k(f"s_cmp_ge_u32 s2, {NWG}"); k(f"s_cbranch_scc1 {name}_pf" if pf else f"s_cbranch_scc1 {end}")
    k("s_load_dwordx4 s[4:7], s[0:1], 0")
    k("s_load_dwordx2 s[10:11], s[0:1], 72")
    if mt is not None:
        for j in range(3): k(f"s_load_dwordx2 s[{60+4*j}:{61+4*j}], s[0:1], {32+8*j}")
    sp.start()
    if dly:
        k("s_memrealtime s[80:81]"); k("s_waitcnt lgkmcnt(0)"); k(f"s_add_u32 s82, s80, {dly}"); k("s_mov_b32 s83, 100000")
        l = k.label("dl"); k.put(l); l2 = k.label("dl2")
        k("s_memrealtime s[80:81]"); k("s_waitcnt lgkmcnt(0)"); k("s_sub_u32 s83, s83, 1"); k(f"s_cbranch_scc1 {l2}")
        k("s_sub_u32 s84, s82, s80"); k("s_cmp_gt_i32 s84, 0"); k(f"s_cbranch_scc1 {l}"); k.put(l2)
    k("v_lshrrev_b32 v1, 6, v0"); k("v_and_b32 v2, 63, v0")
    k("v_readfirstlane_b32 s36, v1")
    k("s_and_b32 s37, s2, 7"); k("s_lshl_b32 s37, s37, 2"); k("s_bfe_u32 s42, s2, 0x20003"); k("s_or_b32 s37, s37, s42")
    k("s_lshr_b32 s38, s2, 5")
    k("s_and_b32 s39, s36, 1")
    k("s_lshr_b32 s40, s36, 1")
    k("s_lshl_b32 s41, s38, 9"); k("s_lshl_b32 s42, s36, 7"); k("s_add_u32 s41, s41, s42")
    k("s_lshl_b32 s43, s36, 13")
    k("s_lshl_b32 s44, s37, 6"); k("s_lshl_b32 s42, s36, 4"); k("s_add_u32 s44, s44, s42"); k("s_mul_i32 s44, s44, 1152")
    k("s_mul_i32 s45, s36, 18432")
    vDW, vDX0, vDX1, vA, vXR, vSTQ, vSTV = 3, 4, 5, 6, 8, 12, 13
    vRd = [14, 15]
    vT = 16
    k("v_and_b32 v16, 3, v2"); k("v_lshlrev_b32 v16, 4, v16")
    k("v_bfe_u32 v17, v2, 2, 3")
    k("v_lshrrev_b32 v18, 5, v2")
    k("v_lshl_add_u32 v16, v18, 6, v16")
    k(f"v_mul_u32_u24 v{vDW}, 3456, v17"); k(f"v_add_u32 v{vDW}, v{vDW}, v16")
    k("v_lshrrev_b32 v16, 3, v2"); k("v_and_b32 v17, 7, v2"); k("v_lshrrev_b32 v19, 1, v16"); k("v_xor_b32 v17, v17, v19")
    k("v_mul_u32_u24 v16, 1152, v16")
    k(f"v_lshl_add_u32 v{vDX0}, v17, 4, v16")
    k("v_xor_b32 v17, 4, v17")
    k(f"v_lshl_add_u32 v{vDX1}, v17, 4, v16")
    k("v_bfe_u32 v16, v2, 2, 2"); k("v_lshlrev_b32 v16, 6, v16")
    k("v_bfe_u32 v17, v2, 4, 1"); k("v_lshl_add_u32 v16, v17, 5, v16")
    k("v_and_b32 v17, 3, v2"); k("v_lshl_add_u32 v16, v17, 3, v16")
    k("v_lshl_add_u32 v16, v18, 10, v16")
    k("s_lshl_b32 s42, s40, 14")
    k(f"v_add_u32 v{vA}, s42, v16")
    k("v_and_b32 v16, 31, v2"); k("v_lshrrev_b32 v17, 3, v16"); k("v_mul_u32_u24 v17, 9216, v17")
    k("v_and_b32 v19, 7, v16"); k("v_lshl_add_u32 v17, v19, 7, v17")
    k("s_mul_i32 s42, s39, 36864"); k("v_add_u32 v17, s42, v17")
    k("v_bfe_u32 v19, v16, 1, 3"); k("v_xor_b32 v19, v19, v18")
    for q in range(4):
        k(f"v_xor_b32 v20, {2*q}, v19"); k(f"v_lshl_add_u32 v{vXR+q}, v20, 4, v17")
    k(f"v_lshlrev_b32 v{vSTQ}, 3, v16"); k(f"v_lshl_add_u32 v{vSTQ}, v18, 8, v{vSTQ}")
    k(f"v_mul_u32_u24 v{vSTV}, 9216, v18"); k(f"v_lshl_add_u32 v{vSTV}, v16, 4, v{vSTV}")
    k("s_waitcnt lgkmcnt(0)")
    srd(k, 16, 4, S*D*2); srd(k, 20, 6, D*3*D*2)
    srd(k, 24, 10, QK_BYTES, off=WS_QK); srd(k, 28, 10, V_BYTES, off=WS_V)
    vq = VQ(k)
    if zflags:
        lz = k.label("nz")
        k(f"s_cmp_ge_u32 s2, {64 if zflags == 2 else 8}"); k(f"s_cbranch_scc1 {lz}")
        if zflags == 2: srd(k, 32, 10, 65536, off=0x2800000)
        else: srd(k, 32, 10, 8192, off=WS_FLAG)
        k("s_lshl_b32 s46, s2, 10"); k("v_lshlrev_b32 v20, 2, v0"); k("v_mov_b32 v21, 0")
        k("buffer_store_dword v21, v20, s[32:35], s46 offen sc1")
        k("s_waitcnt vmcnt(0)")
        k.put(lz)
    SLOT = [73728, 73728+32768, 0, 32768]
    SPARE = 73728 + 65536
    def dma_w(c):
        out = []
        for rg in range(8):
            out.append([f"s_add_u32 m0, s43, {SLOT[c%4] + rg*1024}", f"s_add_u32 s46, s41, {(64*c + 8*rg)*3456}",
                        ("vm", f"w{c}", f"buffer_load_dwordx4 v{vDW}, s[20:23], s46 offen lds")])
        return out
    for par in range(2):
        for sg in range(9):
            k(f"s_add_u32 m0, s45, {(par*9 + sg)*1024}"); k(f"s_add_u32 s46, s44, {par*8*1152 + sg*128}")
            vq("x", f"buffer_load_dwordx4 v{vDX0 if par == 0 else vDX1}, s[16:19], s46 offen lds")
    for c in range(2): vq.emit(dma_w(c))
    if mt is not None:
        for j in range(3): k(f"s_mov_b32 s{62+4*j}, {D*F*2:#x}"); k(f"s_mov_b32 s{63+4*j}, 0x00020000")
        k("s_lshr_b32 s46, s2, 3"); k("s_lshl_b32 s46, s46, 8"); k("v_add_u32 v16, s46, v0")
        k("v_mul_u32_u24 v17, 7282, v16"); k("v_lshrrev_b32 v17, 16, v17")
        k(f"v_mul_u32_u24 v17, {9216 - 1152}, v17"); k("v_lshlrev_b32 v5, 7, v16"); k("v_add_u32 v4, v5, v17")
        k("v_cmp_gt_u32 vcc, 5184, v16"); k("v_cndmask_b32 v4, -1, v4, vcc"); k("v_cndmask_b32 v5, -1, v5, vcc")
        k("v_lshrrev_b32 v4, 0, v4")
        k("s_and_b32 s57, s2, 7"); k("s_mul_i32 s57, s57, 1152"); k("s_mul_i32 s58, s57, 576")
    if isinstance(mtm, str): mtm = [mtm]*3
    tch = [[("vm", "tch", f"buffer_load_dword v7, v{4 + j//2}, s[{60+4*j}:{63+4*j}], s{57 + j//2} offen {m}") for m in mtm[j].split("|")] for j in range(3)]
    XR = 64; ACC = 208
    accs = [32, 48, 208, 224]
    k("s_mov_b32 s54, 0x3f803f80"); k("s_mov_b32 s55, 0x00003f80"); k("s_mov_b32 s56, 0x3f800000")
    for i in range(8): k(f"v_mov_b32 v{vT+i}, 0")
    vq.wait("x"); k("s_barrier")
    sp.st()
    for s in range(36):
        k(f"ds_read_b128 v[{XR+4*s}:{XR+4*s+3}], v{vXR + (s&3)} offset:{(s>>2)*1024}")
        if s >= 8:
            k("s_waitcnt lgkmcnt(8)")
            for i in range(4): k(f"v_dot2c_f32_bf16 v{vT+i}, s54, v{XR+4*(s-8)+i}")
    for s in range(28, 36):
        k(f"s_waitcnt lgkmcnt({35-s})")
        for i in range(4): k(f"v_dot2c_f32_bf16 v{vT+i}, s54, v{XR+4*s+i}")
    vq.wait("w0")
    k("s_barrier")
    for c in (2, 3): vq.emit(dma_w(c))
    k(f"v_add_f32 v{vT}, v{vT}, v{vT+1}"); k(f"v_add_f32 v{vT+2}, v{vT+2}, v{vT+3}"); k(f"v_add_f32 v{vT}, v{vT}, v{vT+2}")
    k(f"v_mov_b32 v{vT+1}, v{vT}")
    k(f"v_permlane32_swap_b32 v{vT}, v{vT+1}")
    k(f"v_add_f32 v{vT}, v{vT}, v{vT+1}")
    k(f"v_mul_f32 v{vT}, {fx(-1.0/576)}, v{vT}")
    sp.st()
    def center(s):
        out = []
        for i in range(4):
            r = XR + 4*s + i; a = vT + 8 + 2*i
            out += [f"v_dot2_f32_bf16 v{a}, v{r}, s55, v{vT}", f"v_dot2_f32_bf16 v{a+1}, v{r}, s56, v{vT}"]
        for i in range(4):
            r = XR + 4*s + i; a = vT + 8 + 2*i
            out += [f"v_cvt_pk_bf16_f32 v{r}, v{a}, v{a+1}"]
        for i in range(4):
            r = XR + 4*s + i
            out += [f"v_dot2c_f32_bf16 v{vT+4+i}, v{r}, v{r}"]
        return out
    k("s_lshl_b32 s47, s38, 1"); k("s_add_u32 s47, s47, s40")
    lv = k.label("v")
    k("s_cmp_ge_u32 s47, 9"); k(f"s_cbranch_scc1 {lv}")
    vq0 = list(vq.q)
    for isv in (0, 1):
        if isv: k.put(lv)
        vq.q = list(vq0)
        NB = 8
        mf = []
        for s in range(36):
            c = s // 4; sl = s % 4
            for i in range(4):
                o = (i >> 1)*8192 + sl*2048 + (i & 1)*512
                mf.append(dict(c=c, o=[o, o+256], s=s, acc=accs[i]))
        N = len(mf)
        fill = [[] for _ in range(N+1)]
        def spread(items, g0, g1):
            n = len(items); w = g1 - g0
            for i, it in enumerate(items): fill[g0 + (i*w)//n].append(it)
        for it in center(0): k(it)
        for s in range(35): spread(center(s+1), 4*s, 4*s+4)
        BA = 4
        bar_at = {16*c - BA - 1: c for c in range(1, 9)}
        for c in range(1, 6):
            spread(dma_w(c+3), 16*c - BA, 16*c - BA + 12)
        if mt is not None:
            for j in range(3): fill[mt[j]].append(tch[j])
        lq = []; st_ = dict(rp=0, readable=1)
        k(f"v_add_u32 v{vRd[0]}, {SLOT[0]}, v{vA}")
        def issue_reads(g, maxn):
            n = 0
            while st_["rp"] < N and st_["rp"] <= g + DEPTH and mf[st_["rp"]]["c"] < st_["readable"] and n < maxn:
                rp = st_["rp"]; m = mf[rp]; fb = 4*(rp % NB)
                for e in range(2):
                    k(f"ds_read_b64_tr_b16 a[{fb+2*e}:{fb+2*e+1}], v{vRd[m['c']%2]} offset:{m['o'][e]}"); lq.append(rp)
                st_["rp"] += 1; n += 1
        issue_reads(-1, DEPTH)
        for g in range(N):
            m = mf[g]
            if g in lq:
                idx = max(i for i, t in enumerate(lq) if t == g)
                k(f"s_waitcnt lgkmcnt({len(lq)-1-idx})"); del lq[:idx+1]
            fb = 4*(g % NB); acc = m["acc"]; xs = XR + 4*m["s"]
            C = "0" if m["s"] == 0 else f"v[{acc}:{acc+15}]"
            A_, B_ = f"a[{fb}:{fb+3}]", f"v[{xs}:{xs+3}]"
            if isv: A_, B_ = B_, A_
            k(f"v_mfma_f32_32x32x16_bf16 v[{acc}:{acc+15}], {A_}, {B_}, {C}")
            if g in bar_at:
                c = bar_at[g]
                vq.wait(f"w{c}", " lgkmcnt(0)"); lq.clear()
                k("s_barrier")
                k(f"v_add_u32 v{vRd[c%2]}, {SLOT[c%4]}, v{vA}")
                st_["readable"] = c + 1
            issue_reads(g, 2)
            for it in fill[g]: vq.emit(it)
        sp.st()
        V = vT + 4
        k(f"v_add_f32 v{V}, v{V}, v{V+1}"); k(f"v_add_f32 v{V+2}, v{V+2}, v{V+3}"); k(f"v_add_f32 v{V}, v{V}, v{V+2}")
        k(f"v_mov_b32 v{V+1}, v{V}")
        k(f"v_permlane32_swap_b32 v{V}, v{V+1}")
        k(f"v_add_f32 v{V}, v{V}, v{V+1}")
        k(f"v_mov_b32 v{V+1}, {fx(1e-5)}")
        k(f"v_fmac_f32 v{V+1}, {fx(1.0/576)}, v{V}")
        k(f"v_rsq_f32 v{V}, v{V+1}")
        k("s_lshl_b32 s48, s37, 1"); k("s_add_u32 s48, s48, s39")
        if not isv and mx:
            lm = k.label("nm")
            k("s_cmp_lg_u32 s47, 0"); k(f"s_cbranch_scc1 {lm}")
            srd(k, 32, 10, 8192, off=Z_MX)
            k("s_lshl_b32 s49, s48, 7"); k("v_and_b32 v26, 31, v2"); k("v_lshlrev_b32 v26, 2, v26"); k(f"v_mul_f32 v27, -1.0, v{vT}")
            k("buffer_store_dword v27, v26, s[32:35], s49 offen")
            k.put(lm)
        if not isv:
            k("s_mul_i32 s49, s48, 73728"); k("s_lshl_b32 s50, s47, 13"); k("s_add_u32 s49, s49, s50")
            qs = (18 ** -0.5) * math.log2(math.e)
            k(f"v_mul_f32 v{V+1}, {fx(qs)}, v{V}")
            for i in range(4):
                k("s_lshl_b32 s50, s47, 2"); k(f"s_add_u32 s50, s50, {i}"); k("s_cmp_lt_u32 s50, 18")
                k("s_cselect_b64 vcc, -1, 0")
                k(f"v_cndmask_b32 v{V+2}, v{V}, v{V+1}, vcc")
                a = accs[i]
                for r in range(16): k(f"v_mul_f32 v{a+r}, v{V+2}, v{a+r}")
                for j in range(8): k(f"v_cvt_pk_bf16_f32 v{XR+8*i+j}, v{a+2*j}, v{a+2*j+1}")
                for q in range(4):
                    k(f"buffer_store_dwordx2 v[{XR+8*i+2*q}:{XR+8*i+2*q+1}], v{vSTQ}, s[24:27], s49 offen offset:{2*q*256}")
                if i < 3: k("s_add_u32 s49, s49, 2048")
        else:
            k("v_and_b32 v26, 31, v2"); k("v_lshlrev_b32 v26, 2, v26"); k("s_lshl_b32 s50, s36, 7"); k(f"s_add_u32 s50, s50, {SPARE}")
            k("v_add_u32 v26, s50, v26")
            k(f"ds_write_b32 v26, v{V}")
            k("v_lshrrev_b32 v27, 5, v2"); k("v_lshlrev_b32 v27, 4, v27"); k("v_add_u32 v27, s50, v27")
            k("s_waitcnt lgkmcnt(0)")
            RS = XR + 64
            for q in range(4): k(f"ds_read_b128 v[{RS+4*q}:{RS+4*q+3}], v27 offset:{32*q}")
            k("s_mul_i32 s49, s48, 36864"); k("s_sub_u32 s50, s47, 9"); k("s_lshl_b32 s50, s50, 11"); k("s_add_u32 s49, s49, s50")
            k("s_add_u32 s51, s49, 18432")
            k("s_waitcnt lgkmcnt(0)")
            for i in range(4):
                if i == 2:
                    k("s_cmp_eq_u32 s47, 13"); k(f"s_cbranch_scc1 {name}_vdone")
                a = accs[i]
                for r in range(16): k(f"v_mul_f32 v{a+r}, v{RS+r}, v{a+r}")
                for j in range(8): k(f"v_cvt_pk_bf16_f32 v{XR+8*i+j}, v{a+2*j}, v{a+2*j+1}")
                k(f"buffer_store_dwordx4 v[{XR+8*i}:{XR+8*i+3}], v{vSTV}, s[28:31], s49 offen offset:{i*512}")
                k(f"buffer_store_dwordx4 v[{XR+8*i+4}:{XR+8*i+7}], v{vSTV}, s[28:31], s51 offen offset:{i*512}")
            k.put(f"{name}_vdone")
        n_save = sp.n
        sp.finish(end, 36, 2, 30, 31)
        if isv == 0:
            k("s_endpgm")
            sp.n = n_save - 1
    k.put(end); k("s_endpgm")
    if pf:
        k.put(f"{name}_pf")
        k(f"s_cmp_ge_u32 s2, 256"); k(f"s_cbranch_scc1 {end}")
        if helper: helper(k, name, end)
        else: touch_code(k, NWG, 32, pf)
    return k, (name, 256 if pf else NWG, 256, 73728 + 65536 + 1024)
```

```python
from mkz import *
import json
def gen_amp(offA, offB, stride, div=1, nwg=256, only=None, name="amp_kernel"):
    k = Kern(name); end = f"{name}_end"
    k(f"s_cmp_ge_u32 s2, {nwg}"); k(f"s_cbranch_scc1 {end}")
    if only is not None: k(f"s_cmp_lg_u32 s2, {only}"); k(f"s_cbranch_scc1 {end}")
    k("s_load_dwordx2 s[10:11], s[0:1], 72")
    k("s_waitcnt lgkmcnt(0)")
    srd(k, 12, 10, WS_BYTES)
    k(f"s_mul_i32 s20, s2, {stride}")
    if offA is not None:
        k(f"s_add_u32 s21, s20, {offA:#x}"); k("buffer_load_dword v1, off, s[12:15], s21 sc1")
    else: k("v_mov_b32 v1, 0")
    if offB is not None:
        k(f"s_add_u32 s21, s20, {offB:#x}"); k("buffer_load_dword v2, off, s[12:15], s21 sc1")
    else: k("v_mov_b32 v2, 0")
    k("s_waitcnt vmcnt(0)")
    k("v_sub_u32 v1, v2, v1"); k("v_cvt_f32_u32 v1, v1"); k(f"v_mul_f32 v1, {fx(1.0/div)}, v1"); k("v_cvt_u32_f32 v1, v1")
    k("v_readfirstlane_b32 s22, v1"); k("s_min_u32 s22, s22, 20000")
    k("s_memrealtime s[80:81]"); k("s_waitcnt lgkmcnt(0)"); k(f"s_add_u32 s82, s80, s22"); k("s_mov_b32 s83, 1000000")
    l = k.label("dl"); k.put(l)
    k("s_memrealtime s[80:81]"); k("s_waitcnt lgkmcnt(0)"); k("s_sub_u32 s83, s83, 1"); k(f"s_cbranch_scc1 {end}")
    k("s_sub_u32 s84, s82, s80"); k("s_cmp_gt_i32 s84, 0"); k(f"s_cbranch_scc1 {l}")
    k.put(end); k("s_endpgm")
    return k, (name, 256, 64, 0)
def ba(fn, a, b, k1kw=None, only=None, **kw):
    ks = [gen_k1f(stamp=True, **dict(dict(touch=()), **(k1kw or {}))), gen_fz(stamp=True, marks=MK, **kw)]
    nm = json.load(open("tl_names_3.json"))
    T = WS_TL + 3*0x40000
    if a == "k1": am = gen_amp(None, WS_TRACE + 4, 16, nwg=224)
    elif a is None: am = gen_amp(None, None, 0)
    else: am = gen_amp(T + 4*nm.index(a), T + 4*nm.index(b), 1024, div=(1 if a == "rt0" else 10), only=only)
    ks.append(am)
    open(fn, "w").write(emit_file([k for k, l in ks], [l for k, l in ks], header=hdr))
if __name__ == "__main__":
    ba("o1.s", None, None)
    ba("o2.s", "k1", None)
    ba("o3.s", "rt0", "rt1")
    ba("o4.s", "t0", "drain")
    ba("o5.s", "t0", "hv", only=77)
    ba("o6.s", "hv", "drain", only=77)
```

```python
from amp import *
def bb(fn, A, B, **kw):
    ks = [gen_k1f(stamp=True, touch=()), gen_fz(stamp=True, marks=MK)]
    ks.append(gen_amp(A, B, 0, only=0))
    open(fn, "w").write(emit_file([k for k, l in ks], [l for k, l in ks], header=hdr))
T = WS_TL + 3*0x40000
bb("o1.s", None, None)
bb("o2.s", WS_TRACE, T)
bb("o3.s", WS_TRACE + 200*16, T + 255*1024)
bb("o4.s", WS_TRACE, T + 25*4)
```

```python
from amp import *
def bb(fn, A, B, k1kw={}, **kw):
    ks = [gen_k1f(stamp=True, touch=(), **k1kw), gen_fz(stamp=True, marks=MK, **kw)]
    ks.append(gen_amp(A, B, 0, only=0))
    open(fn, "w").write(emit_file([k for k, l in ks], [l for k, l in ks], header=hdr))
T = WS_TL + 3*0x40000
K = dict(mt=(90, 94, 98))
bb("o1.s", None, None, K, touch=False)
bb("o2.s", WS_TRACE, T, K, touch=False)
bb("o3.s", T, T + 25*4, K, touch=False)
K = dict(mt=(90, 94, 98), mtm="nt")
bb("o4.s", None, None, K, touch=False)
bb("o5.s", WS_TRACE, T, K, touch=False)
bb("o6.s", T, T + 25*4, K, touch=False)
```

```python
from common import *
SL = 16384
RW1 = 6*SL
CSO = RW1 + 36864
RWD = 160*1024 - 18432
W8_HX = 0x1000000
W8_HR = 0x2000000
W8_PT = 0x4000000

KAo = RW1; KBo = RW1 + 16384; VBo = RW1 + 21504
EXo = RW1; RXo = RW1 + 49152; MXo = RW1 + 57344; SQo = RW1 + 58368
RETRY = 0x1000

def gen_fz(name="fz_kernel", stamp=False, B_=2, nox=False, nodma=False, P=None, marks=None, prio=None, KA=8, hld='sc1', hst='sc1', touch=True, fillm='sc1', nofill=False, xld='sc1', ptre=False, dmam='', tchm=''):
    PG, PP_ = 16, 13
    selfill = False; spoll = False; xfill = None
    P = dict(dict(), **(P or {}))
    k = Kern(name); end = f"{name}_end"
    tl = TL2(k, stamp, 18, 100, 3)
    k(f"s_cmp_ge_u32 s2, 256"); k(f"s_cbranch_scc1 {end}")
    k("s_load_dwordx2 s[10:11], s[0:1], 72")
    k("s_load_dwordx4 s[4:7], s[0:1], 32")
    k("s_load_dwordx4 s[28:31], s[0:1], 48")
    k("s_load_dwordx2 s[96:97], s[0:1], 0")
    tl.start()
    k("v_lshrrev_b32 v1, 6, v0"); k("v_and_b32 v2, 63, v0")
    k("v_readfirstlane_b32 s36, v1")
    k("s_and_b32 s37, s2, 7")
    k("s_bfe_u32 s38, s2, 0x20003")
    k("s_lshr_b32 s3, s2, 5"); k("s_lshl_b32 s3, s3, 3"); k("s_add_u32 s39, s3, s36")
    k("s_lshl_b32 s40, s37, 2"); k("s_add_u32 s40, s40, s38")
    k("s_lshl_b32 s41, s36, 10")
    vE = [3, 5]; vO = [4, 6]; vRR = 7; vD1, vD2, vDR1, vST, vXL, vFL, vPL, vR2, vOUT, T = 8, 9, 10, 12, 13, 14, 15, 16, 19, 20
    ACC = 24; XR = 96; FR = 240; NB = 4; DEPTH = 3
    blk = lambda b, tt=0: ACC + 8*b + 4*tt
    vq = VQ(k); lq = []
    def xm(nm):
        if stamp and marks and nm in marks:
            k("s_waitcnt lgkmcnt(0)"); lq.clear(); tl.mark(nm, True)
    vKr, vKr2, vVr, vQm = 3, 4, 5, 6
    Q = 224; MP = 232; AT = 24; AF = 32; O = 64; SB = 80; XM = 28; XRS = 230; MXR = 231
    S_ = lambda t: SB + 16*t
    k("s_add_u32 s44, s39, s36"); k("s_sub_u32 s44, s44, 8")
    k("s_mul_i32 s49, s40, 9"); k("s_lshr_b32 s49, s49, 1"); k("s_lshl_b32 s49, s49, 8")
    k("s_mul_i32 s47, s39, 73728"); k("s_add_u32 s47, s47, s49")
    k(f"s_add_u32 s49, s49, {144*256}")
    k("s_max_i32 s60, s44, 0"); k("s_add_i32 s61, s44, 1"); k("s_max_i32 s61, s61, 0")
    k(f"v_lshlrev_b32 v{vST}, 4, v2")
    k("v_lshrrev_b32 v24, 4, v2"); k("v_add_u32 v24, s44, v24"); k("v_max_i32 v24, 0, v24"); k("v_mul_u32_u24 v24, 73728, v24")
    k("v_and_b32 v25, 15, v2"); k(f"v_lshl_add_u32 v30, v25, 4, v24")
    k("v_lshrrev_b32 v26, 5, v2"); k("v_and_b32 v27, 31, v2")
    k("s_mul_i32 s8, s40, 288")
    k("v_mul_u32_u24 v24, 9216, v26"); k("v_lshl_add_u32 v24, v27, 4, v24"); k(f"v_add_u32 v31, s8, v24")
    k("v_lshlrev_b32 v24, 3, v27"); k("v_lshl_add_u32 v25, v26, 8, v24")
    k("s_lshl_b32 s45, s36, 11")
    k("s_mov_b32 s58, -1"); k("s_mov_b32 s59, 0")
    k("s_waitcnt lgkmcnt(0)")
    tl.mark("t0", True)
    srd(k, 12, 10, WS_BYTES)
    for i in range(2):
        k(f"s_mul_i32 s9, s{60+i}, 73728"); k("s_add_u32 s9, s9, s49"); k(f"s_add_u32 m0, s45, {KAo + i*1024}")
        vq("k", f"buffer_load_dwordx4 v{vST}, s[12:15], s9 offen lds")
    k("s_lshl_b32 s9, s36, 9"); k(f"s_add_u32 m0, s9, {KBo}"); k("s_add_u32 s9, s49, 1024"); k("s_mov_b64 exec, s[58:59]")
    vq("k", f"buffer_load_dwordx4 v30, s[12:15], s9 offen lds")
    k("s_mov_b64 exec, -1")
    for i in range(3): vq("q", f"buffer_load_dwordx2 v[{Q+2*i}:{Q+2*i+1}], v25, s[12:15], s47 offen offset:{512*i}")
    k("s_mov_b32 s52, 0x3ffff"); k("s_mov_b32 s53, 0x3ffff"); k("s_mov_b64 exec, s[52:53]")
    k("s_lshl_b32 s8, s36, 12"); k(f"s_add_u32 s8, s8, {VBo}")
    for i in range(2):
        k(f"s_mul_i32 s9, s{60+i}, 36864"); k(f"s_add_u32 s9, s9, {WS_V:#x}")
        for u in range(2):
            k(f"s_add_u32 m0, s8, {(2*i+u)*1024}")
            if u: k("s_add_u32 s9, s9, 18432")
            vq("v", f"buffer_load_dwordx4 v31, s[12:15], s9 offen lds")
    k("s_not_b64 exec, exec")
    for i in range(4): k(f"v_mov_b32 v{AF+i}, 0x3f803f80")
    k(f"v_add_u32 v{vVr}, s8, v{vST}")
    for i in range(4): k(f"ds_write_b128 v{vVr}, v[{AF}:{AF+3}] offset:{i*1024}")
    k("s_mov_b64 exec, -1")
    srd(k, 16, 4, D*F*2); srd(k, 20, 6, D*F*2); srd(k, 24, 28, D*F*2); srd(k, 32, 30, S*D*2)
    k(f"s_mov_b32 s98, {S*D*2:#x}"); k("s_mov_b32 s99, 0x00020000")
    if touch:
        k("s_lshr_b32 s8, s2, 3"); k("s_lshl_b32 s8, s8, 3"); k("s_add_u32 s8, s8, s36")
        k("s_mul_i32 s9, s8, 911"); k("s_lshr_b32 s9, s9, 16"); k("s_mul_i32 s62, s9, 72"); k("s_sub_u32 s8, s8, s62")
        k(f"s_mul_i32 s62, s8, {8*9216}"); k("s_mul_i32 s63, s37, 1152"); k("s_add_u32 s62, s62, s63")
        k("s_mov_b32 s50, 9216"); k(f"s_mov_b32 s30, {D*F*2:#x}"); k("s_mov_b32 s31, 0x00020000")
        k("s_mul_i32 s63, s63, 576"); k(f"s_mul_i32 s54, s8, {8*1152}"); k("s_add_u32 s63, s63, s54")
        k("s_cmp_eq_u32 s9, 2"); k("s_cselect_b32 s62, s63, s62"); k("s_cselect_b32 s50, 1152, s50")
        k("s_cmp_eq_u32 s9, 0"); k("s_cselect_b32 s28, s4, s28"); k("s_cselect_b32 s29, s5, s29")
        k("s_cmp_eq_u32 s9, 1"); k("s_cselect_b32 s28, s6, s28"); k("s_cselect_b32 s29, s7, s29")
        k("s_min_u32 s8, s8, 26"); k("s_lshl_b32 s8, s8, 13"); k(f"s_mul_i32 s63, s37, {4*55296}"); k("s_add_u32 s63, s63, s8"); k(f"s_add_u32 s63, s63, {WS_WL:#x}")
        k("s_cmp_eq_u32 s9, 3"); k("s_cselect_b32 s28, s10, s28"); k("s_cselect_b32 s29, s11, s29"); k("s_cselect_b32 s62, s63, s62"); k("s_cselect_b32 s50, 1024, s50")
        k(f"s_cselect_b32 s30, {WS_BYTES:#x}, s30")
        k("v_lshrrev_b32 v30, 3, v2"); k("v_mul_lo_u32 v30, s50, v30"); k("v_and_b32 v31, 7, v2"); k("v_lshl_add_u32 v7, v31, 7, v30")
    tch = [[("vm", "tch", f"buffer_load_dword v17, v7, s[28:31], s62 offen {m}") for m in tchm.split("|")]] if touch else []
    k(f"s_add_u32 s8, s41, {KAo}"); k(f"v_add_u32 v{vKr}, s8, v25")
    k("s_lshl_b32 s8, s36, 8"); k(f"s_add_u32 s8, s8, {KBo}"); k(f"v_add_u32 v{vKr2}, s8, v24")
    k(f"s_add_u32 s8, s45, {VBo}"); k(f"v_add_u32 v{vVr}, s8, v{vST}")
    k(f"v_lshlrev_b32 v30, 2, v26"); k(f"v_sub_u32 v{vQm}, v27, v30")
    MS = 64
    for r in range(16): k(f"v_cmp_le_i32 s[{MS+2*r}:{MS+2*r+1}], {8*(r>>2)+(r&3)}, v{vQm}")
    k("v_mov_b32 v24, 0xffff")
    for j in range(8):
        k(f"v_cndmask_b32 v{MP+j}, 0, v24, s[{MS+4*j}:{MS+4*j+1}]")
        k(f"v_cndmask_b32 v{MP+j}, v{MP+j}, -1, s[{MS+4*j+2}:{MS+4*j+3}]")
    k("s_bitcmp1_b32 s40, 0")
    k("s_cselect_b32 s52, 0, -1"); k("s_mov_b32 s53, -1")
    k("s_cselect_b32 s56, -1, 0"); k("s_mov_b32 s57, 0")
    k("s_sub_i32 s54, 8, s39")
    k("s_and_b32 s8, s36, 1"); k("s_lshl_b32 s8, s8, 1"); k("s_bfe_u32 s9, s36, 0x10001"); k("s_or_b32 s8, s8, s9"); k("s_and_b32 s9, s36, 4"); k("s_or_b32 s8, s8, s9")
    k("s_lshl_b32 s42, s8, 10")
    k("s_mul_i32 s43, s36, 73728"); k("s_mul_i32 s8, s37, 1152"); k("s_add_u32 s43, s43, s8"); k("s_lshl_b32 s9, s38, 8"); k("s_add_u32 s43, s43, s9")
    k("s_mul_i32 s46, s39, 36864")
    def dlane(d):
        k("v_bfe_u32 v20, v2, 2, 3"); k("v_bfe_u32 v21, v2, 4, 1"); k("v_lshlrev_b32 v21, 1, v21"); k("v_and_b32 v22, 3, v2"); k("v_xor_b32 v21, v21, v22")
        k("v_lshlrev_b32 v21, 4, v21"); k("v_lshrrev_b32 v23, 5, v2"); k("v_lshl_add_u32 v21, v23, 6, v21")
    dlane(0)
    k(f"v_mul_u32_u24 v{vD1}, 9216, v20"); k(f"v_add_u32 v{vD1}, v{vD1}, v21")
    k("s_lshl_b32 s8, s37, 3"); k("s_lshr_b32 s9, s2, 5"); k("s_add_u32 s8, s8, s9")
    k("s_lshl_b32 s48, s8, 2"); k("s_add_u32 s48, s48, s38"); k("s_lshl_b32 s48, s48, 16"); k("s_add_u32 s48, s48, s41"); k(f"s_add_u32 s48, s48, {W8_HX:#x}")
    k("s_lshr_b32 s8, s2, 3"); k(f"s_lshl_b32 s51, s8, 19"); k("s_add_u32 s51, s51, s41"); k(f"s_add_u32 s51, s51, {W8_PT:#x}")
    k(f"s_lshl_b32 s55, s37, {PG}"); k("s_add_u32 s55, s55, s51")
    for e in range(4): k(f"v_mov_b32 v{T+e}, -1")
    k("s_add_u32 s3, s3, s37"); k("s_mul_i32 s50, s3, 36864")
    k("s_and_b32 s8, s36, 3"); k("s_mul_i32 s63, s8, 9216")
    k("s_lshl_b32 s9, s38, 2"); k("s_lshr_b32 s60, s36, 1"); k("s_add_u32 s9, s9, s60")
    k("s_mul_i32 s60, s9, 36864"); k("s_xor_b32 s9, s9, 1"); k("s_mul_i32 s61, s9, 36864")
    k(f"s_add_u32 s9, s63, {Z_WO:#x}"); k("s_add_u32 s60, s60, s9"); k("s_add_u32 s61, s61, s9")
    k("s_mul_i32 s44, s38, 37888"); k("s_add_u32 s44, s44, s9"); k(f"s_add_u32 s44, s44, {576*1024}")
    k("s_add_u32 s63, s63, s50"); k(f"s_add_u32 s63, s63, {Z_O:#x}")
    k("s_cmp_lt_u32 s36, 4"); k("s_cselect_b32 s4, 0x1ffff, 0"); k("s_mov_b32 s5, s4")
    k("s_lshl_b32 s45, s38, 3"); k("s_add_u32 s45, s45, s36")
    k("v_mul_u32_u24 v30, 1152, v27"); k("v_lshl_add_u32 v30, v26, 3, v30"); k("v_lshlrev_b32 v31, 2, v27")
    k("s_lshl_b32 s6, s45, 5"); k("s_add_u32 s6, s6, s50")
    k("s_lshl_b32 s7, s38, 5"); k("s_add_u32 s7, s7, s50"); k("s_bfe_u32 s8, s36, 0x10001"); k("s_lshl_b32 s8, s8, 4"); k("s_add_u32 s7, s7, s8")
    k("s_and_b32 s8, s36, 1"); k("s_lshl_b32 s8, s8, 2"); k("s_add_u32 s7, s7, s8")
    k("s_lshl_b32 s8, s3, 7"); k(f"s_add_u32 s8, s8, {Z_MX:#x}")
    vq("xr", f"buffer_load_dword v{XRS}, v30, s[96:99], s7 offen offset:1024")
    vq("xr", f"buffer_load_dword v{MXR}, v31, s[12:15], s8 offen")
    vq("xr", f"buffer_load_dwordx2 v[{XM}:{XM+1}], v30, s[96:99], s6 offen")
    vq("xr", f"buffer_load_dwordx2 v[{XM+2}:{XM+3}], v30, s[96:99], s6 offen offset:16")
    DSL = [6, 7, 0, 1, 2, 3, 4, 5, 6]
    DX = [(0, 0), (1, 0), (2, 0), (3, 0), None, (0, 1), (1, 1), (2, 1), (3, 1)]
    KS = [(j//2, j % 2) for j in range(12)] + [(6, 0), (7, 0), (8, 0), (6, 1), (7, 1), (8, 1)]
    def dmaC(c):
        s = (c % 6)*SL
        return [[f"s_add_u32 s9, s43, {(c % 9)*64*9216 + (c//9)*128}", f"s_add_u32 m0, s42, {s}", ("vm", f"dC{c}", f"buffer_load_dwordx4 v{vD1}, s[16:19], s9 offen {dmam} lds")],
                [f"s_add_u32 s9, s43, {(c % 9)*64*9216 + (c//9)*128}", f"s_add_u32 m0, s42, {s+8192}", ("vm", f"dC{c}", f"buffer_load_dwordx4 v{vD1}, s[20:23], s9 offen {dmam} lds")]]
    def dmaD(c):
        if c == 4: so = lambda g: [f"s_add_u32 s9, s{44+g}, {512*1152}"]
        else: so = lambda g: [f"s_add_u32 s9, s{44+g}, s{60+DX[c][0]}"] + ([f"s_add_u32 s9, s9, {64*1152}"] if DX[c][1] else [])
        return [so(g) + [f"s_add_u32 m0, s41, {DSL[c]*SL + g*8192}", ("vm", f"dD{c}", f"buffer_load_dwordx4 v{vD2}, s[24:27], s9 offen {dmam} lds")] for g in range(2)]
    def dmaR(d):
        base = RWD if d else RW1; vo = vST if d else vDR1; nj = 2 if d else 4
        def f():
            l = k.label("r2")
            k(f"s_cmp_ge_u32 s36, {nj}"); k(f"s_cbranch_scc1 {l}")
            k(f"s_add_u32 s9, s53, {36864*d + 8192*nj}"); k(f"s_add_u32 m0, s41, {base + 8192*nj}"); k(f"buffer_load_dwordx4 v{vo}, s[12:15], s9 offen lds")
            k.put(l)
        so = (lambda j: [f"s_xor_b32 s9, s54, {j << 13}", "s_add_u32 s9, s9, s52"]) if d else (lambda j: [f"s_add_u32 s9, s53, {8192*j}"])
        return [("call", f)] + [so(j) + [f"s_add_u32 m0, s41, {base + 8192*j}", ("vm", f"dR{d}", f"buffer_load_dwordx4 v{vo}, s[12:15], s9 offen lds")] for j in range(nj)]
    xr = lambda s, tt: f"v[{XR+8*s+4*tt}:{XR+8*s+4*tt+3}]"
    def xload(s, m=None):
        if m is None: m = "sc1" if s < 2 else xld
        return [[f"s_add_u32 s9, s46, {Z_HC + (s//2)*4096:#x}", ("vm", f"x{s}", f"buffer_load_dwordx4 {xr(s,tt)}, v{vXL}, s[12:15], s9 offen offset:{(s%2)*2048 + tt*256} {m}")] for tt in range(2)]
    def hload(j):
        if nox: return [["s_nop 0"]]
        c, ks = KS[j]
        so = (lambda tt: f"s_add_u32 s9, s47, {(2*ks + tt) << 13}") if c == 4 else (lambda tt: f"s_xor_b32 s9, s48, {(8*DX[c][0] + 4*DX[c][1] + 2*ks + tt) << 13:#x}")
        return [[so(tt), ("vm", f"h{j}", f"buffer_load_dwordx4 {xr(j,tt)}, v{vST}, s[12:15], s9 offen {hld}")] for tt in range(2)]
    def emit(it):
        if isinstance(it, tuple) and it[0] == "wait": vq.wait(it[1])
        elif isinstance(it, tuple) and it[0] == "call": it[1]()
        elif isinstance(it, list):
            for x in it: emit(x)
        else: vq.emit(it)
    def paddr(p):
        if ptre: return [f"s_add_u32 s9, s48, {((8-p) << 13):#x}"]
        return [f"s_xor_b32 s9, s55, {((p&7) << PG) | ((p&7) << PP_):#x}"]
    FQ = blk(8, 1) if "lf" in P else T
    sfl = [[f"s_add_u32 s9, s48, {(4+n) << 13:#x}", ("vm", "sf", f"buffer_store_dwordx4 v[{FQ}:{FQ+3}], v{vST}, s[12:15], s9 offen {fillm}")] for n in range(4)]
    sfl += [paddr(p) + [("vm", "sf2", f"buffer_store_dwordx4 v[{FQ}:{FQ+3}], v{vST}, s[12:15], s9 offen {fillm}")] for p in range(1, 9)]
    if nofill: sfl = []
    lfl = []
    if "lf" in P: lfl = sfl[:P.get("lfn", 12)]; sfl = []
    AG = [240, 244, 248, 252, Q, S_(0)+8, S_(0)+12]
    for t in range(1, 6): AG += [S_(t)+8, S_(t)+12, S_(t), S_(t)+4]
    aorder = [(n, e) for n in range(9) for e in range(3)]
    AR = {ne: AG[x] for x, ne in enumerate(aorder)}
    def aload(x):
        n, e = aorder[x]; r = AG[x]
        ad = f"s_add_u32 s9, s{(60, 61, 44)[e]}, {(n//4)*4096}"
        ld = f"buffer_load_dwordx4 v[{r}:{r+3}], v{vST}, s[12:15], s9 offen offset:{(n%4)*1024}"
        if e == 2: return [ad, "s_mov_b64 exec, s[4:5]", ld, "s_mov_b64 exec, -1"]
        return [ad, ("vm", "wo", ld)]
    tpos = P.get("tpos", None)
    tat = {}
    if touch and tpos is not None:
        nb = len(tpos); lw = 64 // nb
        for j, st in enumerate(tpos):
            m = ((1 << lw) - 1) << (lw*j)
            tat.setdefault(st, []).append([f"s_mov_b32 exec_lo, {m & 0xffffffff:#x}", f"s_mov_b32 exec_hi, {m >> 32:#x}", tch[0], "s_mov_b64 exec, -1"])
        tch = []
    bg = tch + sum([dmaC(c) for c in range(6)], [])
    npre = P.get("npre", 3)
    for x in bg[:npre]: emit(x)
    bg = bg[npre:]
    vq.wait("q")
    k(f"v_cndmask_b32 v{Q}, 0, v{Q}, s[52:53]")
    k(f"v_cndmask_b32 v{Q+4}, 0, v{Q+4}, s[58:59]")
    k(f"v_cndmask_b32 v{Q+5}, 0, v{Q+5}, s[56:57]")
    k("s_barrier")
    xm("kq")
    order = [8, 0, 1, 2, 3, 4, 5, 6, 7]
    def kread(i):
        t = order[i]; f = AF + 8*(i % 4)
        k(f"ds_read_b64 v[{f}:{f+1}], v{vKr} offset:{t*1024}")
        k(f"ds_read_b64 v[{f+2}:{f+3}], v{vKr} offset:{t*1024+512}")
        k(f"ds_read_b64 v[{f+4}:{f+5}], v{vKr2} offset:{t*256}")
    for i in range(3): kread(i)
    aool = []
    work = []
    for r in range(16): work.append((2, f"v_cndmask_b32 v{S_(8)+r}, v{S_(0)+r}, v{S_(8)+r}, s[{MS+2*r}:{MS+2*r+1}]"))
    MX = [AT, AT+1, AT+2, AT+3]
    first = [True]*4
    for i, t in enumerate(order):
        if t == 0: continue
        for j in range(8):
            c = j % 4; a = S_(t) + 2*j
            if first[c]: work.append((max(i, 1)+1, f"v_max_f32 v{MX[c]}, v{a}, v{a+1}")); first[c] = False
            else: work.append((max(i, 1)+1, f"v_max3_f32 v{MX[c]}, v{a}, v{a+1}, v{MX[c]}"))
    wp = 0
    nq = P.get("nq", 1)
    for i, t in enumerate(order):
        f = AF + 8*(i % 4)
        k(f"s_waitcnt lgkmcnt({min(2, 8 - i) * 3})")
        if t < 8:
            ln = k.label("neg"); lb = k.label("back")
            k(f"s_cmp_gt_i32 s54, {t}"); k(f"s_cbranch_scc1 {ln}")
            aool.append((ln, lb, t))
        k(f"v_mfma_f32_32x32x16_bf16 v[{S_(t)}:{S_(t)+15}], v[{f}:{f+3}], v[{Q}:{Q+3}], 0")
        k(f"v_mfma_f32_32x32x8_bf16 v[{S_(t)}:{S_(t)+15}], v[{f+4}:{f+5}], v[{Q+4}:{Q+5}], v[{S_(t)}:{S_(t)+15}]")
        if t < 8: k.put(lb)
        if i + 3 < 9: kread(i + 3)
        for x in bg[:nq]: emit(x)
        bg = bg[nq:]
        n = 0
        while wp < len(work) and work[wp][0] <= i and n < 12:
            k(work[wp][1]); wp += 1; n += 1
    vq.wait("v")
    k("s_barrier")
    pv = [(1, S_(1)), (2, S_(2)), (3, S_(3)), (4, S_(4)), (5, S_(5)), (6, S_(6)), (7, S_(7)), (8, S_(8)), (0, S_(0))]
    def vread(i):
        t = pv[i][0]; f = AF + 8*(i % 4)
        for u in range(2): k(f"ds_read_b128 v[{f+4*u}:{f+4*u+3}], v{vVr} offset:{(2*t+u)*1024}")
    for i in range(3): vread(i)
    for x in bg: emit(x)
    while wp < len(work): k(work[wp][1]); wp += 1
    k(f"v_max_f32 v{AT}, v{AT}, v{AT+1}"); k(f"v_max3_f32 v{AT}, v{AT+2}, v{AT+3}, v{AT}")
    k(f"v_mov_b32 v{AT+1}, v{AT}")
    k(f"v_permlane32_swap_b32 v{AT}, v{AT+1}")
    k(f"v_max_f32 v{AT}, v{AT}, v{AT+1}")
    xm("mx")
    def soft(t, half):
        out = []; b = S_(t) + 8*half
        for r in range(8): out.append(f"v_sub_f32 v{b+r}, v{b+r}, v{AT}")
        for r in range(8): out.append(f"v_exp_f32 v{b+r}, v{b+r}")
        for j in range(4):
            d = S_(t) + 4*half + j
            out.append(f"v_cvt_pk_bf16_f32 v{d}, v{b+2*j}, v{b+2*j+1}")
        if t == 8:
            for j in range(4):
                d = S_(t) + 4*half + j; e = S_(0) + 4*half + j
                out.append(f"v_bfi_b32 v{e}, v{MP+4*half+j}, 0, v{d}")
                out.append(f"v_and_b32 v{d}, v{MP+4*half+j}, v{d}")
        return out
    steps = [(i, u) for i in range(9) for u in range(2)]
    for x in soft(1, 0): k(x)
    ap = 0; fp = 0
    for n, (i, u) in enumerate(steps):
        t, Pr = pv[i]; f = AF + 8*(i % 4)
        if u == 0: k(f"s_waitcnt lgkmcnt({min(2, 8-i)*2})")
        nxt = steps[n+1] if n + 1 < len(steps) else None
        w = soft(pv[nxt[0]][0], nxt[1]) if (nxt is not None and pv[nxt[0]][0] != 0) else []
        for x in w[:2]: k(x)
        C = "0" if n == 0 else f"v[{O}:{O+15}]"
        k(f"v_mfma_f32_32x32x16_bf16 v[{O}:{O+15}], v[{f+4*u}:{f+4*u+3}], v[{Pr+4*u}:{Pr+4*u+3}], {C}")
        if u == 1 and i + 3 < 9: vread(i + 3)
        avail = 7 + 2*n
        vm = []
        while ap < min(avail, 27) and len(vm) < P.get("apn", 2): vm.append(aload(ap)); ap += 1
        if fp < len(sfl): vm.append(sfl[fp]); fp += 1
        vm += tat.get(n, [])
        rest = w[2:]
        for j, x in enumerate(vm):
            lo = (j*len(rest))//len(vm); hi = ((j+1)*len(rest))//len(vm)
            emit(x)
            for y in rest[lo:hi]: k(y)
        if not vm:
            for y in rest: k(y)
    assert ap == 27 and fp == len(sfl)
    k("s_lshl_b32 s8, s40, 10"); k("s_add_u32 s8, s8, s46"); k(f"s_add_u32 s8, s8, {Z_O:#x}")
    k("s_lshr_b32 s6, s40, 2"); k("s_lshl_b32 s6, s6, 9"); k("s_and_b32 s7, s40, 3"); k("s_lshl_b32 s7, s7, 2")
    k("s_add_u32 s6, s6, s7"); k("s_add_u32 s6, s6, s46"); k(f"s_add_u32 s6, s6, {Z_O + 32768:#x}")
    k(f"v_rcp_f32 v{AT}, v{O+10}")
    for r in range(10): k(f"v_mul_f32 v{O+r}, v{O+r}, v{AT}")
    for j in range(5): k(f"v_cvt_pk_bf16_f32 v{AF+j}, v{O+2*j}, v{O+2*j+1}")
    vq("os", f"buffer_store_dwordx4 v[{AF}:{AF+3}], v{vST}, s[12:15], s8 offen sc1")
    k("s_mov_b64 exec, s[58:59]")
    vq("os", f"buffer_store_dword v{AF+4}, v{vST}, s[12:15], s6 offen sc1")
    k("s_mov_b64 exec, -1")
    xm("at")
    PA = S_(6); RA = S_(8); XC = O
    BG = [40, 44, 48, 52, 56, 60, 80, 84, 232]
    vq.wait("xr")
    for j in range(4):
        k(f"v_lshlrev_b32 v{XC+2*j}, 16, v{XM+j}"); k(f"v_and_b32 v{XC+2*j+1}, 0xffff0000, v{XM+j}")
    for j in range(8): k(f"v_mov_b32 v{XC+8+j}, 0")
    vEW = 24
    k("s_lshl_b32 s8, s36, 11"); k(f"s_add_u32 s8, s8, {EXo}"); k(f"v_add_u32 v{vEW}, s8, v{vST}")
    for p_ in range(1, 4): k(f"v_xor_b32 v{vEW+p_}, {p_*2048}, v{vEW}")
    k("v_and_b32 v29, 31, v2"); k("v_lshlrev_b32 v29, 4, v29"); k(f"v_add_u32 v29, {MXo}, v29")
    k("s_and_b32 s8, s36, 3"); k("s_lshl_b32 s9, s8, 2"); k("v_add_u32 v30, s9, v29")
    k("s_lshr_b32 s9, s8, 1"); k("s_lshl_b32 s9, s9, 10"); k("s_and_b32 s8, s8, 1"); k("s_lshl_b32 s8, s8, 3"); k("s_add_u32 s8, s8, s9"); k(f"s_add_u32 s8, s8, {RXo}")
    k(f"v_add_u32 v28, s8, v{vST}")
    dlane(0)
    k("s_and_b32 s8, s37, 3"); k("s_lshl_b32 s8, s8, 5"); k("v_xor_b32 v21, s8, v21")
    k(f"v_mul_u32_u24 v{vD2}, 1152, v20"); k(f"v_add_u32 v{vD2}, v{vD2}, v21")
    k("v_bfe_u32 v0, v2, 4, 1"); k("v_and_b32 v1, 15, v2")
    k("v_lshlrev_b32 v21, 4, v1"); k("v_lshl_add_u32 v21, v0, 9, v21"); k(f"v_lshl_add_u32 v{vDR1}, v23, 8, v21"); k(f"v_lshl_add_u32 v{vXL}, v23, 10, v21")
    k("v_lshlrev_b32 v22, 3, v22")
    k("v_lshl_add_u32 v21, v20, 6, v22"); k("v_lshl_add_u32 v21, v23, 10, v21"); k(f"v_lshl_add_u32 v{vE[0]}, v0, 5, v21"); k(f"v_xor_b32 v{vO[0]}, 32, v{vE[0]}")
    k(f"v_add_u32 v{vE[1]}, 0x10000, v{vE[0]}"); k(f"v_add_u32 v{vO[1]}, 0x10000, v{vO[0]}")
    k("v_lshl_add_u32 v21, v20, 5, v22"); k("v_lshl_add_u32 v21, v23, 8, v21"); k(f"v_add_u32 v{vRR}, {RW1}, v21")
    k(f"v_and_b32 v{vFL}, 7, v2"); k(f"v_lshlrev_b32 v{vFL}, 2, v{vFL}")
    k("v_lshl_add_u32 v11, v23, 4, v1"); k("v_lshlrev_b32 v11, 2, v11")
    k("v_and_b32 v19, 31, v2"); k("v_lshlrev_b32 v19, 10, v19")
    k("s_mul_i32 s53, s40, 55296"); k(f"s_add_u32 s53, s53, {WS_WL:#x}"); k("s_add_u32 s52, s53, 36864"); k("s_add_u32 s53, s53, s41")
    k("s_lshl_b32 s54, s38, 12"); k("s_xor_b32 s54, s54, s41")
    k("s_lshl_b32 s8, s37, 3"); k("s_lshr_b32 s9, s2, 5"); k("s_add_u32 s8, s8, s9")
    k("s_lshl_b32 s47, s8, 15"); k("s_add_u32 s47, s47, s41"); k(f"s_add_u32 s47, s47, {W8_HR:#x}")
    k("s_lshl_b32 s8, s37, 6"); k("s_add_u32 s8, s8, s39"); k(f"s_lshl_b32 s49, s8, 7"); k(f"s_add_u32 s49, s49, {Z_FLAG:#x}")
    k("s_lshl_b32 s8, s38, 6"); k("s_add_u32 s8, s8, s39"); k(f"s_lshl_b32 s56, s8, 7"); k(f"s_add_u32 s56, s56, {Z_FLAG + 65536:#x}")
    k("s_lshl_b32 s8, s37, 2"); k("s_add_u32 s57, s56, s8")
    k("s_lshl_b32 s6, s45, 10"); k("s_add_u32 s6, s6, s50"); k(f"s_add_u32 s6, s6, {Z_HC:#x}")
    k(f"s_mov_b32 s7, {RETRY}")
    k("s_barrier")
    k("s_waitcnt vmcnt(0)")
    xm("oa")
    lcp1 = k.label("cp1"); lpj = k.label("pj")
    k("s_cmp_ge_u32 s36, 4"); k(f"s_cbranch_scc1 {lcp1}")
    for cp in range(2):
        if cp: k.put(lcp1)
        lr = k.label("pr"); lo = k.label("po"); k.put(lr)
        for n in range(9):
            if n % 4 == 0: k(f"s_add_u32 s9, s63, {(n//4)*4096}")
            k(f"buffer_load_dwordx4 v[{BG[n]}:{BG[n]+3}], v{vST}, s[12:15], s9 offen offset:{(n%4)*1024} sc1")
        for n in range(9):
            k(f"s_waitcnt vmcnt({8-n})")
            for e in range(3 - cp):
                d = (PA, PA+16, RA)[e]; a = AR[(n, e)]
                C = f"v[{d}:{d+15}]" if n else (f"v[{XC}:{XC+15}]" if e == 0 else "0")
                k(f"v_mfma_f32_32x32x16_bf16 v[{d}:{d+15}], v[{a}:{a+3}], v[{BG[n]}:{BG[n]+3}], {C}")
        for j in range(6): k(f"ds_write_b128 v{vEW}, v[{PA+8+4*j}:{PA+11+4*j}] offset:{(j//2)*16384 + (j%2)*1024}")
        k(f"v_cmp_u_f32 vcc, v{PA+8}, v{PA+8}")
        if cp == 0:
            for j in range(2): k(f"ds_write_b128 v{vEW}, v[{RA+4*j}:{RA+4*j+3}] offset:{RXo-EXo + j*1024}")
            k("s_mov_b64 exec, s[58:59]")
            k(f"ds_write_b32 v30, v{RA+8}")
            k("s_mov_b64 exec, -1")
        k(f"s_cbranch_vccz {lpj}")
        k("s_sub_u32 s7, s7, 1"); k(f"s_cbranch_scc0 {lr}")
        if cp == 0: k(f"s_branch {lpj}")
    k.put(lpj)
    xm("pm")
    k("s_waitcnt lgkmcnt(0)"); k("s_barrier")
    ER = 40
    k(f"ds_read_b128 v[{ER-4}:{ER-1}], v29")
    for j in range(6): k(f"ds_read_b128 v[{ER+4*j}:{ER+4*j+3}], v{vEW+1+j//2} offset:{(j//2)*16384 + (j%2)*1024}")
    k("s_waitcnt lgkmcnt(6)")
    k(f"v_add_f32 v{ER-4}, v{ER-4}, v{ER-3}"); k(f"v_add_f32 v{ER-2}, v{ER-2}, v{ER-1}"); k(f"v_add_f32 v{ER-4}, v{ER-4}, v{ER-2}"); k(f"v_add_f32 v{MXR}, v{MXR}, v{ER-4}")
    for e in range(8): k(f"v_sub_f32 v{PA+e}, v{PA+e}, v{MXR}")
    for j in range(6):
        k(f"s_waitcnt lgkmcnt({5-j})")
        for e in range(4): k(f"v_add_f32 v{PA+4*(j%2)+e}, v{PA+4*(j%2)+e}, v{ER+4*j+e}")
    for e in range(4): k(f"v_cvt_pk_bf16_f32 v{ER-4+e}, v{PA+2*e}, v{PA+2*e+1}")
    k(f"buffer_store_dwordx4 v[{ER-4}:{ER-1}], v{vST}, s[12:15], s6 offen sc1")
    k(f"v_mul_f32 v32, v{PA}, v{PA}"); k(f"v_mul_f32 v33, v{PA+1}, v{PA+1}")
    for e in range(2, 8): k(f"v_fmac_f32 v{32+e%2}, v{PA+e}, v{PA+e}")
    lnr = k.label("nr"); lnm = k.label("nm")
    k("s_cmp_lt_u32 s36, 4"); k(f"s_cbranch_scc1 {lnr}")
    for j in range(4): k(f"ds_read_b64 v[{ER+2*j}:{ER+2*j+1}], v28 offset:{j*2048}")
    k(f"v_lshlrev_b32 v0, 16, v{XRS}"); k(f"v_and_b32 v1, 0xffff0000, v{XRS}")
    k(f"v_sub_f32 v0, v0, v{MXR}"); k(f"v_sub_f32 v1, v1, v{MXR}")
    k("s_lshl_b32 s8, s38, 10"); k("s_add_u32 s8, s8, s50"); k("s_and_b32 s9, s36, 3"); k("s_lshl_b32 s9, s9, 2"); k("s_add_u32 s8, s8, s9"); k(f"s_add_u32 s8, s8, {Z_HC + 32768:#x}")
    for j in range(4):
        k(f"s_waitcnt lgkmcnt({3-j})")
        k(f"v_add_f32 v0, v0, v{ER+2*j}"); k(f"v_add_f32 v1, v1, v{ER+2*j+1}")
    k("v_cvt_pk_bf16_f32 v34, v0, v1")
    k(f"buffer_store_dword v34, v{vST}, s[12:15], s8 offen sc1")
    k("v_fmac_f32 v32, v0, v0"); k("v_fmac_f32 v33, v1, v1")
    k(f"s_branch {lnm}")
    k.put(lnr)
    k("s_cmp_lg_u32 s45, 0"); k(f"s_cbranch_scc1 {lnm}")
    k("s_lshl_b32 s8, s3, 7"); k(f"s_add_u32 s8, s8, {Z_MN:#x}"); k("v_and_b32 v0, 31, v2"); k("v_lshlrev_b32 v0, 2, v0"); k(f"v_mov_b32 v1, v{MXR}")
    k(f"buffer_store_dword v1, v0, s[12:15], s8 offen sc1")
    k.put(lnm)
    k("v_add_f32 v32, v32, v33"); k("s_lshl_b32 s8, s36, 8"); k(f"s_add_u32 s8, s8, {SQo}"); k("v_lshl_add_u32 v33, v2, 2, s8")
    k("ds_write_b32 v33, v32")
    k("s_lshl_b32 s59, s3, 9"); k("s_lshl_b32 s8, s38, 2"); k("s_add_u32 s59, s59, s8"); k(f"s_add_u32 s59, s59, {Z_SQ:#x}")
    xm("hs")
    k("s_mul_i32 s8, s37, 576"); k("s_lshl_b32 s9, s36, 3"); k("s_add_u32 s9, s9, s8"); k("s_mul_i32 s9, s9, 1152"); k("s_lshl_b32 s3, s38, 8"); k("s_add_u32 s9, s9, s3")
    k("s_lshr_b32 s3, s37, 2"); k("s_lshl_b32 s3, s3, 7"); k("s_add_u32 s44, s9, s3"); k("s_xor_b32 s3, s3, 128"); k("s_add_u32 s45, s9, s3")
    for x in range(4): k(f"s_xor_b32 s9, s38, {x}"); k(f"s_mul_i32 s{60+x}, s9, {128*1152}")
    k("s_lshl_b32 s8, s38, 2"); k("s_add_u32 s50, s49, s8")
    k("s_cmp_eq_u32 s36, s37"); k("s_cselect_b32 s58, 1.0, 0")
    k(f"s_add_u32 s8, s46, {Z_HC:#x}")
    k(f"s_mov_b32 s7, {RETRY}")
    k("s_waitcnt vmcnt(0)")
    xm("ha")
    vq.q = []
    lh = k.label("hint"); lho = k.label("hok"); k.put(lh)
    vq("hint", f"buffer_load_dword v{vPL}, v19, s[12:15], s8 offen offset:1020 sc1")
    emit(xload(0)); emit(xload(1))
    k("s_sub_u32 s7, s7, 1"); k(f"s_cbranch_scc1 {lho}")
    vq.wait("hint")
    k(f"v_cmp_eq_u32 vcc, -1, v{vPL}")
    k("s_nop 1")
    k(f"s_cbranch_vccnz {lh}")
    k.put(lho)
    xm("hv")
    NX0 = P.get("nx0", 3)
    for s in range(2, NX0): emit(xload(s))
    ool = []
    def publish(stage, tags, tn=None):
        def f():
            xm(f"p{stage}a")
            k(f"s_waitcnt vmcnt({min(vq.n(t) for t in tags)})")
            xm(f"p{stage}b")
            k(f"v_mov_b32 v1, {stage}")
            k("s_mov_b64 exec, 1")
            if spoll: k(f"s_add_u32 s9, s50, {stage << 16:#x}")
            vq("fl", f"buffer_store_dword v1, off, s[12:15], {('s50', 's57')[stage-1]} sc1")
            k("s_mov_b64 exec, -1")
        return ("call", f)
    def poll_issue(n):
        if spoll: return [f"s_add_u32 s68, s49, {n << 16:#x}", "s_buffer_load_dwordx4 s[64:67], s[12:15], s68"]
        return ("vm", f"poll{n}", f"buffer_load_dword v{vPL}, v{vFL}, s[12:15], {('s49', 's56')[n-1]} offen sc1")
    def ptest(stage, lab):
        k(f"v_cmp_gt_u32 vcc, {stage}, v{vPL}"); k(f"s_and_b32 vcc_lo, vcc_lo, {(15, 255)[stage-1]}"); k(f"s_cbranch_scc1 {lab}")
        if stage == 3 and selfill:
            k(f"v_cmp_gt_u32 vcc, 2, v{vPL}"); k(f"s_and_b64 vcc, vcc, s[58:59]"); k(f"s_cbranch_scc1 {lab}")
    def poll_check(stage):
        def f():
            xm(f"c{stage}a")
            if spoll: k("s_waitcnt lgkmcnt(0)"); lq.clear()
            else: vq.wait(f"poll{stage}")
            xm(f"c{stage}b")
            ls = k.label("spin"); lb = k.label("go")
            if spoll:
                k("s_and_b64 s[64:65], s[64:65], s[66:67]"); k("s_and_b32 s64, s64, s65"); k(f"s_cbranch_scc0 {ls}")
            else: ptest(stage, ls)
            k.put(lb); ool.append((ls, lb, stage))
            xm(f"c{stage}c")
        return ("call", f)
    fr = []
    def ard(slot, grp, t, ks):
        o = slot*SL + grp*8192 + 4*ks*1024 + (t >> 1)*512
        v = (vO if t & 1 else vE)[o >> 16]
        return [(v, o & 0xffff), (v, (o & 0xffff) + 2048)]
    GRP = [[0, 1, 2], [3, 4, 5], [6, 7, 8], [9, 10, 11], [12, 13, 14], [15, 16, 17]]
    km = lambda cc: [(c, t, ks, m) for c in cc for ks in range(2) for t in range(4) for m in range(2)]
    pm = lambda cc, o=(0, 1): [(c, t, ks, m) for pr in o for c in cc for ks in range(2) for t in (2*pr, 2*pr+1) for m in range(2)]
    for G in GRP:
        seq = {6: km([6, 7]) + pm([8]), 9: pm([9], (1, 0)) + km([10, 11]), 15: pm(G)}.get(G[0], km(G))
        for c, t, ks, m in seq:
            q = c % 9
            s = 2*q + ks
            fr.append(dict(c=f"C{G[0]}", rd=ard(c % 6, m, t, ks), mm=[(blk(2*t+m, tt), xr(s, tt), s == 0) for tt in range(2)]))
        if G[0] == 6:
            for s in range(18):
                for m in range(2):
                    o = m*18432 + s*1024
                    fr.append(dict(c="RP", rd=[(vRR, o), (vRR, o+512)], mm=[(blk(2+m, tt), xr(s, tt), s == 0) for tt in range(2)]))
    def dfrag(p, j, cn):
        c, ks = KS[j]
        if p == 8:
            q = 16 + ks if c == 4 else 2*(2*DX[c][0] + DX[c][1]) + ks
            o = RWD - RW1 + q*1024; rd = [(vRR, o), (vRR, o+512)]
        else: rd = ard(DSL[c], p >> 2, p & 3, ks)
        fr.append(dict(c=cn, rd=rd, mm=[(blk(p, tt), xr(j, tt), j == 0 and p not in (0, 8)) for tt in range(2)], need=(f"h{j}" if c != 5 else None)))
    for ps in ((8, 0, 1, 2, 3), (4, 5, 6, 7)):
        for j in range(2):
            for p in ps: dfrag(p, j, "D0")
    for j in range(2, KA):
        for p in range(8, 0, -1): dfrag(p, j, "D1")
    for p in range(8, 0, -1):
        for j in range(KA, 18): dfrag(p, j, f"B{p}")
    for j in range(2, 18): dfrag(0, j, "G")
    N = len(fr)
    cs_ = {}; order = []
    for g, e in enumerate(fr):
        if e["c"] not in cs_: cs_[e["c"]] = g; order.append(e["c"])
    cs_["END"] = N; order.append("END")
    def at(c, frac=0.0):
        a = cs_[c]; b = cs_[order[order.index(c)+1]]
        return a + int(frac*(b - a))
    fill = [[] for _ in range(N + 1)]
    def spread(items, g0, g1):
        n = len(items); w = g1 - g0
        for i, it in enumerate(items): fill[g0 + (i*w)//n].append(it)
    bars = {f"C{G[0]}": ([f"dC{G[-1]}"] if G[0] >= 6 else []) for G in GRP}
    bars.update({"RP": ["dR0"], "D0": ["dD1", "dR1"], "D1": ["dD4"], "B8": ["dD8"]})
    bar_at = {cs_[c] - B_ - 1: c for c in bars if cs_[c] > 0}
    ab = lambda c: cs_[c] - B_
    def hdst(pr, n, tt): return blk(4*pr, tt) if n == 0 else XR + 8*(10+pr) + 4*tt
    def hcalc(pr, n, tt):
        ga, ua, gb, ub = blk(4*pr, tt), blk(4*pr+1, tt), blk(4*pr+2, tt), blk(4*pr+3, tt); d = hdst(pr, n, tt)
        out = [f"v_mul_f32 v{ua+e}, v{ua+e}, v{ga+e}" for e in range(4)] + [f"v_mul_f32 v{ub+e}, v{ub+e}, v{gb+e}" for e in range(4)]
        return out + [f"v_cvt_pk_bf16_f32 v{d+e}, v{(ua, ub)[e//2]+2*(e%2)}, v{(ua, ub)[e//2]+2*(e%2)+1}" for e in range(4)]
    def hstore(pr, n, tt):
        d = hdst(pr, n, tt)
        return [f"s_add_u32 s9, s48, {(n*4+pr*2+tt) << 13:#x}", ("vm", f"hs{n}{pr}", f"buffer_store_dwordx4 v[{d}:{d+3}], v{vST}, s[12:15], s9 offen {hst}")]
    def hcalcR():
        g, u = blk(2), blk(3)
        out = [f"v_mul_f32 v{u+e}, v{u+e}, v{g+e}" for e in range(8)] + [f"v_cvt_pk_bf16_f32 v{g+e}, v{u+2*e}, v{u+2*e+1}" for e in range(4)]
        out.append(["s_lshl_b32 s9, s38, 13", "s_add_u32 s9, s9, s47", ("vm", "hsR", f"buffer_store_dwordx4 v[{g}:{g+3}], v{vST}, s[12:15], s9 offen {hst}")])
        return out
    def psend(p):
        a = blk(p)
        return [f"v_cvt_pk_bf16_f32 v{a+e}, v{a+2*e}, v{a+2*e+1}" for e in range(4)] + \
               [paddr(p) + [("vm", f"ps{p}", f"buffer_store_dwordx4 v[{a}:{a+3}], v{vST}, s[12:15], s9 offen sc1")]]
    if lfl:
        lf = P["lf"]
        fill[0] += [f"v_mov_b32 v{FQ+e}, -1" for e in range(4)]
        if len(lf) == 2: spread(lfl, *lf)
        else:
            for it, g in zip(lfl, lf): fill[g].append(it)
    spread(sum([xload(s) for s in range(NX0, 18)], []), 0, P.get("xend", 100))
    if P.get("dsch", 1) == 0:
        spread(dmaC(6) + dmaC(7) + dmaC(8) + dmaR(0), ab("C3"), at("C3", .8))
        spread(dmaC(9) + dmaC(10) + dmaC(11), ab("C6"), at("C6", .6))
        spread(dmaC(12) + dmaC(13) + dmaC(14), ab("RP"), at("RP", .9))
        spread(dmaD(0) + dmaD(1) + dmaR(1), ab("C9"), at("C9", .8))
    else:
        spread(dmaC(6) + dmaC(7) + dmaC(8), ab("C3"), at("C3", P.get("d6", .6)))
        spread(dmaR(0), at("C6") + P.get("r0", -10), at("C6") + P.get("r0", -10) + 20)
        spread(dmaC(9) + dmaC(10) + dmaC(11), at("C6", .3), at("C6", .95))
        spread(dmaC(12) + dmaC(13) + dmaC(14), ab("RP"), at("RP", .9))
        spread(dmaD(0) + dmaD(1) + dmaR(1), ab("C9"), at("C9", .8))
    spread(dmaC(15) + dmaC(16) + dmaC(17), ab("C12"), at("C12", .6))
    spread(dmaD(2) + dmaD(3) + dmaD(4), ab("C15"), at("C15", .6))
    spread(dmaD(5) + dmaD(6) + dmaD(7), ab("D0") + 8, ab("D0") + 30)
    spread(dmaD(8), ab("D0") + 30, ab("D0") + 36)
    RP, C9, D0 = at("RP"), at("C9"), at("D0")
    spread(hcalc(0, 0, 0) + hcalc(0, 0, 1), RP - 7, RP)
    spread(hcalc(1, 0, 0) + hcalc(1, 0, 1), RP + 1, RP + 12)
    for n, (pr, tt) in enumerate(((0, 0), (0, 1), (1, 0), (1, 1))): fill[RP - 2 + 11*n].append(hstore(pr, 0, tt))
    spread(hcalcR(), C9 + 1, C9 + 8)
    spread(hcalc(0, 1, 0) + [hstore(0, 1, 0)] + hcalc(0, 1, 1), D0 - 25, D0 - 13); fill[D0 - 10].append(hstore(0, 1, 1))
    spread(hcalc(1, 1, 0) + [hstore(1, 1, 0)] + hcalc(1, 1, 1) + [hstore(1, 1, 1)], D0 + 1, D0 + 10)
    if not nox:
        fill[C9 + 26].append(publish(1, ["hsR"] + (["sf"] if lfl else [])))
        fill[C9 + 38].append(poll_issue(1)); fill[C9 + 48].append(poll_check(1))
        spread(sum([hload(j) for j in range(10)], []), C9 + 49, D0 - P.get("h10", 20))
        spread(sum([hload(j) for j in range(12, 15)], []), D0 + P.get("hb0", 14), D0 + P.get("hb0", 14) + 12)
        spread(sum([hload(j) for j in range(15, 18)], []), D0 + P.get("hb1", 44), D0 + P.get("hb1", 44) + 12)
    sw = [("wait", "h9")] if not nox else []
    for j in (8, 9): sw += [f"v_swap_b32 v{XR+8*j+2+e}, v{XR+8*j+4+e}" for e in range(2)]
    spread(sw, D0 + 12, D0 + 16)
    if lfl and not nox:
        fill[D0 + 13].append(publish(2, ["sf2"]))
        fill[at("B8") + 8].append(poll_issue(2)); fill[at("B6")].append(poll_check(2))
    SUM = XR; XT = XR + 8; HR = 8
    ool2 = []
    def em(tag, text, track):
        if track: vq(tag, text)
        else: k(text)
    def maxchain(regs):
        o = [f"v_max_u32 v{vPL}, v{regs[0]}, v{regs[1]}"]
        for i in range(2, len(regs), 2): o.append(f"v_max3_u32 v{vPL}, v{regs[i]}, v{regs[i+1]}, v{vPL}")
        return o
    def scheck(regs, loader):
        def f():
            ls = k.label("retry"); lb = k.label("ok")
            k(f"v_cmp_eq_u32 vcc, -1, v{vPL}"); k(f"s_cbranch_vccnz {ls}"); k.put(lb)
            ool2.append((ls, lb, regs, loader))
        return maxchain(regs) + [("call", f)]
    def xrl(s):
        def f(track=False):
            for so, (_, _, tx) in xload(s, 'sc1'): k(so); k(tx)
        return f
    def xcheck(s): return [("wait", f"x{s}")] + scheck(list(range(XR+8*s, XR+8*s+8)), xrl(s))
    CW = P.get("cw", 3)
    for s in range(1, 18):
        g = 8*s if s < 16 else 128 - (17 - s)*CW
        spread(xcheck(s), g - CW, g)
    B8 = blk(8)
    def sqred():
        l = k.label("nq"); k(f"s_cmp_lg_u32 s36, {P.get('sqw', 0)}"); k(f"s_cbranch_scc1 {l}")
        k(f"v_lshlrev_b32 v0, 2, v2"); k(f"v_add_u32 v0, {SQo}, v0")
        for j in range(4): k(f"ds_read2st64_b32 v[{B8+2*j}:{B8+2*j+1}], v0 offset0:{2*j} offset1:{2*j+1}")
        k("s_waitcnt lgkmcnt(0)")
        for st in (4, 2, 1):
            for j in range(st): k(f"v_add_f32 v{B8+j}, v{B8+j}, v{B8+j+st}")
        k(f"v_mov_b32 v{B8+1}, v{B8}"); k(f"v_permlane32_swap_b32 v{B8}, v{B8+1}"); k(f"v_add_f32 v{B8}, v{B8}, v{B8+1}")
        k("s_mov_b32 exec_hi, 0")
        k(f"buffer_store_dword v{B8}, v{vST}, s[12:15], s59 offen sc1")
        k("s_mov_b32 exec_hi, -1")
        if lfl:
            for e in range(4): k(f"v_mov_b32 v{FQ+e}, -1")
        k.put(l)
    fill[ab("C3") + 1].append(("call", sqred))
    def mload(track=True):
        k("s_lshl_b32 s9, s39, 7"); k(f"s_add_u32 s9, s9, {Z_MN:#x}")
        em("mn", f"buffer_load_dword v{T}, v11, s[12:15], s9 offen sc1", track)
        k("s_lshl_b32 s9, s39, 9"); k(f"s_add_u32 s9, s9, {Z_SQ:#x}"); k("v_lshlrev_b32 v0, 2, v11")
        em("mn", f"buffer_load_dwordx4 v[{B8}:{B8+3}], v0, s[12:15], s9 offen sc1", track)
    fill[RP + 2].append(("call", mload))
    a_, b_ = B8, B8+1
    stt = [[("wait", "mn")] + scheck([T, T, B8, B8+1, B8+2, B8+3], mload), f"v_add_f32 v{a_}, v{a_}, v{b_}", f"v_add_f32 v{B8+2}, v{B8+2}, v{B8+3}",
           f"v_add_f32 v{a_}, v{a_}, v{B8+2}", f"v_mov_b32 v{b_}, {fx(1e-5)}", f"v_fmac_f32 v{b_}, {fx(1.0/576)}, v{a_}", f"v_rcp_f32 v{vR2}, v{b_}",
           f"v_mul_f32 v{T}, v{T}, v{b_}", f"v_mov_b32 v{vR2+1}, v{vR2}", f"v_mov_b32 v{T+1}, v{T}",
           f"v_permlane32_swap_b32 v{vR2}, v{vR2+1}", f"v_permlane32_swap_b32 v{T}, v{T+1}"]
    spread(stt, C9 + 50, C9 + 64)
    spread([f"v_mul_f32 v{blk(8,tt)+e}, s58, v{T+tt}" for tt in range(2) for e in range(4)], D0 - 13, D0 - 9)
    spread([f"v_mov_b32 v{blk(0,tt)+e}, v{T+tt}" for tt in range(2) for e in range(4)], D0 - 9, D0 - 2)
    def hbl(j0):
        def f(track=False):
            for j in range(j0, j0+3):
                for so, (_, _, tx) in hload(j): k(so); k(tx)
        return f
    if not nox:
        for j0 in (12, 15):
            gu = at("B8") + j0 - KA
            ck = scheck(list(range(XR+8*j0, XR+8*j0+24)), hbl(j0))
            if j0 == 12: fill[gu - 3].append([("call", lambda: xm("k0a")), ("wait", f"h{j0+2}"), ("call", lambda: xm("k0b"))] + ck + [("call", lambda: xm("k0c"))])
            else: fill[gu - 1].append([("call", lambda: xm("k1a")), ("wait", f"h{j0+2}"), ("call", lambda: xm("k1b"))] + ck + [("call", lambda: xm("k1c"))])
    def prload(p):
        def f(track=True):
            k(f"s_xor_b32 s9, s48, {(p << 21) | ((8-p) << 13):#x}" if ptre else f"s_add_u32 s9, s55, {p << PP_:#x}")
            em(f"pr{p}", f"buffer_load_dwordx4 v[{blk(p,1)}:{blk(p,1)+3}], v{vST}, s[12:15], s9 offen sc1", track)
        return f
    def pradd(p):
        r = blk(p, 1); o = [[("wait", f"pr{p}")] + scheck([r+e for e in range(4)], prload(p))]
        for e in range(4):
            if p == 7: o += [f"v_lshlrev_b32 v{SUM+2*e}, 16, v{r+e}", f"v_and_b32 v{SUM+2*e+1}, 0xffff0000, v{r+e}"]
            else: o += [[f"v_lshlrev_b32 v{e%2}, 16, v{r+e}", f"v_and_b32 v{r+e}, 0xffff0000, v{r+e}", f"v_add_f32 v{SUM+2*e}, v{SUM+2*e}, v{e%2}"], f"v_add_f32 v{SUM+2*e+1}, v{SUM+2*e+1}, v{r+e}"]
        return o
    fill[at("B8") - 4] += [
                       "v_and_b32 v0, 15, v2", f"v_mul_u32_u24 v{vOUT}, 1152, v0", "v_lshrrev_b32 v1, 4, v2", f"v_lshl_add_u32 v{vOUT}, v1, 3, v{vOUT}",
                       f"v_and_b32 v{vXL}, 0x3ff, v{vXL}", "v_lshrrev_b32 v1, 5, v2", f"v_lshl_add_u32 v{vXL}, v1, 3, v{vXL}"]
    nm = [f"B{p}" for p in range(8, 0, -1)] + ["G"]
    for n, p in enumerate(range(8, 0, -1)): spread(psend(p), at(nm[n+1]) + 1, at(nm[n+1]) + 4)
    LDL = P.get("ldl", 20); ADL = P.get("adl", 10)
    tail = []
    if not nox:
        for p in range(7, 0, -1):
            gs = at(nm[8-p+1]) + 4
            gl = min(gs + LDL, N - P.get("lastld", 8) + (0 if p > 1 else 0))
            fill[gl].append(("call", prload(p)))
            ga = gl + ADL
            if ga + 6 <= N: spread(pradd(p), ga, ga + 6)
            else: tail += pradd(p)
    def hres(rt):
        def f():
            if rt: k("s_add_u32 s9, s38, 32")
            else: k("s_lshl_b32 s9, s38, 3"); k("s_add_u32 s9, s9, s37")
            k("s_lshl_b32 s3, s9, 5"); k("s_add_u32 s3, s3, s46")
            k("s_lshl_b32 s9, s9, 10"); k("s_add_u32 s9, s9, s46"); k(f"s_add_u32 s9, s9, {Z_HC:#x}")
            for tt in range(2): em("hr", f"buffer_load_dwordx2 v[{HR+2*tt}:{HR+2*tt+1}], v{vXL}, s[12:15], s9 offen offset:{tt*256} sc1", not rt)
        return f
    def fin(src, tt, so):
        o = []
        for e in range(2):
            h = HR + 2*tt + e
            o += [f"v_lshlrev_b32 v0, 16, v{h}", f"v_and_b32 v1, 0xffff0000, v{h}",
                  f"v_fma_f32 v{src+2*e}, v{src+2*e}, v{vR2+tt}, v0", f"v_fma_f32 v{src+2*e+1}, v{src+2*e+1}, v{vR2+tt}, v1",
                  f"v_cvt_pk_bf16_f32 v{h}, v{src+2*e}, v{src+2*e+1}"]
        if tt: o.append(f"s_add_u32 {so}, {so}, {16*1152}")
        o.append(f"buffer_store_dwordx2 v[{HR+2*tt}:{HR+2*tt+1}], v{vOUT}, s[32:35], {so} offen")
        return o
    RB = [blk(8), blk(8, 1), blk(7), blk(6), blk(5), blk(4), XT, XT+4]
    def rloads(track=False):
        for g in range(8):
            k(f"s_xor_b32 s9, s48, {g << 21:#x}" if ptre else f"s_add_u32 s9, s51, {g << PG:#x}"); k(f"buffer_load_dwordx4 v[{RB[g]}:{RB[g]+3}], v{vST}, s[12:15], s9 offen sc1")
    def rblock1():
        l = k.label("nr"); k("s_cmp_lg_u32 s36, s37"); k(f"s_cbranch_scc1 {l}")
        hres(True)(); k("s_mov_b32 s6, s3"); rloads(); k.put(l)
        vq("rmark", f"buffer_load_dword v{T+3}, v{vFL}, s[12:15], s49 offen")
    def rblock2():
        l = k.label("nr"); k("s_cmp_lg_u32 s36, s37"); k(f"s_cbranch_scc1 {l}")
        vq.wait("rmark")
        emit(scheck([r+e for r in RB for e in range(4)], rloads))
        for tt in range(2):
            for g in range(8):
                for e in range(2):
                    r = RB[g] + 2*tt + e
                    if g == 0: k(f"v_lshlrev_b32 v{T+2*e}, 16, v{r}"); k(f"v_and_b32 v{T+2*e+1}, 0xffff0000, v{r}")
                    else:
                        k(f"v_lshlrev_b32 v{e}, 16, v{r}"); k(f"v_and_b32 v{r}, 0xffff0000, v{r}")
                        k(f"v_add_f32 v{T+2*e}, v{T+2*e}, v{e}"); k(f"v_add_f32 v{T+2*e+1}, v{T+2*e+1}, v{r}")
            for x in fin(T, tt, "s6"): k(x)
        k.put(l)
    if not nox:
        fill[at("B3") + 5].append(("call", rblock1))
        fill[at("B1") + 0].append(("call", rblock2))
    fill[at("B1") + 6].append(("call", hres(False)))
    for x in nm: fill[at(x)].append(("call", (lambda x=x: xm("s" + x))))
    st_ = dict(rp=0, half=0, readable=0); waited = set()
    def barrier(c):
        mk = stamp and (marks is None or c in marks)
        if bars[c]: k(f"s_waitcnt vmcnt({min(vq.n(t) for t in bars[c])})")
        if mk: k("s_waitcnt lgkmcnt(0)"); lq.clear()
        if c != "C0": k("s_barrier")
        nxt = [x for x in order[order.index(c)+1:] if x in bars or x == "END"][0]
        st_["readable"] = cs_[nxt]
        if mk: tl.mark(c, True)
    def issue_read(g, maxn):
        n = 0
        while st_["rp"] < N and st_["rp"] <= g + DEPTH and st_["rp"] < st_["readable"] and n < maxn:
            rp = st_["rp"]; m = fr[rp]; fb = FR + 4*(rp % NB)
            if True:
                e = st_["half"]; v, o = m["rd"][e]
                k(f"ds_read_b64_tr_b16 v[{fb+2*e}:{fb+2*e+1}], v{v} offset:{o}"); lq.append(rp)
                st_["half"] ^= 1
                if e: st_["rp"] += 1
            n += 1
    barrier("C0")
    issue_read(-1, 2*DEPTH)
    emit(xcheck(0))
    if prio is not None:
        l = k.label("pr"); k("s_cmp_lt_u32 s36, 4"); k(f"s_cbranch_scc1 {l}"); k(f"s_setprio {prio}"); k.put(l)
    for g in range(N):
        m = fr[g]; w = []
        nd = m.get("need")
        if nd and nox and nd[0] == "h": nd = None
        if nd and nd not in waited: w.append(f"vmcnt({vq.n(nd)})"); waited.add(nd)
        assert st_["rp"] > g, (g, st_)
        if g in lq:
            idx = max(i for i, t in enumerate(lq) if t == g)
            w.append(f"lgkmcnt({min(15, len(lq) - 1 - idx)})"); del lq[:idx+1]
        if w: k("s_waitcnt " + " ".join(w))
        fb = FR + 4*(g % NB); fl = fill[g]; nmm = len(m["mm"])
        for n, (acc, Bop, first) in enumerate(m["mm"]):
            C = "0" if first else f"v[{acc}:{acc+3}]"
            k(f"v_mfma_f32_16x16x32_bf16 v[{acc}:{acc+3}], v[{fb}:{fb+3}], {Bop}, {C}")
            if n == nmm - 1 and g in bar_at:
                c = bar_at[g]
                assert st_["rp"] >= cs_[c], (c, g, st_)
                barrier(c)
            lag = 2*(min(g + DEPTH + 1, st_["readable"]) - st_["rp"]) - st_["half"]
            issue_read(g, 1 if (n == 0 and lag <= 2) else (lag+1)//2 if n == 0 else lag)
            for it in fl[(n*len(fl))//nmm:((n+1)*len(fl))//nmm]: emit(it)
    if stamp: tl.mark("mf")
    emit(tail)
    vq.wait("hr")
    for tt in range(2):
        a = blk(0, tt)
        if not nox:
            for e in range(4): k(f"v_add_f32 v{a+e}, v{a+e}, v{SUM+4*tt+e}")
        for x in fin(a, tt, "s3"): k(x)
    if stamp:
        k("s_bitcmp1_b32 s36, 0"); k(f"s_cbranch_scc1 {end}"); k("s_lshr_b32 s36, s36, 1")
        tl.finish(36, 10, 14, 16)
    k.put(end)
    k("s_endpgm")
    for (ls, lb, stage) in ool:
        k.put(ls)
        k(f"s_mov_b32 s7, {RETRY}")
        lp = k.label("lp"); k.put(lp)
        k("s_sleep 1")
        k(f"buffer_load_dword v{vPL}, v{vFL}, s[12:15], {('s49', 's56')[stage-1]} offen sc1")
        k("s_sub_u32 s7, s7, 1"); k(f"s_cbranch_scc1 {lb}")
        k("s_waitcnt vmcnt(0)")
        ptest(stage, lp)
        k(f"s_branch {lb}")
    for (ls, lb, regs, loader) in ool2:
        k.put(ls)
        k(f"s_mov_b32 s7, {RETRY}")
        lp = k.label("lp"); k.put(lp)
        loader(False)
        k("s_waitcnt vmcnt(0)")
        k("s_sub_u32 s7, s7, 1"); k(f"s_cbranch_scc1 {lb}")
        for x in maxchain(regs): k(x)
        k(f"v_cmp_eq_u32 vcc, -1, v{vPL}")
        k(f"s_cbranch_vccnz {lp}")
        k(f"s_branch {lb}")
    for (ln, lb, t) in aool:
        k.put(ln)
        for r in range(16): k(f"v_mov_b32 v{S_(t)+r}, {fx(-1e30)}")
        k(f"s_branch {lb}")
    return k, (name, 256, 512, 160*1024)
```

```python
from common import *
import math
def gen_k1(name="qkv_kernel", stamp=False, DEPTH=6, zflags=True, pf=0, helper=None, mx=False, mt=None, mtm='', dly=0, mf_=None):
    k = Kern(name); end = f"{name}_end"
    sp = Stamper(k, stamp, trace=0, base=88)
    NWG = 224
    k(f"s_cmp_ge_u32 s2, {NWG}"); k(f"s_cbranch_scc1 {name}_pf" if pf else f"s_cbranch_scc1 {end}")
    k("s_load_dwordx4 s[4:7], s[0:1], 0")
    k("s_load_dwordx2 s[10:11], s[0:1], 72")
    if mt is not None:
        for j in range(3): k(f"s_load_dwordx2 s[{60+4*j}:{61+4*j}], s[0:1], {32+8*j}")
    sp.start()
    if dly:
        k("s_memrealtime s[80:81]"); k("s_waitcnt lgkmcnt(0)"); k(f"s_add_u32 s82, s80, {dly}"); k("s_mov_b32 s83, 100000")
        l = k.label("dl"); k.put(l); l2 = k.label("dl2")
        k("s_memrealtime s[80:81]"); k("s_waitcnt lgkmcnt(0)"); k("s_sub_u32 s83, s83, 1"); k(f"s_cbranch_scc1 {l2}")
        k("s_sub_u32 s84, s82, s80"); k("s_cmp_gt_i32 s84, 0"); k(f"s_cbranch_scc1 {l}"); k.put(l2)
    k("v_lshrrev_b32 v1, 6, v0"); k("v_and_b32 v2, 63, v0")
    k("v_readfirstlane_b32 s36, v1")
    k("s_and_b32 s37, s2, 7"); k("s_lshl_b32 s37, s37, 2"); k("s_bfe_u32 s42, s2, 0x20003"); k("s_or_b32 s37, s37, s42")
    k("s_lshr_b32 s38, s2, 5")
    k("s_and_b32 s39, s36, 1")
    k("s_lshr_b32 s40, s36, 1")
    k("s_lshl_b32 s41, s38, 9"); k("s_lshl_b32 s42, s36, 7"); k("s_add_u32 s41, s41, s42")
    k("s_lshl_b32 s43, s36, 13")
    k("s_lshl_b32 s44, s37, 6"); k("s_lshl_b32 s42, s36, 4"); k("s_add_u32 s44, s44, s42"); k("s_mul_i32 s44, s44, 1152")
    k("s_mul_i32 s45, s36, 18432")
    vDW, vDX0, vDX1, vA, vXR, vSTQ, vSTV = 3, 4, 5, 6, 8, 12, 13
    vRd = [14, 15]
    vT = 16
    k("v_and_b32 v16, 3, v2"); k("v_lshlrev_b32 v16, 4, v16")
    k("v_bfe_u32 v17, v2, 2, 3")
    k("v_lshrrev_b32 v18, 5, v2")
    k("v_lshl_add_u32 v16, v18, 6, v16")
    k(f"v_mul_u32_u24 v{vDW}, 3456, v17"); k(f"v_add_u32 v{vDW}, v{vDW}, v16")
    k("v_lshrrev_b32 v16, 3, v2"); k("v_and_b32 v17, 7, v2"); k("v_lshrrev_b32 v19, 1, v16"); k("v_xor_b32 v17, v17, v19")
    k("v_mul_u32_u24 v16, 1152, v16")
    k(f"v_lshl_add_u32 v{vDX0}, v17, 4, v16")
    k("v_xor_b32 v17, 4, v17")
    k(f"v_lshl_add_u32 v{vDX1}, v17, 4, v16")
    k("v_bfe_u32 v16, v2, 2, 2"); k("v_lshlrev_b32 v16, 6, v16")
    k("v_bfe_u32 v17, v2, 4, 1"); k("v_lshl_add_u32 v16, v17, 5, v16")
    k("v_and_b32 v17, 3, v2"); k("v_lshl_add_u32 v16, v17, 3, v16")
    k("v_lshl_add_u32 v16, v18, 10, v16")
    k("s_lshl_b32 s42, s40, 14")
    k(f"v_add_u32 v{vA}, s42, v16")
    k("v_and_b32 v16, 31, v2"); k("v_lshrrev_b32 v17, 3, v16"); k("v_mul_u32_u24 v17, 9216, v17")
    k("v_and_b32 v19, 7, v16"); k("v_lshl_add_u32 v17, v19, 7, v17")
    k("s_mul_i32 s42, s39, 36864"); k("v_add_u32 v17, s42, v17")
    k("v_bfe_u32 v19, v16, 1, 3"); k("v_xor_b32 v19, v19, v18")
    for q in range(4):
        k(f"v_xor_b32 v20, {2*q}, v19"); k(f"v_lshl_add_u32 v{vXR+q}, v20, 4, v17")
    k(f"v_lshlrev_b32 v{vSTQ}, 3, v16"); k(f"v_lshl_add_u32 v{vSTQ}, v18, 8, v{vSTQ}")
    k(f"v_mul_u32_u24 v{vSTV}, 9216, v18"); k(f"v_lshl_add_u32 v{vSTV}, v16, 4, v{vSTV}")
    k("s_waitcnt lgkmcnt(0)")
    srd(k, 16, 4, S*D*2); srd(k, 20, 6, D*3*D*2)
    srd(k, 24, 10, QK_BYTES, off=WS_QK); srd(k, 28, 10, V_BYTES, off=WS_V)
    vq = VQ(k)
    if zflags:
        lz = k.label("nz")
        k(f"s_cmp_ge_u32 s2, {64 if zflags == 2 else 8}"); k(f"s_cbranch_scc1 {lz}")
        if zflags == 2: srd(k, 32, 10, 65536, off=0x2800000)
        else: srd(k, 32, 10, 8192, off=WS_FLAG)
        k("s_lshl_b32 s46, s2, 10"); k("v_lshlrev_b32 v20, 2, v0"); k("v_mov_b32 v21, 0")
        k("buffer_store_dword v21, v20, s[32:35], s46 offen sc1")
        k("s_waitcnt vmcnt(0)")
        k.put(lz)
    SLOT = [73728, 73728+32768, 0, 32768]
    SPARE = 73728 + 65536
    def dma_w(c):
        out = []
        for rg in range(8):
            out.append([f"s_add_u32 m0, s43, {SLOT[c%4] + rg*1024}", f"s_add_u32 s46, s41, {(64*c + 8*rg)*3456}",
                        ("vm", f"w{c}", f"buffer_load_dwordx4 v{vDW}, s[20:23], s46 offen lds")])
        return out
    for par in range(2):
        for sg in range(9):
            k(f"s_add_u32 m0, s45, {(par*9 + sg)*1024}"); k(f"s_add_u32 s46, s44, {par*8*1152 + sg*128}")
            vq("x", f"buffer_load_dwordx4 v{vDX0 if par == 0 else vDX1}, s[16:19], s46 offen lds")
    for c in range(2): vq.emit(dma_w(c))
    if mt is not None:
        for j in range(3): k(f"s_mov_b32 s{62+4*j}, {D*F*2:#x}"); k(f"s_mov_b32 s{63+4*j}, 0x00020000")
        k("s_lshr_b32 s46, s2, 3"); k("s_lshl_b32 s46, s46, 8"); k("v_add_u32 v16, s46, v0")
        k("v_mul_u32_u24 v17, 7282, v16"); k("v_lshrrev_b32 v17, 16, v17")
        k(f"v_mul_u32_u24 v17, {9216 - 1152}, v17"); k("v_lshlrev_b32 v5, 7, v16"); k("v_add_u32 v4, v5, v17")
        k("v_cmp_gt_u32 vcc, 5184, v16"); k("v_cndmask_b32 v4, -1, v4, vcc"); k("v_cndmask_b32 v5, -1, v5, vcc")
        k("v_lshrrev_b32 v4, 0, v4")
        k("s_and_b32 s57, s2, 7"); k("s_mul_i32 s57, s57, 1152"); k("s_mul_i32 s58, s57, 576")
    if isinstance(mtm, str): mtm = [mtm]*3
    tch = [[("vm", "tch", f"buffer_load_dword v7, v{4 + j//2}, s[{60+4*j}:{63+4*j}], s{57 + j//2} offen {m}") for m in mtm[j].split("|")] for j in range(3)]
    XR = 64; ACC = 208
    accs = [32, 48, 208, 224]
    k("s_mov_b32 s54, 0x3f803f80"); k("s_mov_b32 s55, 0x00003f80"); k("s_mov_b32 s56, 0x3f800000")
    for i in range(8): k(f"v_mov_b32 v{vT+i}, 0")
    vq.wait("x"); k("s_barrier")
    sp.st()
    for s in range(36):
        k(f"ds_read_b128 v[{XR+4*s}:{XR+4*s+3}], v{vXR + (s&3)} offset:{(s>>2)*1024}")
        if s >= 8:
            k("s_waitcnt lgkmcnt(8)")
            for i in range(4): k(f"v_dot2c_f32_bf16 v{vT+i}, s54, v{XR+4*(s-8)+i}")
    for s in range(28, 36):
        k(f"s_waitcnt lgkmcnt({35-s})")
        for i in range(4): k(f"v_dot2c_f32_bf16 v{vT+i}, s54, v{XR+4*s+i}")
    vq.wait("w0")
    k("s_barrier")
    if mf_:
        fbase, fbytes, fa, fb_, fmod = mf_
        srd(k, 32, 10, fbytes, off=fbase)
        for i in range(4): k(f"v_mov_b32 v{8+i}, -1")
        k("v_lshlrev_b32 v1, 4, v0"); k("s_lshl_b32 s59, s2, 12")
        nf = (fbytes + 224*4096 - 1)//(224*4096)
        fls = [[("vm", "fl", f"buffer_store_dwordx4 v[8:11], v1, s[32:35], s59 offen {fmod}"), f"s_add_u32 s59, s59, {224*4096}"] for n in range(nf)]
    for c in (2, 3): vq.emit(dma_w(c))
    k(f"v_add_f32 v{vT}, v{vT}, v{vT+1}"); k(f"v_add_f32 v{vT+2}, v{vT+2}, v{vT+3}"); k(f"v_add_f32 v{vT}, v{vT}, v{vT+2}")
    k(f"v_mov_b32 v{vT+1}, v{vT}")
    k(f"v_permlane32_swap_b32 v{vT}, v{vT+1}")
    k(f"v_add_f32 v{vT}, v{vT}, v{vT+1}")
    k(f"v_mul_f32 v{vT}, {fx(-1.0/576)}, v{vT}")
    sp.st()
    def center(s):
        out = []
        for i in range(4):
            r = XR + 4*s + i; a = vT + 8 + 2*i
            out += [f"v_dot2_f32_bf16 v{a}, v{r}, s55, v{vT}", f"v_dot2_f32_bf16 v{a+1}, v{r}, s56, v{vT}"]
        for i in range(4):
            r = XR + 4*s + i; a = vT + 8 + 2*i
            out += [f"v_cvt_pk_bf16_f32 v{r}, v{a}, v{a+1}"]
        for i in range(4):
            r = XR + 4*s + i
            out += [f"v_dot2c_f32_bf16 v{vT+4+i}, v{r}, v{r}"]
        return out
    k("s_lshl_b32 s47, s38, 1"); k("s_add_u32 s47, s47, s40")
    lv = k.label("v")
    k("s_cmp_ge_u32 s47, 9"); k(f"s_cbranch_scc1 {lv}")
    vq0 = list(vq.q)
    for isv in (0, 1):
        if isv: k.put(lv)
        vq.q = list(vq0)
        NB = 8
        mf = []
        for s in range(36):
            c = s // 4; sl = s % 4
            for i in range(4):
                o = (i >> 1)*8192 + sl*2048 + (i & 1)*512
                mf.append(dict(c=c, o=[o, o+256], s=s, acc=accs[i]))
        N = len(mf)
        fill = [[] for _ in range(N+1)]
        def spread(items, g0, g1):
            n = len(items); w = g1 - g0
            for i, it in enumerate(items): fill[g0 + (i*w)//n].append(it)
        for it in center(0): k(it)
        for s in range(35): spread(center(s+1), 4*s, 4*s+4)
        BA = 4
        bar_at = {16*c - BA - 1: c for c in range(1, 9)}
        for c in range(1, 6):
            spread(dma_w(c+3), 16*c - BA, 16*c - BA + 12)
        if mf_: spread(fls, fa, fb_)
        if mt is not None:
            for j in range(3): fill[mt[j]].append(tch[j])
        lq = []; st_ = dict(rp=0, readable=1)
        k(f"v_add_u32 v{vRd[0]}, {SLOT[0]}, v{vA}")
        def issue_reads(g, maxn):
            n = 0
            while st_["rp"] < N and st_["rp"] <= g + DEPTH and mf[st_["rp"]]["c"] < st_["readable"] and n < maxn:
                rp = st_["rp"]; m = mf[rp]; fb = 4*(rp % NB)
                for e in range(2):
                    k(f"ds_read_b64_tr_b16 a[{fb+2*e}:{fb+2*e+1}], v{vRd[m['c']%2]} offset:{m['o'][e]}"); lq.append(rp)
                st_["rp"] += 1; n += 1
        issue_reads(-1, DEPTH)
        for g in range(N):
            m = mf[g]
            if g in lq:
                idx = max(i for i, t in enumerate(lq) if t == g)
                k(f"s_waitcnt lgkmcnt({len(lq)-1-idx})"); del lq[:idx+1]
            fb = 4*(g % NB); acc = m["acc"]; xs = XR + 4*m["s"]
            C = "0" if m["s"] == 0 else f"v[{acc}:{acc+15}]"
            A_, B_ = f"a[{fb}:{fb+3}]", f"v[{xs}:{xs+3}]"
            if isv: A_, B_ = B_, A_
            k(f"v_mfma_f32_32x32x16_bf16 v[{acc}:{acc+15}], {A_}, {B_}, {C}")
            if g in bar_at:
                c = bar_at[g]
                vq.wait(f"w{c}", " lgkmcnt(0)"); lq.clear()
                k("s_barrier")
                k(f"v_add_u32 v{vRd[c%2]}, {SLOT[c%4]}, v{vA}")
                st_["readable"] = c + 1
            issue_reads(g, 2)
            for it in fill[g]: vq.emit(it)
        sp.st()
        V = vT + 4
        k(f"v_add_f32 v{V}, v{V}, v{V+1}"); k(f"v_add_f32 v{V+2}, v{V+2}, v{V+3}"); k(f"v_add_f32 v{V}, v{V}, v{V+2}")
        k(f"v_mov_b32 v{V+1}, v{V}")
        k(f"v_permlane32_swap_b32 v{V}, v{V+1}")
        k(f"v_add_f32 v{V}, v{V}, v{V+1}")
        k(f"v_mov_b32 v{V+1}, {fx(1e-5)}")
        k(f"v_fmac_f32 v{V+1}, {fx(1.0/576)}, v{V}")
        k(f"v_rsq_f32 v{V}, v{V+1}")
        k("s_lshl_b32 s48, s37, 1"); k("s_add_u32 s48, s48, s39")
        if not isv and mx:
            lm = k.label("nm")
            k("s_cmp_lg_u32 s47, 0"); k(f"s_cbranch_scc1 {lm}")
            srd(k, 32, 10, 8192, off=Z_MX)
            k("s_lshl_b32 s49, s48, 7"); k("v_and_b32 v26, 31, v2"); k("v_lshlrev_b32 v26, 2, v26"); k(f"v_mul_f32 v27, -1.0, v{vT}")
            k("buffer_store_dword v27, v26, s[32:35], s49 offen")
            k.put(lm)
        if not isv:
            k("s_mul_i32 s49, s48, 73728"); k("s_lshl_b32 s50, s47, 13"); k("s_add_u32 s49, s49, s50")
            qs = (18 ** -0.5) * math.log2(math.e)
            k(f"v_mul_f32 v{V+1}, {fx(qs)}, v{V}")
            for i in range(4):
                k("s_lshl_b32 s50, s47, 2"); k(f"s_add_u32 s50, s50, {i}"); k("s_cmp_lt_u32 s50, 18")
                k("s_cselect_b64 vcc, -1, 0")
                k(f"v_cndmask_b32 v{V+2}, v{V}, v{V+1}, vcc")
                a = accs[i]
                for r in range(16): k(f"v_mul_f32 v{a+r}, v{V+2}, v{a+r}")
                for j in range(8): k(f"v_cvt_pk_bf16_f32 v{XR+8*i+j}, v{a+2*j}, v{a+2*j+1}")
                for q in range(4):
                    k(f"buffer_store_dwordx2 v[{XR+8*i+2*q}:{XR+8*i+2*q+1}], v{vSTQ}, s[24:27], s49 offen offset:{2*q*256}")
                if i < 3: k("s_add_u32 s49, s49, 2048")
        else:
            k("v_and_b32 v26, 31, v2"); k("v_lshlrev_b32 v26, 2, v26"); k("s_lshl_b32 s50, s36, 7"); k(f"s_add_u32 s50, s50, {SPARE}")
            k("v_add_u32 v26, s50, v26")
            k(f"ds_write_b32 v26, v{V}")
            k("v_lshrrev_b32 v27, 5, v2"); k("v_lshlrev_b32 v27, 4, v27"); k("v_add_u32 v27, s50, v27")
            k("s_waitcnt lgkmcnt(0)")
            RS = XR + 64
            for q in range(4): k(f"ds_read_b128 v[{RS+4*q}:{RS+4*q+3}], v27 offset:{32*q}")
            k("s_mul_i32 s49, s48, 36864"); k("s_sub_u32 s50, s47, 9"); k("s_lshl_b32 s50, s50, 11"); k("s_add_u32 s49, s49, s50")
            k("s_add_u32 s51, s49, 18432")
            k("s_waitcnt lgkmcnt(0)")
            for i in range(4):
                if i == 2:
                    k("s_cmp_eq_u32 s47, 13"); k(f"s_cbranch_scc1 {name}_vdone")
                a = accs[i]
                for r in range(16): k(f"v_mul_f32 v{a+r}, v{RS+r}, v{a+r}")
                for j in range(8): k(f"v_cvt_pk_bf16_f32 v{XR+8*i+j}, v{a+2*j}, v{a+2*j+1}")
                k(f"buffer_store_dwordx4 v[{XR+8*i}:{XR+8*i+3}], v{vSTV}, s[28:31], s49 offen offset:{i*512}")
                k(f"buffer_store_dwordx4 v[{XR+8*i+4}:{XR+8*i+7}], v{vSTV}, s[28:31], s51 offen offset:{i*512}")
            k.put(f"{name}_vdone")
        n_save = sp.n
        sp.finish(end, 36, 2, 30, 31)
        if isv == 0:
            k("s_endpgm")
            sp.n = n_save - 1
    k.put(end); k("s_endpgm")
    if pf:
        k.put(f"{name}_pf")
        k(f"s_cmp_ge_u32 s2, 256"); k(f"s_cbranch_scc1 {end}")
        if helper: helper(k, name, end)
        else: touch_code(k, NWG, 32, pf)
    return k, (name, 256 if pf else NWG, 256, 73728 + 65536 + 1024)
```

```python
from mkz import *
W = dict(stamp=False, touch=False, k1kw=dict(mt=(90, 94, 98)))
bz("o1.s", P=dict(lf=(1, 144)), **W)
bz("o2.s", P=dict(lf=[76, 84, 107, 117, 127, 137, 147, 158, 169, 219, 258, 266]), **W)
```
